```python
import torch

def _softmax(x, axis=-1):
    return torch.softmax(x, dim=axis)

def _gelu(x):
    return torch.nn.functional.gelu(x, approximate='tanh')

def _silu(x):
    return torch.nn.functional.silu(x)

def _sigmoid(x):
    return torch.sigmoid(x)

def _layernorm(x, axis=-1, eps=1e-05):
    m = x.mean(dim=axis, keepdim=True)
    v = x.var(dim=axis, keepdim=True, unbiased=False)
    return (x - m) / torch.sqrt(v + eps)

def _scatter_add(tgt, idx, src, axis=0):
    return tgt.clone().index_add_(axis, idx, src)

def _segment_sum(src, seg, n):
    out = torch.zeros((n,) + src.shape[1:], dtype=src.dtype)
    return out.index_add_(0, seg, src)

def _pad(x, pw):
    flat = tuple((v for pair in reversed(pw) for v in pair))
    return torch.nn.functional.pad(x, flat)
kernel_name = 'sequential_preLN__spectral_gfnet__mixer_gmlp__prompt'

def setup_inputs():

    _w = lambda a: (lambda t: t.to(torch.bfloat16) if t.is_floating_point() else t)(torch.as_tensor(a))

    def _A_setup():
        B, S, D = (1, 2048, 512)
        Df = D // 2 + 1
        return {'x': _w((lambda *s: torch.randn(*s, dtype=torch.bfloat16) * 0.05)(B, S, D)), 'w_r': _w((lambda *s: torch.randn(*s, dtype=torch.bfloat16) * 0.4)(S, Df) * 0.02), 'w_i': _w((lambda *s: torch.randn(*s, dtype=torch.bfloat16) * 0.4)(S, Df) * 0.02)}
    _A_in = _A_setup()

    def _B_setup():
        B, S, D, F = (1, 2048, 512, 1792)
        Fh = F // 2
        return {'x': _w((lambda *s: torch.randn(*s, dtype=torch.bfloat16) * 0.05)(B, S, D)), 'w_in': _w((lambda *s: torch.randn(*s, dtype=torch.bfloat16) * 0.4)(D, 2 * Fh)), 'w_sp': _w(0.01 * (lambda *s: torch.randn(*s, dtype=torch.bfloat16) * 0.4)(S, S)), 'b_sp': _w(1.0 + 0.01 * (lambda *s: torch.randn(*s, dtype=torch.bfloat16) * 0.05)(S)), 'w_out': _w((lambda *s: torch.randn(*s, dtype=torch.bfloat16) * 0.05)(Fh, D))}
    _B_in = _B_setup()
    return {'A_x': _A_in['x'], 'A_w_r': _A_in['w_r'], 'A_w_i': _A_in['w_i'], 'B_x': _B_in['x'], 'B_w_in': _B_in['w_in'], 'B_w_sp': _B_in['w_sp'], 'B_b_sp': _B_in['b_sp'], 'B_w_out': _B_in['w_out']}

def reference(A_x, A_w_r, A_w_i, B_x, B_w_in, B_w_sp, B_b_sp, B_w_out):

    def _A_ref(x, w_r, w_i):
        B, S, D = x.shape
        X = (lambda x, axes=(-2, -1): torch.fft.rfft2(x.float(), dim=axes))(x, axes=(-2, -1))
        W = w_r + 1j * w_i
        X = X * W
        y = (lambda x, s, axes=(-2, -1): torch.fft.irfft2(x, s=s, dim=axes).to(torch.bfloat16))(X, (S, D), axes=(-2, -1))
        return y

    def _B_ref(x, w_in, w_sp, b_sp, w_out):
        B, S, D = x.shape
        F = w_in.shape[-1]
        Fh = F // 2
        z = _gelu(torch.einsum('bsd,df->bsf', x, w_in))
        z1 = z[..., :Fh].clone()
        z2 = _layernorm(z[..., Fh:], axis=-1)
        g = torch.einsum('ts,bsf->btf', w_sp, z2) + b_sp[None, :, None]
        return torch.einsum('bsf,fd->bsd', z1 * g, w_out)
    x = A_x
    h = x + _A_ref(_layernorm(x, axis=-1), A_w_r, A_w_i)
    h2 = h + _B_ref(_layernorm(h, axis=-1), B_w_in, B_w_sp, B_b_sp, B_w_out)
    return h2
```

```python
import re

TRANS = ('v_exp_f32', 'v_log_f32', 'v_rcp_f32', 'v_rsq_f32', 'v_sqrt_f32', 'v_sin_f32', 'v_cos_f32')
REG = re.compile(r'^(-|abs\()?([vas])(?:(\d+)|\[(\d+):(\d+)\])\)?$')

def regs(op):
    op = op.strip()
    if op.startswith('|') and op.endswith('|'): op = op[1:-1]
    if op in ('vcc', 'exec', 'm0'): return [op]
    if op in ('vcc_lo', 'vcc_hi'): return ['vcc']
    if op in ('exec_lo', 'exec_hi'): return ['exec']
    m = REG.match(op)
    if not m: return []
    k = m.group(2)
    if m.group(3) is not None: return [f'{k}{m.group(3)}']
    return [f'{k}{i}' for i in range(int(m.group(4)), int(m.group(5)) + 1)]

def split_ops(s):
    out, depth, cur = [], 0, ''
    for ch in s:
        if ch in '[(': depth += 1
        if ch in '])': depth -= 1
        if ch == ',' and depth == 0: out.append(cur.strip()); cur = ''
        else: cur += ch
    if cur.strip(): out.append(cur.strip())
    return out

class Ins:
    def __init__(self, line):
        self.line = line
        parts = line.split(None, 1)
        self.mn = mn = parts[0]
        rest = parts[1] if len(parts) > 1 else ''
        ops = split_ops(rest)
        mods = ''
        if ops:
            last = ops[-1].split(None, 1)
            ops[-1] = last[0]
            mods = last[1] if len(last) > 1 else ''
        self.ops, self.mods = ops, mods
        R = [regs(o) for o in ops]
        flat = lambda l: [x for r in l for x in r]
        self.kind = 'other'; self.w = []; self.r = []; self.a = self.b = self.c = []
        self.dpp = any(k in mods for k in ('row_', 'quad_perm', 'wave_'))
        self.wide = False; self.lds_dma = False; self.passes = 0
        if mn.startswith('v_mfma'):
            self.kind = 'mfma'; self.w = R[0]; self.a, self.b, self.c = R[1], R[2], R[3]; self.r = flat(R[1:])
            self.passes = 8 if '32x32' in mn else 4
        elif mn.startswith('v_'):
            self.kind = 'valu'; self.w = R[0]; self.r = flat(R[1:])
            if mn.startswith(('v_fmac', 'v_pk_fmac', 'v_dot2c')) or self.dpp: self.r += R[0]
            if 'swap' in mn: self.w = R[0] + R[1]; self.r = R[0] + R[1]
            if mn.startswith(('v_add_co', 'v_sub_co', 'v_addc_co')): self.w = R[0] + R[1]; self.r = flat(R[2:])
            if mn.startswith('v_cndmask') and len(ops) == 3: self.r += ['vcc']
        elif mn.startswith('ds_'):
            self.kind = 'ds'
            if mn.startswith(('ds_read', 'ds_bpermute', 'ds_permute', 'ds_swizzle')): self.w = R[0]; self.r = flat(R[1:])
            else: self.r = flat(R)
        elif mn.startswith(('buffer_', 'global_')):
            self.kind = 'vmem'
            if re.search(r'\blds\b', mods): self.lds_dma = True; self.r = flat(R) + ['m0']
            elif '_load' in mn: self.w = R[0]; self.r = flat(R[1:])
            else:
                self.r = flat(R)
                self.wide = mn.endswith(('x3', 'x4'))
                self.data = R[0] if mn.startswith('buffer_') else R[1]
        elif mn.startswith('s_'):
            self.kind = 'salu'
            if mn.startswith(('s_cmp', 's_cbranch', 's_branch', 's_waitcnt', 's_barrier', 's_nop', 's_sleep', 's_endpgm', 's_setprio')):
                self.r = flat(R)
            else:
                self.w = R[0] if R else []; self.r = flat(R[1:])
                if 'saveexec' in mn: self.w = self.w + ['exec']
        self.trans = mn.replace('_e32', '').replace('_e64', '') in TRANS

class Emitter:
    def __init__(self):
        self.out = []
        self.t = 0
        self.hist = []
        self.nvm = 0; self.nlg = 0
        self.marks = {}
        self.uid = 0
        self.nops = 0
    def raw(self, s): self.out.append(s)
    def label_name(self, base):
        self.uid += 1
        return f'L_{base}_{self.uid}'
    def need(self, c):
        n = 0
        cr, cw = set(c.r), set(c.w)
        for (t, p) in self.hist:
            d = self.t - t - 1
            req = 0
            pw = set(p.w)
            if p.kind == 'valu':
                vw = {x for x in pw if x[0] in 'va' and x != 'vcc'}
                sw = pw - vw
                if c.kind == 'mfma' and vw & cr: req = max(req, 2)
                if c.kind == 'valu':
                    if p.trans and vw & cr: req = max(req, 1)
                    if (c.dpp or 'permlane' in c.mn) and vw & cr: req = max(req, 2)
                    if c.mn.startswith(('v_readfirstlane', 'v_readlane')) and vw & cr: req = max(req, 1)
                    if sw & cr: req = max(req, 4 if c.mn.startswith(('v_readlane', 'v_writelane')) else 2)
                if c.kind == 'vmem' and sw & cr: req = max(req, 5)
                if c.kind == 'salu' and sw & (cr | ({'vcc'} if 'vcc' in c.mn else set())): req = max(req, 1)
                if p.trans and c.kind in ('ds', 'vmem') and vw & cr: req = max(req, 1)
            elif p.kind == 'mfma':
                big = 8 if p.passes == 4 else 12
                if c.kind == 'mfma':
                    if pw & (set(c.a) | set(c.b)): req = max(req, big)
                    if pw & set(c.c) and not (p.w == c.c and p.passes == c.passes): req = max(req, big - 2)
                    if pw & cw and p.w != c.w: req = max(req, big - 2)
                elif c.kind in ('valu', 'ds', 'vmem'):
                    if pw & (cr | cw): req = max(req, big)
                    if c.kind == 'valu' and set(p.c) & cw: req = max(req, 3 if p.passes == 4 else 7)
            elif p.kind == 'vmem' and p.wide:
                if set(p.data) & cw: req = max(req, 2 if c.kind in ('valu', 'mfma') else 1)
            elif p.kind == 'salu':
                if 'm0' in pw and c.kind == 'vmem' and c.lds_dma: req = max(req, 1)
            n = max(n, req - d)
        return n
    def nop(self, n):
        while n > 0:
            k = min(n, 16)
            self.out.append(f'    s_nop {k-1}'); self.t += k; n -= k; self.nops += 1
    def one(self, line):
        line = line.strip()
        if not line: return
        if line.startswith(';'): self.out.append('    ' + line); return
        if line.startswith('.'): self.out.append(line); return
        if line.endswith(':'):
            self.settle(); self.out.append(line); return
        c = Ins(line)
        if c.mn.startswith(('s_cbranch', 's_branch')):
            k = self.need(c); self.nop(k); self.settle()
        else:
            self.nop(self.need(c))
        self.out.append('    ' + line)
        if c.mn == 's_nop': self.t += int(c.ops[0]) + 1
        else:
            self.hist.append((self.t, c)); self.t += 1
        self.hist = [(t, p) for (t, p) in self.hist if self.t - t <= 14]
        if c.kind == 'vmem': self.nvm += 1
        if c.kind == 'ds': self.nlg += 1
    def settle(self):
        n = 0
        for (t, p) in self.hist:
            d = self.t - t - 1
            req = {'mfma': 8 if p.passes == 4 else 12, 'valu': 5 if any(x[0] == 's' or x == 'vcc' for x in p.w) else 2}.get(p.kind, 0)
            if p.kind == 'vmem' and p.wide: req = 2
            if p.kind == 'salu' and 'm0' in p.w: req = 1
            n = max(n, req - d)
        self.nop(n); self.hist = []
    def __call__(self, item):
        if isinstance(item, str):
            for l in item.split('\n'): self.one(l)
        elif isinstance(item, (list,)):
            for x in item: self(x)
        elif isinstance(item, tuple):
            op, name = item
            if op == 'call': name()
            elif op == 'mark': self.marks[name] = (self.nvm, self.nlg)
            elif op == 'wvm': self.one(f's_waitcnt vmcnt({min(63, self.nvm - self.marks[name][0])})')
            elif op == 'wlg': self.one(f's_waitcnt lgkmcnt({min(15, self.nlg - self.marks[name][1])})')
            elif op == 'wboth':
                self.one(f's_waitcnt vmcnt({min(63, self.nvm - self.marks[name][0])}) lgkmcnt({min(15, self.nlg - self.marks[name][1])})')
            else: raise ValueError(op)
        else: raise TypeError(item)
    def text(self): return '\n'.join(self.out) + '\n'

def lines(s): return [l.strip() for l in s.split('\n') if l.strip()]

def interleave(main, fill, start=0, per=1, step=1):
    out, fi = [], 0
    for i, m in enumerate(main):
        out.append(m)
        if i >= start and (i - start) % step == step - 1:
            out += fill[fi:fi + per]; fi += per
    out += fill[fi:]
    return out

def spread(main, fill, start=0, end=None):
    end = len(main) if end is None else end
    n = max(1, end - start); out, fi = [], 0
    for i, m in enumerate(main):
        out.append(m)
        if start <= i < end:
            tgt = (len(fill) * (i - start + 1)) // n
            out += fill[fi:tgt]; fi = tgt
    out += fill[fi:]
    return out

def vr(a, n=1): return f'v{a}' if n == 1 else f'v[{a}:{a+n-1}]'
def ar(a, n=1): return f'a{a}' if n == 1 else f'a[{a}:{a+n-1}]'
def sr(a, n=1): return f's{a}' if n == 1 else f's[{a}:{a+n-1}]'
```

```python
import math, struct, sys
from emit import *

NAME = 'sequential_preLN__spectral_gfnet__mixer_gmlp__prompt'
KNAME = NAME + '_kernel'

def f32(x): return '0x%08x' % struct.unpack('<I', struct.pack('<f', x))[0]

WS_EPOCH = 0
WS_FLAG = 0x10000
F1, F1B, F2, F4, FH, F5 = [WS_FLAG + i * 0x8000 for i in range(6)]
WS_SIG = 0x40000
WS_MEAN = 0x48000
WS_TS = 0x50000
WS_STAT = 0x80000
WS_X1T = 0x100000
WS_WT = 0x300000
WS_W2F = 0x500000
WS_HT = 0x700000
WS_Z1F = 0x900000
WS_Z2F = 0xD00000
WS_HF = 0x1100000
WS_PF = 0x1300000
WS_SIZE = 0x1700000

SX, SWR, SWI, SWIN, SWSP, SBSP, SWOUT, SOUT, SWS = 8, 12, 16, 20, 24, 28, 32, 36, 40
S_W, S_TAG, S_KB, S_RB = 44, 45, 46, 47
S_T0 = 48
S_TS = 70
V_TID, V_LANE, V_L16, V_J, V_Q = 0, 1, 2, 3, 4

L_X, L_WIN, L_WTR, L_STAT, L_BNC, L_STG = 0, 33280, 66048, 75264, 75776, 97280
L_X1C, L_EX, L_OB = 0, 8192, 16384
L_W2, L_RING, L_SM = 0, 114688, 147456
LDS_BYTES = 163840
SPIN_MAX = 1 << 16

class Gen:
    def __init__(self, stop=99, prof=False):
        self.e = Emitter(); self.stop = stop; self.prof = prof; self.nts = 0; self.names = []

    def ts(self, name=''):
        if self.prof:
            self.e(f's_memrealtime s[62:63]\ns_waitcnt lgkmcnt(0)\ns_mov_b32 s{S_TS + self.nts}, s62')
            self.names.append(name)
            self.nts += 1

    def srd(self, base, nbytes):
        self.e(f's_mov_b32 s{base+2}, {nbytes}\ns_mov_b32 s{base+3}, 0x20000')

    def flag_write(self, farr):
        e = self.e; L = e.label_name('nf')
        e(f's_cmp_eq_u32 s{S_W}, 0\ns_cbranch_scc0 {L}')
        e(f's_lshl_b32 s{S_T0}, s2, 7\ns_add_u32 s{S_T0}, s{S_T0}, {farr}\nv_mov_b32 v6, s{S_TAG}\nv_mov_b32 v7, 0\ns_mov_b64 exec, 1')
        e(f'buffer_store_dword v6, v7, {sr(SWS,4)}, s{S_T0} offen sc1'); e.nvm -= 1
        e(f's_mov_b64 exec, -1\n{L}:')

    def poll(self, vaddr):
        e = self.e; L = e.label_name('poll'); D = e.label_name('pdone')
        e(f's_mov_b32 s{S_T0}, 0\n{L}:')
        e(f'buffer_load_dword v6, v{vaddr}, {sr(SWS,4)}, 0 offen sc1')
        e(f's_add_u32 s{S_T0}, s{S_T0}, 1\ns_cmp_ge_u32 s{S_T0}, {SPIN_MAX}\ns_cbranch_scc1 {D}')
        e(f's_waitcnt vmcnt(0)\nv_cmp_ne_u32 vcc, s{S_TAG}, v6\ns_cbranch_vccnz {L}\n{D}:\ns_waitcnt vmcnt(0)')

    def prologue(self):
        e = self.e
        e('s_cmp_ge_u32 s2, 256\ns_cbranch_scc1 L_end')
        for base, off in ((SX, 0), (SWR, 8), (SWI, 16), (SWIN, 32), (SWSP, 40), (SBSP, 48), (SWOUT, 56), (SOUT, 64), (SWS, 80)):
            e(f's_load_dwordx2 {sr(base,2)}, s[0:1], {off}')
        self.ts_first = True
        e(f'v_lshrrev_b32 v5, 6, v0\nv_and_b32 v{V_LANE}, 63, v0')
        e(f'v_readfirstlane_b32 s{S_W}, v5')
        e(f'v_lshlrev_b32 v{V_L16}, 4, v{V_LANE}\nv_and_b32 v{V_J}, 15, v{V_LANE}\nv_lshrrev_b32 v{V_Q}, 4, v{V_LANE}')
        for base, n in ((SX, 2097152), (SWR, 2048*514), (SWI, 2048*514), (SWIN, 512*3584), (SWSP, 2048*4096), (SBSP, 4096),
                        (SWOUT, 896*1024), (SOUT, 2097152), (SWS, WS_SIZE)):
            self.srd(base, n)
        e(f's_lshr_b32 s{S_KB}, s2, 3\ns_and_b32 s{S_KB}, s{S_KB}, 3')
        e(f's_lshr_b32 s{S_RB}, s2, 5\ns_lshl_b32 s{S_RB}, s{S_RB}, 3\ns_and_b32 s{S_T0}, s2, 7\ns_or_b32 s{S_RB}, s{S_RB}, s{S_T0}')
        e('s_waitcnt lgkmcnt(0)')
        e(f's_load_dword s{S_TAG}, {sr(SWS,2)}, {WS_EPOCH}')
        if self.prof:
            e(f's_memrealtime s[60:61]'); self.nts = 1; self.names = ['start']

    def p5_ids(self, s_tb, s_fb):
        e = self.e
        e(f's_lshr_b32 s{s_fb}, s2, 3\ns_and_b32 s{s_fb}, s{s_fb}, 3\ns_and_b32 s{S_T0}, s2, 1\ns_lshl_b32 s{S_T0}, s{S_T0}, 2\ns_or_b32 s{s_fb}, s{s_fb}, s{S_T0}')
        e(f's_lshr_b32 s{s_tb}, s2, 5\ns_bfe_u32 s{S_T0}, s2, 0x20001\ns_lshl_b32 s{S_T0}, s{S_T0}, 3\ns_or_b32 s{s_tb}, s{s_tb}, s{S_T0}')

    S_TB, S_FB = 64, 65
    def wsp_issue(self, rnd):
        e = self.e; t0, t1 = S_T0, S_T0 + 1
        e(f's_lshl_b32 s{t0}, s{self.S_TB}, 18\ns_lshl_b32 s{t1}, s{S_W}, 10\ns_add_u32 s{t0}, s{t0}, s{t1}\ns_add_u32 s{t0}, s{t0}, {rnd*16*4096}')
        e(f's_mul_i32 s{t1}, s{S_W}, 16640\ns_add_u32 s{t1}, s{t1}, {L_STG}')
        for i in range(16):
            e(f's_mov_b32 m0, s{t1}')
            e(f'buffer_load_dwordx4 v{V_L16}, {sr(SWSP,4)}, s{t0} offen lds')
            if i < 15: e(f's_add_u32 s{t0}, s{t0}, 4096\ns_add_u32 s{t1}, s{t1}, 1040')
        e(('mark', f'wsp{rnd}'))

    def wsp_read(self, rnd, vtmp):
        e = self.e
        e(f's_mul_i32 s{S_T0}, s{S_W}, 16640\ns_add_u32 s{S_T0}, s{S_T0}, {L_STG}')
        e(f'v_mul_u32_u24 v{vtmp}, 1040, v{V_J}\nv_lshl_add_u32 v{vtmp}, v{V_Q}, 3, v{vtmp}\nv_add_u32 v{vtmp}, s{S_T0}, v{vtmp}')
        e(('wvm', f'wsp{rnd}'))
        for ks in range(16):
            e(f'ds_read2_b64 {ar((rnd*16+ks)*4,4)}, v{vtmp} offset0:{8*ks} offset1:{8*ks+4}')
        e('s_waitcnt lgkmcnt(0)')

    FD = 64
    def p1(self):
        e = self.e; t0, t1, t2, t3 = S_T0, S_T0+1, S_T0+2, S_T0+3
        FD = self.FD; ACC = 128; XF = 160; G = 192; WR = 16; WI = 24
        e(f's_and_b32 s{t0}, s{S_RB}, 1\ns_lshl_b32 s{t0}, s{t0}, 10\ns_lshl_b32 s{t1}, s{S_W}, 8\ns_add_u32 s{t0}, s{t0}, s{t1}')
        e(f's_lshr_b32 s{t1}, s{S_RB}, 1\ns_add_u32 s{t0}, s{t0}, s{t1}\ns_lshl_b32 s{t0}, s{t0}, 10')
        e(f's_mul_i32 s{t1}, s{S_W}, 8320')
        for i in range(8):
            e(f's_mov_b32 m0, s{t1}')
            e(f'buffer_load_dwordx4 v{V_L16}, {sr(SX,4)}, s{t0} offen lds')
            if i < 7: e(f's_add_u32 s{t0}, s{t0}, 32768\ns_add_u32 s{t1}, s{t1}, 1040')
        e(f's_and_b32 s{t0}, s{S_RB}, 7\ns_lshl_b32 s{t0}, s{t0}, 3\ns_lshr_b32 s{t1}, s{S_RB}, 3\ns_lshl_b32 s{t1}, s{t1}, 8\ns_add_u32 s{t0}, s{t0}, s{t1}')
        e(f's_lshl_b32 s{t1}, s{S_W}, 1\ns_add_u32 s{t0}, s{t0}, s{t1}\ns_mul_i32 s{t0}, s{t0}, 514')
        e(f's_lshl_b32 s{t1}, s{S_KB}, 7\ns_add_u32 s{t0}, s{t0}, s{t1}\ns_add_u32 s{t0}, s{t0}, 2')
        e(f'v_lshlrev_b32 v8, 1, v{V_LANE}')
        for r in range(4):
            for mm in range(2):
                e(f'buffer_load_ushort v{WR+mm*4+r}, v8, {sr(SWR,4)}, s{t0} offen offset:{mm*514}')
                e(f'buffer_load_ushort v{WI+mm*4+r}, v8, {sr(SWI,4)}, s{t0} offen offset:{mm*514}')
            if r < 3: e(f's_add_u32 s{t0}, s{t0}, {64*514}')
        e(('mark', 'xw'))
        KF, SC, M, SG = G, G+1, G+2, G+4
        C0, S0, C1, S1 = G+8, G+16, G+24, G+32
        PH = G+40
        e(f's_lshl_b32 s{t0}, s{S_KB}, 6\ns_lshl_b32 s{t1}, s{S_W}, 4\ns_add_u32 s{t0}, s{t0}, s{t1}\ns_add_u32 s{t0}, s{t0}, 1')
        e(f'v_add_u32 v{KF}, s{t0}, v{V_J}')
        e(f'v_mov_b32 v{SC}, {f32(1/16)}\nv_mov_b32 v{PH}, {f32(1/math.sqrt(512))}\nv_cmp_eq_u32 vcc, 0x100, v{KF}\nv_cndmask_b32 v{SC}, v{SC}, v{PH}, vcc')
        e(f'v_and_b32 v{SG}, 1, v{KF}\nv_lshlrev_b32 v{SG}, 31, v{SG}\nv_or_b32 v{SG}, 1.0, v{SG}')
        e(f'v_cvt_f32_u32 v{KF}, v{KF}\nv_mul_f32 v{KF}, {f32(1/512)}, v{KF}')
        e(f'v_lshlrev_b32 v{PH}, 3, v{V_Q}\nv_cvt_f32_u32 v{PH}, v{PH}\nv_mul_f32 v{PH}, v{PH}, v{KF}')
        e(f'v_mul_f32 v{M}, {f32(32.0)}, v{KF}')
        e(f'v_add_f32 v{PH+8}, v{PH}, v{M}\nv_cos_f32 v{M}, v{M}')
        for i in range(1, 8):
            e(f'v_add_f32 v{PH+i}, v{PH+i-1}, v{KF}\nv_add_f32 v{PH+8+i}, v{PH+8+i-1}, v{KF}')
        e(f'v_add_f32 v{M}, v{M}, v{M}')
        for i in range(8):
            e(f'v_cos_f32 v{C0+i}, v{PH+i}\nv_sin_f32 v{S0+i}, v{PH+i}\nv_cos_f32 v{C1+i}, v{PH+8+i}\nv_sin_f32 v{S1+i}, v{PH+8+i}')
        for i in range(8):
            e(f'v_mul_f32 v{C0+i}, v{C0+i}, v{SC}\nv_mul_f32 v{C1+i}, v{C1+i}, v{SC}')
            e(f'v_mul_f32 v{S0+i}, -v{S0+i}, v{SC}\nv_mul_f32 v{S1+i}, -v{S1+i}, v{SC}')
        prev, cur = (C0, S0), (C1, S1)
        def cvt(u, src):
            for c in range(2):
                for i in range(4):
                    e(f'v_cvt_pk_bf16_f32 v{FD+8*u+4*c+i}, v{src[c]+2*i}, v{src[c]+2*i+1}')
        cvt(0, prev); cvt(1, cur)
        for u in range(2, 8):
            for c in range(2):
                for i in range(0, 8, 2):
                    e(f'v_pk_fma_f32 {vr(prev[c]+i,2)}, {vr(cur[c]+i,2)}, {vr(M,2)}, {vr(prev[c]+i,2)} op_sel_hi:[1,0,1] neg_lo:[0,0,1] neg_hi:[0,0,1]')
            prev, cur = cur, prev
            cvt(u, cur)
        AX, AS, ONES = G+8, G+9, G+12
        e(f'v_mul_u32_u24 v{AX}, 1040, v{V_J}\nv_lshl_add_u32 v{AX}, v{V_Q}, 4, v{AX}')
        e(f's_and_b32 s{t0}, s{S_W}, 1\ns_mul_i32 s{t0}, s{t0}, 16640\ns_lshr_b32 s{t1}, s{S_W}, 1\ns_lshl_b32 s{t1}, s{t1}, 9\ns_add_u32 s{t0}, s{t0}, s{t1}')
        e(f'v_add_u32 v{AS}, s{t0}, v{AX}')
        for i in range(4): e(f'v_mov_b32 v{ONES+i}, 0x3f803f80')
        for i in range(40): e(f'v_mov_b32 v{ACC+i if i < 32 else G+16+i-32}, 0')
        SUM, SQ = G+16, G+20
        e(f's_waitcnt lgkmcnt(0)\ns_mul_i32 s{S_TAG}, s{S_TAG}, 0x9e3779b1\ns_add_u32 s{S_TAG}, s{S_TAG}, 0x7f4a7c15')
        if self.prof: e(f's_mov_b32 s{S_TS}, s60')
        AW = G+10
        e(f'v_mul_u32_u24 v{AW}, 144, v{V_LANE}\ns_lshl_b32 s{t0}, s{S_W}, 5\ns_add_u32 s{t0}, s{t0}, {L_WTR}\nv_add_u32 v{AW}, s{t0}, v{AW}')
        e(('wvm', 'xw'))
        for i in range(8): e(f'v_lshl_or_b32 v{WR+i}, v{WI+i}, 16, v{WR+i}')
        e(f'ds_write_b128 v{AW}, {vr(WR,4)}\nds_write_b128 v{AW}, {vr(WR+4,4)} offset:16')
        e('s_waitcnt lgkmcnt(0)\ns_barrier')
        self.ts()
        for i in range(8): e(f'ds_read_b128 {vr(XF+4*i,4)}, v{AS} offset:{64*i}'); e(('mark', f'st{i}'))
        e(f'v_lshrrev_b32 v{AW}, 3, v{V_TID}\nv_mul_u32_u24 v{AW}, 144, v{AW}\nv_and_b32 v5, 7, v{V_TID}\nv_lshl_add_u32 v{AW}, v5, 4, v{AW}\nv_add_u32 v{AW}, {L_WTR}, v{AW}')
        for i in range(8):
            e(('wlg', f'st{i}'))
            e(f'v_mfma_f32_16x16x32_bf16 {vr(SQ,4)}, {vr(XF+4*i,4)}, {vr(XF+4*i,4)}, {vr(SQ,4)}')
            e(f'v_mfma_f32_16x16x32_bf16 {vr(SUM,4)}, {vr(XF+4*i,4)}, {vr(ONES,4)}, {vr(SUM,4)}')
        order = [(u, tau) for u in range(16) for tau in range(2)]
        def rd(n):
            u, tau = order[n]
            return [f'ds_read_b128 {vr(XF+4*(n%8),4)}, v{AX} offset:{tau*16640+u*64}', ('mark', f'x{n}')]
        e(f'ds_read_b128 {vr(WR,4)}, v{AW}\nds_read_b128 {vr(WR+4,4)}, v{AW} offset:{32*144}')
        for n in range(6): e(rd(n))
        AST = G+11
        e(f's_and_b32 s{t0}, s{S_W}, 1\ns_lshl_b32 s{t0}, s{t0}, 8\ns_lshr_b32 s{t1}, s{S_W}, 1\ns_lshl_b32 s{t1}, s{t1}, 7\ns_add_u32 s{t0}, s{t0}, s{t1}\ns_add_u32 s{t0}, s{t0}, {L_STAT}')
        e(f'v_lshlrev_b32 v{AST}, 4, v{V_Q}\nv_add_u32 v{AST}, s{t0}, v{AST}')
        e(f's_mov_b32 s{t2}, 0x00010001\ns_mov_b32 s{t3}, 0x00010001\ns_mov_b64 exec, {sr(t2,2)}')
        e(f'ds_write_b128 v{AST}, {vr(SUM,4)}')
        for r in range(4):
            m = (1 << r) | (1 << (20 + r)) | (1 << (40 + r)) | (1 << (60 + r))
            e(f's_mov_b32 s{t2}, {m & 0xffffffff:#x}\ns_mov_b32 s{t3}, {m >> 32:#x}\ns_mov_b64 exec, {sr(t2,2)}')
            e(f'ds_write_b32 v{AST}, v{SQ+r} offset:{64+4*r}')
        e('s_mov_b64 exec, -1')
        AWG = G+24
        e(f'v_lshrrev_b32 v{AWG}, 3, v{V_TID}\nv_lshlrev_b32 v{AWG}, 13, v{AWG}\nv_lshl_add_u32 v{AWG}, v5, 4, v{AWG}')
        e(f's_bfe_u32 s{t0}, s{S_RB}, 0x20001\ns_lshl_b32 s{t0}, s{t0}, 11\ns_lshr_b32 s{t1}, s{S_RB}, 5\ns_lshl_b32 s{t1}, s{t1}, 10\ns_add_u32 s{t0}, s{t0}, s{t1}')
        e(f's_bfe_u32 s{t1}, s{S_RB}, 0x20003\ns_lshl_b32 s{t1}, s{t1}, 8\ns_add_u32 s{t0}, s{t0}, s{t1}\ns_and_b32 s{t1}, s{S_RB}, 1\ns_lshl_b32 s{t1}, s{t1}, 7\ns_add_u32 s{t0}, s{t0}, s{t1}')
        e(f's_lshl_b32 s{t1}, s{S_KB}, 19\ns_add_u32 s{t0}, s{t0}, s{t1}\ns_add_u32 s{t0}, s{t0}, {WS_WT}\ns_add_u32 s{t1}, s{t0}, {32*8192}')
        e(('wlg', 'x0'))
        e(f'buffer_store_dwordx4 {vr(WR,4)}, v{AWG}, {sr(SWS,4)}, s{t0} offen sc1')
        e(f'buffer_store_dwordx4 {vr(WR+4,4)}, v{AWG}, {sr(SWS,4)}, s{t1} offen sc1')
        def acc(tau, c, half): return ACC + ((tau*2 + c)*2 + half)*4
        for n, (u, tau) in enumerate(order):
            e(('wlg', f'x{n}'))
            for c in range(2):
                A = acc(tau, c, u >> 3)
                e(f'v_mfma_f32_16x16x32_bf16 {vr(A,4)}, {vr(XF+4*(n%8),4)}, {vr(FD+8*(u&7)+4*c,4)}, {vr(A,4)}')
            if n + 6 < 32: e(rd(n + 6))
            if n == 24:
                e('s_barrier')
                e(f'v_lshlrev_b32 v{AST}, 4, v{V_Q}\nv_add_u32 v{AST}, {L_STAT}, v{AST}')
                for tau2 in range(2):
                    for half in range(2):
                        for kind in range(2):
                            e(f'ds_read_b128 {vr(G+24+((tau2*2+half)*2+kind)*4,4)}, v{AST} offset:{tau2*256+half*128+kind*64}')
        e('s_waitcnt lgkmcnt(0)')
        ST = G+24; MEAN, RSTD, SIG = 16, 24, 32
        for tau in range(2):
            for r in range(4):
                s0, q0, s1, q1 = (ST+((tau*2+0)*2+0)*4+r, ST+((tau*2+0)*2+1)*4+r, ST+((tau*2+1)*2+0)*4+r, ST+((tau*2+1)*2+1)*4+r)
                i = tau*4 + r
                e(f'v_add_f32 v{s0}, v{s0}, v{s1}\nv_add_f32 v{q0}, v{q0}, v{q1}')
                e(f'v_mul_f32 v{MEAN+i}, {f32(1/512)}, v{s0}\nv_mul_f32 v{q0}, {f32(1/512)}, v{q0}')
                e(f'v_fma_f32 v{q0}, -v{MEAN+i}, v{MEAN+i}, v{q0}\nv_max_f32 v{q0}, 0, v{q0}\nv_add_f32 v{q0}, {f32(1e-5)}, v{q0}')
                e(f'v_rsq_f32 v{RSTD+i}, v{q0}\nv_sqrt_f32 v{SIG+i}, v{q0}')
        OUTR = XF
        for tau in range(2):
            for r in range(4):
                for c in range(2):
                    lo, hi = acc(tau, c, 0)+r, acc(tau, c, 1)+r
                    e(f'v_fma_f32 v{lo}, v{hi}, v{SG}, v{lo}\nv_mul_f32 v{lo}, v{lo}, v{RSTD+tau*4+r}')
                e(f'v_cvt_pk_bf16_f32 v{OUTR+tau*4+r}, v{acc(tau,0,0)+r}, v{acc(tau,1,0)+r}')
        AB = G+8; AB2 = G+9; AG = G+10
        e(f's_mul_i32 s{t0}, s{S_W}, 2304\ns_add_u32 s{t0}, s{t0}, {L_BNC}')
        e(f'v_mul_u32_u24 v{AB}, 144, v{V_J}\nv_lshl_add_u32 v{AB}, v{V_Q}, 4, v{AB}\nv_add_u32 v{AB}, s{t0}, v{AB}')
        e(f'ds_write_b128 v{AB}, {vr(OUTR,4)}\nds_write_b128 v{AB}, {vr(OUTR+4,4)} offset:64')
        e(f'v_lshrrev_b32 v{AG}, 3, v{V_LANE}\nv_mul_u32_u24 v{AB2}, 144, v{AG}\nv_lshl_add_u32 v{AB2}, v5, 4, v{AB2}\nv_add_u32 v{AB2}, s{t0}, v{AB2}')
        e(f'v_lshlrev_b32 v{AG}, 13, v{AG}\nv_lshl_add_u32 v{AG}, v5, 4, v{AG}')
        e(f's_lshl_b32 s{t0}, s{S_KB}, 19\ns_lshl_b32 s{t1}, s{S_W}, 17\ns_add_u32 s{t0}, s{t0}, s{t1}\ns_lshl_b32 s{t1}, s{S_RB}, 7\ns_add_u32 s{t0}, s{t0}, s{t1}')
        e(f's_add_u32 s{t0}, s{t0}, {WS_X1T}\ns_add_u32 s{t1}, s{t0}, {8*8192}')
        e('s_waitcnt lgkmcnt(0)')
        e(f'ds_read_b128 {vr(OUTR+8,4)}, v{AB2}\nds_read_b128 {vr(OUTR+12,4)}, v{AB2} offset:{8*144}')
        e('s_waitcnt lgkmcnt(1)')
        e(f'buffer_store_dwordx4 {vr(OUTR+8,4)}, v{AG}, {sr(SWS,4)}, s{t0} offen sc1')
        e('s_waitcnt lgkmcnt(0)')
        e(f'buffer_store_dwordx4 {vr(OUTR+12,4)}, v{AG}, {sr(SWS,4)}, s{t1} offen sc1')
        L = e.label_name('nst')
        e(f's_cmp_ge_u32 s{S_W}, 2\ns_cbranch_scc1 {L}')
        e(f's_lshl_b32 s{t0}, s{S_RB}, 7\ns_lshl_b32 s{t1}, s{S_KB}, 13\ns_add_u32 s{t1}, s{t1}, s{t0}\ns_add_u32 s{t1}, s{t1}, {WS_SIG}\ns_add_u32 s{t0}, s{t0}, {WS_MEAN}')
        e(f'v_lshlrev_b32 v{AB}, 4, v{V_Q}\ns_mov_b32 s{t2}, 0x00010001\ns_mov_b32 s{t3}, 0x00010001\ns_mov_b64 exec, {sr(t2,2)}')
        L1 = e.label_name('nm'); L2 = e.label_name('nm2')
        e(f's_cmp_eq_u32 s{S_W}, 0\ns_cbranch_scc0 {L1}')
        e(f'buffer_store_dwordx4 {vr(SIG,4)}, v{AB}, {sr(SWS,4)}, s{t1} offen sc1\nbuffer_store_dwordx4 {vr(SIG+4,4)}, v{AB}, {sr(SWS,4)}, s{t1} offen offset:64 sc1')
        e(f's_branch {L2}\n{L1}:\ns_cmp_eq_u32 s{S_KB}, 0\ns_cbranch_scc0 {L2}')
        e(f'buffer_store_dwordx4 {vr(MEAN,4)}, v{AB}, {sr(SWS,4)}, s{t0} offen sc1\nbuffer_store_dwordx4 {vr(MEAN+4,4)}, v{AB}, {sr(SWS,4)}, s{t0} offen offset:64 sc1')
        e(f'{L2}:\ns_mov_b64 exec, -1\n{L}:')
        e('s_waitcnt vmcnt(0)\ns_barrier')
        self.flag_write(F1)
        self.ts()
        e(f'v_lshrrev_b32 v9, 2, v{V_LANE}\nv_mul_u32_u24 v9, 3584, v9\nv_and_b32 v10, 3, v{V_LANE}\nv_lshrrev_b32 v11, 4, v{V_LANE}\nv_and_b32 v11, 2, v11')
        e(f'v_xor_b32 v10, v10, v11\nv_lshl_add_u32 v9, v10, 4, v9')
        e(f's_min_u32 s{t0}, s{S_RB}, 55\ns_lshl_b32 s{t0}, s{t0}, 6\ns_mul_i32 s{t1}, s{S_W}, {128*3584}\ns_add_u32 s{t0}, s{t0}, s{t1}')
        e(f's_lshl_b32 s{t1}, s{S_W}, 13\ns_add_u32 s{t1}, s{t1}, {L_WIN}')
        for i in range(8):
            e(f's_mov_b32 m0, s{t1}')
            e(f'buffer_load_dwordx4 v9, {sr(SWIN,4)}, s{t0} offen lds')
            if i < 7: e(f's_add_u32 s{t0}, s{t0}, {16*3584}\ns_add_u32 s{t1}, s{t1}, 1024')
        self.p5_ids(self.S_TB, self.S_FB)
        self.wsp_issue(0)
        e('s_waitcnt vmcnt(0)\ns_barrier')
        self.wsp_read(0, 8); self.wsp_issue(1)
        LB = e.label_name('nop1b')
        e(f's_cmp_ge_u32 s{S_RB}, 56\ns_cbranch_scc1 {LB}')
        A0, A1 = G+8, G+9
        e(f'v_lshrrev_b32 v8, 2, v{V_LANE}\nv_and_b32 v8, 3, v8\nv_lshl_add_u32 v8, v{V_Q}, 3, v8\nv_lshlrev_b32 v8, 6, v8')
        e(f'v_and_b32 v9, 1, v{V_Q}\nv_lshl_add_u32 v8, v9, 5, v8\nv_and_b32 v9, 3, v{V_LANE}\nv_lshl_add_u32 v8, v9, 3, v8')
        e(f'v_add_u32 v{A0}, {L_WIN}, v8\nv_xor_b32 v{A1}, 32, v8\nv_add_u32 v{A1}, {L_WIN}, v{A1}')
        for i in range(32): e(f'v_mov_b32 v{ACC+i}, 0')
        order = [(u, n) for u in range(16) for n in range(2)]
        def rdb(i):
            u, n = order[i]
            return [f'ds_read_b64_tr_b16 {vr(XF+4*(i%8),2)}, v{A0+n} offset:{u*2048}',
                    f'ds_read_b64_tr_b16 {vr(XF+4*(i%8)+2,2)}, v{A0+n} offset:{u*2048+256}', ('mark', f'b{i}')]
        def accb(c, n, half): return ACC + ((c*2 + n)*2 + half)*4
        for i in range(6): e(rdb(i))
        for i, (u, n) in enumerate(order):
            e(('wlg', f'b{i}'))
            for c in range(2):
                A = accb(c, n, u >> 3)
                e(f'v_mfma_f32_16x16x32_bf16 {vr(A,4)}, {vr(FD+8*(u&7)+4*c,4)}, {vr(XF+4*(i%8),4)}, {vr(A,4)}')
            if i + 6 < 32: e(rdb(i + 6))
        e(f's_lshl_b32 s{t0}, s{S_RB}, 15\ns_lshl_b32 s{t1}, s{S_KB}, 12\ns_add_u32 s{t0}, s{t0}, s{t1}\ns_lshl_b32 s{t1}, s{S_W}, 10\ns_add_u32 s{t0}, s{t0}, s{t1}')
        e(f's_add_u32 s{t0}, s{t0}, {WS_W2F}\ns_add_u32 s{t1}, s{t0}, 16384')
        for n in range(2):
            for c in range(2):
                for r in range(4):
                    lo, hi = accb(c, n, 0)+r, accb(c, n, 1)+r
                    e(f'v_{"sub" if r % 2 == 0 else "add"}_f32 v{lo}, v{lo}, v{hi}')
                for h in range(2):
                    e(f'v_cvt_pk_bf16_f32 v{XF+n*4+c*2+h}, v{accb(c,n,0)+2*h}, v{accb(c,n,0)+2*h+1}')
            e(f'buffer_store_dwordx4 {vr(XF+n*4,4)}, v{V_L16}, {sr(SWS,4)}, s{t0+n} offen sc1'); e.nvm -= 1
        e(f'{LB}:')
        self.wsp_read(1, 8)
        e('s_waitcnt vmcnt(0)\ns_barrier')
        self.flag_write(F1B)
        self.ts()


    def p2(self):
        e = self.e; t0, t1, t2, t3 = S_T0, S_T0+1, S_T0+2, S_T0+3
        BRE, BIM, BRE2, BIM2 = 64, 80, 96, 112
        GC, GS, GN = 128, 136, 144
        TC1, TS1, TC2, TS2 = 152, 160, 168, 176
        IDR, IDI = 184, 188
        XR, WT, SG, AF, AO, D0, D1, XD = 8, 16, 24, 192, 224, 232, 32, 48
        T = 192
        MF = 'v_mfma_f32_16x16x32_bf16'
        e(f's_lshl_b32 s{t0}, s{S_W}, 4\nv_add_u32 v{T}, s{t0}, v{V_J}\nv_cvt_f32_u32 v{T}, v{T}')
        e(f'v_lshlrev_b32 v{T+1}, 2, v{V_Q}\nv_cvt_f32_u32 v{T+1}, v{T+1}')
        e(f'v_mul_f32 v{T+2}, {f32(1/64)}, v{T}\nv_mul_f32 v{T+3}, v{T+2}, v{T+1}')
        for u in range(4):
            for i in range(4):
                ph, c, sn = T+4, T+5+2*(i&1), T+6+2*(i&1)
                e(f'v_fmamk_f32 v{ph}, v{T+2}, {f32(16*u+i)}, v{T+3}\nv_cos_f32 v{c}, v{ph}\nv_sin_f32 v{sn}, v{ph}')
                e(f'v_cvt_pk_bf16_f32 v{BRE+4*u+i}, v{c}, v{sn}\nv_cvt_pk_bf16_f32 v{BIM+4*u+i}, -v{sn}, v{c}')
                e(f'v_cvt_pk_bf16_f32 v{BRE2+4*u+i}, v{c}, -v{sn}\nv_cvt_pk_bf16_f32 v{BIM2+4*u+i}, v{sn}, v{c}')
        L = e.label_name('nny')
        e(f's_cmp_eq_u32 s2, 255\ns_cbranch_scc0 {L}')
        for i in range(16): e(f'v_mov_b32 v{BIM2+i}, 0')
        e(f'{L}:')
        e(f'v_cvt_f32_u32 v{T+10}, v{V_J}')
        for m in range(2):
            e(f'v_add_f32 v{T+2}, {f32(16.0*m)}, v{T+10}\nv_mul_f32 v{T+2}, {f32(1/32)}, v{T+2}\nv_mul_f32 v{T+3}, v{T+2}, v{T+1}')
            for i in range(4):
                for h in range(2):
                    ee = 2*i + h
                    e(f'v_fmamk_f32 v{T+4}, v{T+2}, {f32(16*(ee>>2)+(ee&3))}, v{T+3}\nv_cos_f32 v{T+5+h}, v{T+4}\nv_sin_f32 v{T+7+h}, v{T+4}')
                e(f'v_cvt_pk_bf16_f32 v{GC+4*m+i}, v{T+5}, v{T+6}\nv_cvt_pk_bf16_f32 v{GS+4*m+i}, v{T+7}, v{T+8}\nv_cvt_pk_bf16_f32 v{GN+4*m+i}, -v{T+7}, -v{T+8}')
        e(f'v_mul_f32 v{T+2}, {f32(1/2048)}, v{T}\nv_mul_f32 v{T+3}, v{T+2}, v{T+1}')
        for t in range(2):
            for r in range(4):
                e(f'v_fmamk_f32 v{T+4}, v{T+2}, {f32(16*t+r)}, v{T+3}\nv_cos_f32 v{TC1+4*t+r}, v{T+4}\nv_sin_f32 v{TS1+4*t+r}, v{T+4}')
        e(f'v_cvt_f32_u32 v{T+9}, s{t0}\nv_add_f32 v{T+9}, v{T+9}, v{T+1}')
        for t in range(2):
            e(f'v_add_f32 v{T+2}, {f32(16.0*t)}, v{T+10}\nv_mul_f32 v{T+2}, {f32(1/2048)}, v{T+2}\nv_mul_f32 v{T+3}, v{T+2}, v{T+9}')
            for r in range(4):
                e(f'v_fmamk_f32 v{T+4}, v{T+2}, {f32(r)}, v{T+3}\nv_cos_f32 v{TC2+4*t+r}, v{T+4}\nv_sin_f32 v{TS2+4*t+r}, v{T+4}')
        for i in range(8): e(f'v_mul_f32 v{TC2+i}, {f32(1/2048)}, v{TC2+i}\nv_mul_f32 v{TS2+i}, {f32(1/2048)}, v{TS2+i}')
        e(f'v_lshlrev_b32 v{T}, 2, v{V_Q}\nv_sub_u32 v{T}, v{V_J}, v{T}\nv_mov_b32 v{T+1}, 0x3f80\nv_mov_b32 v{T+2}, 0x3f800000')
        for i in range(4):
            e(f'v_cmp_eq_u32 vcc, {i}, v{T}\nv_cndmask_b32 v{IDR+i}, 0, v{T+1}, vcc\nv_cndmask_b32 v{IDI+i}, 0, v{T+2}, vcc')
        for i in range(16): e(f'v_mov_b32 v{D0+i}, 0\nv_mov_b32 v{XD+i}, 0')
        AP, AWr, AR, AOa, ASg, AEX, AOB = 248, 249, 251, 255, 5, 6, 7
        e(f's_lshr_b32 s{t1}, s2, 6\ns_lshl_b32 s{t2}, s{t1}, 3')
        e(f'v_and_b32 v{AP}, 7, v{V_LANE}\nv_lshrrev_b32 v{T}, 3, v{V_LANE}\nv_lshl_add_u32 v{AP}, v{T}, 5, v{AP}\nv_add_u32 v{AP}, s{t2}, v{AP}')
        e(f'v_lshlrev_b32 v{AP}, 7, v{AP}\nv_add_u32 v{AP}, {F1}, v{AP}')
        for h in range(2):
            e(f's_lshl_b32 s{t2}, s{S_W}, 3\ns_add_u32 s{t2}, s{t2}, {4*h}\nv_add_u32 v{T}, s{t2}, v{V_Q}')
            e(f'v_xor_b32 v{T+1}, v{T}, v{V_J}\nv_and_b32 v{T+1}, 15, v{T+1}\nv_lshlrev_b32 v{T+1}, 4, v{T+1}\nv_lshl_add_u32 v{AWr+h}, v{T}, 8, v{T+1}')
        for u in range(4):
            e(f'v_or_b32 v{T}, {4*u}, v{V_Q}\nv_xor_b32 v{T}, v{T}, v{V_J}\nv_lshlrev_b32 v{T}, 4, v{T}\nv_lshl_add_u32 v{AR+u}, v{V_J}, 8, v{T}')
        e(f's_lshl_b32 s{t2}, s{S_W}, 2\nv_or_b32 v{T}, s{t2}, v{V_Q}\nv_xor_b32 v{T}, v{T}, v{V_J}\nv_lshlrev_b32 v{T}, 4, v{T}\nv_lshl_add_u32 v{AOa}, v{V_J}, 8, v{T}')
        S_X, S_WT, S_SG, S_HT = 52, 53, 54, 55
        e(f's_lshl_b32 s{S_X}, s2, 13\ns_lshl_b32 s{t2}, s{S_W}, 11\ns_add_u32 s{S_X}, s{S_X}, s{t2}\ns_add_u32 s{S_WT}, s{S_X}, {WS_WT}\ns_add_u32 s{S_X}, s{S_X}, {WS_X1T}')
        e(f's_lshl_b32 s{S_SG}, s{t1}, 13\ns_lshl_b32 s{t2}, s{S_W}, 6\ns_add_u32 s{S_SG}, s{S_SG}, s{t2}\ns_add_u32 s{S_SG}, s{S_SG}, {WS_SIG}')
        e(f's_lshl_b32 s{S_HT}, s2, 13\ns_lshl_b32 s{t2}, s{S_W}, 10\ns_add_u32 s{S_HT}, s{S_HT}, s{t2}\ns_add_u32 s{S_HT}, s{S_HT}, {WS_HT}')
        L = e.label_name('np')
        e(f's_cmp_eq_u32 s{S_W}, 0\ns_cbranch_scc0 {L}')
        self.poll(AP)
        e(f'{L}:\ns_barrier')
        self.ts()
        e(f'buffer_load_dwordx4 {vr(XR,4)}, v{V_L16}, {sr(SWS,4)}, s{S_X} offen sc1')
        e(f'buffer_load_dwordx4 {vr(XR+4,4)}, v{V_L16}, {sr(SWS,4)}, s{S_X} offen offset:1024 sc1')
        e(('mark', 'x1'))
        e(f'buffer_load_dwordx4 {vr(WT,4)}, v{V_L16}, {sr(SWS,4)}, s{S_WT} offen sc1')
        e(f'buffer_load_dwordx4 {vr(WT+4,4)}, v{V_L16}, {sr(SWS,4)}, s{S_WT} offen offset:1024 sc1')
        e(('mark', 'wt'))
        e(f'v_lshlrev_b32 v{ASg}, 10, v{V_Q}\nv_lshl_add_u32 v{ASg}, v{V_J}, 2, v{ASg}\ns_add_u32 s{t2}, s{S_SG}, 4096')
        for t in range(2):
            for r in range(4):
                e(f'buffer_load_dword v{SG+4*t+r}, v{ASg}, {sr(SWS,4)}, s{S_SG if t == 0 else t2} offen offset:{256*r} sc1')
        e(('mark', 'sg'))
        e(f's_lshl_b32 s{t2}, s{S_W}, 10\nv_add_u32 v{AEX}, s{t2}, v{V_L16}')
        e(f's_lshl_b32 s{t2}, s{S_W}, 11\nv_lshlrev_b32 v{AOB}, 6, v{V_J}\nv_lshl_add_u32 v{AOB}, v{V_Q}, 3, v{AOB}\nv_add_u32 v{AOB}, s{t2}, v{AOB}')
        e(('wvm', 'x1'))
        e(f'ds_write_b128 v{AWr}, {vr(XR,4)} offset:{L_X1C}\nds_write_b128 v{AWr+1}, {vr(XR+4,4)} offset:{L_X1C}')
        e('s_waitcnt lgkmcnt(0)\ns_barrier')
        for u in range(4):
            for t in range(2):
                e(f'ds_read_b128 {vr(AF+(t*4+u)*4,4)}, v{AR+u} offset:{L_X1C+4096*t}'); e(('mark', f'a{t}{u}'))
        for t in range(2): e(f'ds_read_b128 {vr(AO+4*t,4)}, v{AOa} offset:{L_X1C+4096*t}')
        self.wsp_issue(2)
        dre = lambda base, t: base + 8*t
        dim = lambda base, t: base + 8*t + 4
        for u in range(4):
            for t in range(2):
                e(('wlg', f'a{t}{u}'))
                e(f'{MF} {vr(dre(D0,t),4)}, {vr(AF+(t*4+u)*4,4)}, {vr(BRE+4*u,4)}, {vr(dre(D0,t),4)}')
                e(f'{MF} {vr(dim(D0,t),4)}, {vr(AF+(t*4+u)*4,4)}, {vr(BIM+4*u,4)}, {vr(dim(D0,t),4)}')
        e('s_waitcnt lgkmcnt(0)')
        for t in range(2):
            e(f'{MF} {vr(dre(XD,t),4)}, {vr(AO+4*t,4)}, {vr(IDR,4)}, {vr(dre(XD,t),4)}')
            e(f'{MF} {vr(dim(XD,t),4)}, {vr(AO+4*t,4)}, {vr(IDI,4)}, {vr(dim(XD,t),4)}')
        def cmul(src, dst, c, s, conj):
            n1 = 'neg_lo:[1,0,0] neg_hi:[1,0,0]'
            for t in range(2):
                for h in range(0, 4, 2):
                    re, im, o_re, o_im = dre(src,t)+h, dim(src,t)+h, dre(dst,t)+h, dim(dst,t)+h
                    cc, ss = vr(c+4*t+h,2), vr(s+4*t+h,2)
                    e(f'v_pk_mul_f32 {vr(o_re,2)}, {vr(re,2)}, {cc}\nv_pk_mul_f32 {vr(o_im,2)}, {vr(im,2)}, {cc}')
                    e(f'v_pk_fma_f32 {vr(o_re,2)}, {vr(im,2)}, {ss}, {vr(o_re,2)} {n1 if conj else ""}')
                    e(f'v_pk_fma_f32 {vr(o_im,2)}, {vr(re,2)}, {ss}, {vr(o_im,2)} {"" if conj else n1}')
        FR, FI = AF, AF+4
        def pack_rows(src):
            for t in range(2):
                for h in range(2):
                    e(f'v_cvt_pk_bf16_f32 v{FR+2*t+h}, v{dre(src,t)+2*h}, v{dre(src,t)+2*h+1}')
                    e(f'v_cvt_pk_bf16_f32 v{FI+2*t+h}, v{dim(src,t)+2*h}, v{dim(src,t)+2*h+1}')
        cmul(D0, D1, TC1, TS1, False); pack_rows(D1)
        for m in range(2):
            e(f'{MF} {vr(dre(D0,m),4)}, {vr(GC+4*m,4)}, {vr(FR,4)}, 0\n{MF} {vr(dim(D0,m),4)}, {vr(GC+4*m,4)}, {vr(FI,4)}, 0')
        for m in range(2):
            e(f'{MF} {vr(dre(D0,m),4)}, {vr(GS+4*m,4)}, {vr(FI,4)}, {vr(dre(D0,m),4)}\n{MF} {vr(dim(D0,m),4)}, {vr(GN+4*m,4)}, {vr(FR,4)}, {vr(dim(D0,m),4)}')
        e(('wvm', 'wt'))
        for i in range(8): e(f'v_lshlrev_b32 v{XR+i}, 16, v{WT+i}\nv_and_b32 v{WT+i}, 0xffff0000, v{WT+i}')
        cmul(D0, D1, XR, WT, True); pack_rows(D1)
        for t in range(2):
            e(f'{MF} {vr(dre(D0,t),4)}, {vr(FR,4)}, {vr(GC+4*t,4)}, 0\n{MF} {vr(dim(D0,t),4)}, {vr(FI,4)}, {vr(GC+4*t,4)}, 0')
        for t in range(2):
            e(f'{MF} {vr(dre(D0,t),4)}, {vr(FI,4)}, {vr(GN+4*t,4)}, {vr(dre(D0,t),4)}\n{MF} {vr(dim(D0,t),4)}, {vr(FR,4)}, {vr(GS+4*t,4)}, {vr(dim(D0,t),4)}')
        cmul(D0, D1, TC2, TS2, True)
        for t in range(2):
            for r in range(4): e(f'v_cvt_pk_bf16_f32 v{AO+4*t+r}, v{dre(D1,t)+r}, v{dim(D1,t)+r}')
            e(f'ds_write_b128 v{AEX}, {vr(AO+4*t,4)} offset:{L_EX+4096*t}')
        e('s_waitcnt lgkmcnt(0)\ns_barrier')
        for u in range(4):
            for t in range(2):
                e(f'ds_read_b128 {vr(AF+(t*4+u)*4,4)}, v{V_L16} offset:{L_EX+4096*t+1024*u}'); e(('mark', f'a{t}{u}'))
        e(('wvm', 'sg'))
        for t in range(2):
            for h in range(0, 4, 2):
                e(f'v_pk_mul_f32 {vr(dre(XD,t)+h,2)}, {vr(dre(XD,t)+h,2)}, {vr(SG+4*t+h,2)}\nv_pk_mul_f32 {vr(dim(XD,t)+h,2)}, {vr(dim(XD,t)+h,2)}, {vr(SG+4*t+h,2)}')
        for u in range(4):
            for t in range(2):
                e(('wlg', f'a{t}{u}'))
                e(f'{MF} {vr(dre(XD,t),4)}, {vr(AF+(t*4+u)*4,4)}, {vr(BRE2+4*u,4)}, {vr(dre(XD,t),4)}')
                e(f'{MF} {vr(dim(XD,t),4)}, {vr(AF+(t*4+u)*4,4)}, {vr(BIM2+4*u,4)}, {vr(dim(XD,t),4)}')
        for t in range(2):
            for c in range(2):
                src = XD + 8*t + 4*c; o = D1 + (t*2+c)*2
                e(f'v_cvt_pk_bf16_f32 v{o}, v{src}, v{src+1}\nv_cvt_pk_bf16_f32 v{o+1}, v{src+2}, v{src+3}')
                e(f'ds_write_b64 v{AOB}, {vr(o,2)} offset:{L_OB+1024*c+32*t}')
        e(f's_lshl_b32 s{t2}, s{S_W}, 11\nv_add_u32 v{AOB}, s{t2}, v{V_L16}\ns_add_u32 s{t2}, s{S_HT}, 4096')
        e('s_waitcnt lgkmcnt(0)')
        e(f'ds_read_b128 {vr(D0,4)}, v{AOB} offset:{L_OB}\nds_read_b128 {vr(D0+4,4)}, v{AOB} offset:{L_OB+1024}')
        e(f's_waitcnt lgkmcnt(1)\nbuffer_store_dwordx4 {vr(D0,4)}, v{V_L16}, {sr(SWS,4)}, s{S_HT} offen sc1')
        e(f's_waitcnt lgkmcnt(0)\nbuffer_store_dwordx4 {vr(D0+4,4)}, v{V_L16}, {sr(SWS,4)}, s{t2} offen sc1')
        self.wsp_read(2, 8)
        e('s_waitcnt vmcnt(0)\ns_barrier')
        self.flag_write(F2)
        self.ts()


    S_RB4, S_J4, S_M4 = 66, 67, 68
    GA, GB = -2*math.sqrt(2/math.pi)*math.log2(math.e), -2*math.sqrt(2/math.pi)*math.log2(math.e)*0.044715
    def gelu4(self, acc, scale, scale_pair, T):
        out = []
        KA, KB = self.V_KA, self.V_KB
        for h in (0, 2):
            a = vr(acc+h, 2); t = vr(T+h, 2)
            if scale_pair: out.append(f'v_pk_mul_f32 {a}, {a}, {vr(scale+h,2)}')
            else: out.append(f'v_pk_mul_f32 {a}, {a}, {vr(scale,2)} op_sel_hi:[1,0]')
        for h in (0, 2): out.append(f'v_pk_mul_f32 {vr(T+h,2)}, {vr(acc+h,2)}, {vr(acc+h,2)}')
        for h in (0, 2): out.append(f'v_pk_fma_f32 {vr(T+h,2)}, {vr(T+h,2)}, {vr(KB,2)}, {vr(KA,2)} op_sel_hi:[1,0,0]')
        for h in (0, 2): out.append(f'v_pk_mul_f32 {vr(T+h,2)}, {vr(T+h,2)}, {vr(acc+h,2)}')
        for i in range(4): out.append(f'v_exp_f32 v{T+i}, v{T+i}')
        for h in (0, 2): out.append(f'v_pk_add_f32 {vr(T+h,2)}, {vr(T+h,2)}, 1.0 op_sel_hi:[1,0]')
        for i in range(4): out.append(f'v_rcp_f32 v{T+i}, v{T+i}')
        for h in (0, 2): out.append(f'v_pk_mul_f32 {vr(acc+h,2)}, {vr(acc+h,2)}, {vr(T+h,2)}')
        return out

    def p4(self):
        e = self.e; t0, t1, t2, t3 = S_T0, S_T0+1, S_T0+2, S_T0+3
        RB4, J4, M4 = self.S_RB4, self.S_J4, self.S_M4
        e(f's_and_b32 s{RB4}, s2, 7\ns_lshl_b32 s{RB4}, s{RB4}, 1\ns_bfe_u32 s{t0}, s2, 0x10003\ns_or_b32 s{RB4}, s{RB4}, s{t0}')
        e(f's_lshr_b32 s{J4}, s2, 4\ns_lshr_b32 s{M4}, s{J4}, 1\ns_mul_i32 s{M4}, s{M4}, 7')
        self.wsp_issue(3)
        S_P4 = 56
        e(f's_and_b32 s{S_P4}, s{J4}, 1\ns_lshl_b32 s{S_P4}, s{S_P4}, 2')
        e(f'v_lshrrev_b32 v8, 2, v{V_LANE}\nv_min_u32 v8, 6, v8')
        e(f's_add_u32 s{t0}, s{S_P4}, 56\ns_mul_i32 s{t1}, s{S_P4}, 14\ns_sub_u32 s{t1}, 56, s{t1}\ns_sub_u32 s{t2}, s{S_P4}, 4')
        e(f'v_mov_b32 v9, s{t2}\nv_mov_b32 v10, s{t1}\nv_cmp_eq_u32 vcc, 3, v8\nv_cndmask_b32 v9, v9, v10, vcc')
        e(f'v_mov_b32 v10, s{t0}\nv_cmp_gt_u32 vcc, 3, v8\nv_cndmask_b32 v9, v9, v10, vcc')
        e(f'v_add3_u32 v8, v8, v9, s{M4}\nv_lshrrev_b32 v8, 1, v8')
        e(f'v_and_b32 v9, 7, v8\nv_lshrrev_b32 v8, 3, v8\nv_lshl_add_u32 v9, v8, 5, v9\nv_and_b32 v8, 3, v{V_LANE}\nv_lshl_add_u32 v9, v8, 3, v9')
        e(f'v_lshlrev_b32 v9, 7, v9\nv_add_u32 v9, {F1B}, v9')
        self.poll(9)
        self.wsp_read(3, 8)
        e('s_barrier')
        offs = [t0, t0, t0, t1, t2, t2, t2]
        e(f's_add_u32 s{t0}, s{S_P4}, 56\ns_mul_i32 s{t1}, s{S_P4}, 14\ns_sub_u32 s{t1}, 56, s{t1}\ns_sub_u32 s{t2}, s{S_P4}, 4')
        for n in range(7):
            e(f's_add_u32 s{t3}, s{M4}, s{offs[n]}\ns_add_u32 s{t3}, s{t3}, {n}\ns_lshl_b32 s{t3}, s{t3}, 2\ns_add_u32 s{t3}, s{t3}, s{S_W}\ns_lshl_b32 s{t3}, s{t3}, 12\ns_add_u32 s{t3}, s{t3}, {WS_W2F}')
            e(f's_lshl_b32 s57, s{S_W}, 12\ns_add_u32 m0, s57, {L_W2+n*16384}')
            for i in range(4):
                e(f'buffer_load_dwordx4 v{V_L16}, {sr(SWS,4)}, s{t3} offen offset:{1024*i} sc1 lds')
        AG, AWr, AR, AB2 = 8, 9, 10, 12
        e(f's_lshl_b32 s{t0}, s{S_W}, 15\ns_lshl_b32 s{t1}, s{RB4}, 8\ns_add_u32 s{t0}, s{t0}, s{t1}')
        e(f'v_lshlrev_b32 v{AG}, 13, v{V_Q}\nv_lshl_add_u32 v{AG}, v{V_J}, 4, v{AG}\nv_add_u32 v{AG}, s{t0}, v{AG}')
        e(f's_and_b32 s{t0}, s{S_W}, 1\nv_lshl_add_u32 v16, v{V_Q}, 1, s{t0}\nv_lshlrev_b32 v16, 1, v16\nv_xor_b32 v16, v16, v{V_J}\nv_lshlrev_b32 v16, 4, v16')
        e(f's_lshl_b32 s{t0}, s{S_W}, 10\ns_add_u32 s{t0}, s{t0}, {L_RING}\nv_lshl_add_u32 v{AWr}, v{V_Q}, 8, v16\nv_add_u32 v{AWr}, s{t0}, v{AWr}')
        e(f'v_bfe_u32 v16, v{V_LANE}, 2, 2\nv_and_b32 v17, 1, v{V_Q}\nv_lshl_add_u32 v17, v16, 1, v17\ns_lshl_b32 s{t0}, s{S_W}, 1\nv_xor_b32 v17, s{t0}, v17')
        e(f'v_lshl_add_u32 v16, v{V_Q}, 2, v16\nv_lshlrev_b32 v16, 8, v16\nv_lshl_add_u32 v16, v17, 5, v16\nv_and_b32 v17, 3, v{V_LANE}\nv_lshl_add_u32 v16, v17, 3, v16')
        e(f'v_add_u32 v{AR}, {L_RING}, v16\nv_xor_b32 v16, 32, v16\nv_add_u32 v{AR+1}, {L_RING}, v16')
        e(f'v_add_u32 v{AB2}, 0x10000, v{V_L16}')
        self.V_KA, self.V_KB = 14, 30
        e(f'v_mov_b32 v{self.V_KA}, {f32(self.GA)}\nv_mov_b32 v{self.V_KB}, {f32(self.GB)}')
        for i in range(56, 128): e(f'v_mov_b32 v{i}, 0')
        e(f'v_lshrrev_b32 v16, 2, v{V_LANE}\nv_lshlrev_b32 v16, 4, v16\nv_and_b32 v17, 3, v{V_LANE}\ns_lshl_b32 s{t0}, s{S_W}, 2\nv_add3_u32 v16, v16, v17, s{t0}')
        e(f'v_lshlrev_b32 v16, 7, v16\nv_add_u32 v16, {F2}, v16')
        self.ts()
        self.poll(16)
        self.ts()
        AF = 128
        for sg in range(8):
            for v in range(2):
                for c in range(2):
                    e(f's_mov_b32 s{t0}, {WS_HT + (32*sg+16*v)*8192 + c*4096}')
                    e(f'buffer_load_dwordx4 {vr(AF+sg*16+(v*2+c)*4,4)}, v{AG}, {sr(SWS,4)}, s{t0} offen sc1')
            e(('mark', f'h{sg}'))
        LP = e.label_name('par1'); LJ = e.label_name('p4join')
        e(f's_cmp_lg_u32 s{S_P4}, 0\ns_cbranch_scc1 {LP}')
        nv, nt = e.nvm, self.nts
        self.p4_body(0); e(f's_branch {LJ}\n{LP}:')
        e.nvm = nv; self.nts = nt; self.names = self.names[:nt]
        self.p4_body(1); e(f'{LJ}:')
        self.p4_h()

    def p4_body(self, par):
        e = self.e; t0, t1, t2, t3 = S_T0, S_T0+1, S_T0+2, S_T0+3
        RB4, J4, M4 = self.S_RB4, self.S_J4, self.S_M4
        MF = 'v_mfma_f32_16x16x32_bf16'
        AG, AWr, AR, AB2 = 8, 9, 10, 12
        AF, ZA, Z1, SQ, DG, BF, T = 128, 64, 96, 112, 56, 32, 16
        nz2, nz1 = 4 - par, 3 + par
        af = lambda u, tau: AF + (u*2 + tau)*4
        za = lambda n, tau: ZA + (n*2 + tau)*4
        def bread(dst, slot, u):
            return (f'ds_read_b128 {vr(dst,4)}, v{V_L16} offset:{slot*16384+u*1024}' if slot < 4 else
                    f'ds_read_b128 {vr(dst,4)}, v{AB2} offset:{(slot-4)*16384+u*1024}')
        cnt = [0]
        def mfmas(sg):
            out = []
            items = [(2*sg+v, n) for v in range(2) for n in range(nz2)]
            ids = []
            for (u, n) in items:
                ids.append(cnt[0]); cnt[0] += 1
            pre = 4
            for i in range(min(pre, len(items))):
                out += [bread(BF+4*(ids[i] % 6), items[i][1], items[i][0]), ('mark', f'bf{ids[i]}')]
            for i, (u, n) in enumerate(items):
                if n == 0:
                    for tau in range(2): out.append(f'{MF} {vr(DG+4*tau,4)}, {vr(af(u,tau),4)}, {vr(af(u,tau),4)}, {vr(DG+4*tau,4)}')
                out.append(('wlg', f'bf{ids[i]}'))
                for tau in range(2): out.append(f'{MF} {vr(za(n,tau),4)}, {vr(af(u,tau),4)}, {vr(BF+4*(ids[i]%6),4)}, {vr(za(n,tau),4)}')
                if i + pre < len(items):
                    out += [bread(BF+4*(ids[i+pre] % 6), items[i+pre][1], items[i+pre][0]), ('mark', f'bf{ids[i+pre]}')]
            return out
        for sg in range(8):
            e(('wvm', f'h{sg}'))
            for v in range(2):
                for c in range(2):
                    e(f'ds_write_b128 v{AWr}, {vr(AF+sg*16+(v*2+c)*4,4)} offset:{(sg&1)*16384+(v*32+c*16)*256}')
            e('s_waitcnt lgkmcnt(0)\ns_barrier')
            for v in range(2):
                for tau in range(2):
                    for c in range(2):
                        e(f'ds_read_b64_tr_b16 {vr(af(2*sg+v,tau)+2*c,2)}, v{AR+tau} offset:{(sg&1)*16384+(v*32+c*16)*256}')
            e('s_waitcnt lgkmcnt(0)')
            e(mfmas(sg))
        L = e.label_name('nep')
        e(f's_or_b32 s{t0}, s2, s{S_W}\ns_cmp_eq_u32 s{t0}, 0\ns_cbranch_scc0 {L}')
        e(f'v_mov_b32 v6, s{S_TAG}\nv_mov_b32 v7, 0\ns_mov_b64 exec, 1\nbuffer_store_dword v6, v7, {sr(SWS,4)}, 0 offen offset:{WS_EPOCH} sc1'); e.nvm -= 1
        e(f's_mov_b64 exec, -1\n{L}:')
        ASM, RL = 13, 28
        e(f's_lshl_b32 s{t0}, s{S_W}, 10\ns_add_u32 s{t0}, s{t0}, {L_SM}\nv_lshl_add_u32 v{ASM}, v{V_Q}, 4, s{t0}')
        for r in range(4):
            m = (1 << r) | (1 << (20 + r)) | (1 << (40 + r)) | (1 << (60 + r))
            e(f's_mov_b32 s{t2}, {m & 0xffffffff:#x}\ns_mov_b32 s{t3}, {m >> 32:#x}\ns_mov_b64 exec, {sr(t2,2)}')
            for tau in range(2): e(f'ds_write_b32 v{ASM}, v{DG+4*tau+r} offset:{64*tau+4*r}')
        e('s_mov_b64 exec, -1')
        e(f'v_lshl_add_u32 v{T}, v{V_J}, 2, s{t0}\ns_waitcnt lgkmcnt(0)')
        for tau in range(2):
            e(f'ds_read_b128 {vr(DG+4*tau,4)}, v{ASM} offset:{64*tau}\nds_read_b32 v{RL-2+2*tau}, v{T} offset:{64*tau}')
        e('s_waitcnt lgkmcnt(0)')
        RLt = [RL-2, RL]
        for rg in [DG+i for i in range(8)] + RLt:
            e(f'v_fmaak_f32 v{rg}, {f32(1/512)}, v{rg}, {f32(1e-5)}' if False else f'v_mul_f32 v{rg}, {f32(1/512)}, v{rg}\nv_add_f32 v{rg}, {f32(1e-5)}, v{rg}')
        for rg in [DG+i for i in range(8)] + RLt: e(f'v_rsq_f32 v{rg}, v{rg}')
        for n in range(nz2):
            for tau in range(2):
                e(self.gelu4(za(n,tau), DG+4*tau, True, T))
                for h in (0, 2):
                    a = vr(za(n,tau)+h, 2); sS = vr(SQ+4*tau+h, 2); sQ = vr(SQ+8+4*tau+h, 2)
                    e(f'v_pk_add_f32 {sS}, {sS}, {a}\nv_pk_fma_f32 {sQ}, {a}, {a}, {sQ}')
        for sh in (8, 4, 2, 1):
            for i in range(16): e(f'v_add_f32_dpp v{SQ+i}, v{SQ+i}, v{SQ+i} row_ror:{sh} row_mask:0xf bank_mask:0xf')
        e(f's_mov_b32 s{t2}, 0x00010001\ns_mov_b32 s{t3}, 0x00010001\ns_mov_b64 exec, {sr(t2,2)}')
        for kind in range(2):
            for tau in range(2): e(f'ds_write_b128 v{ASM}, {vr(SQ+8*kind+4*tau,4)} offset:{128+128*kind+64*tau}')
        e('s_mov_b64 exec, -1')
        e(f'v_and_b32 v{T}, 31, v{V_LANE}\nv_lshl_add_u32 v{T+1}, v{T}, 2, s{t0}\ns_waitcnt lgkmcnt(0)')
        e(f'ds_read_b32 v{T+4}, v{T+1} offset:128\nds_read_b32 v{T+6}, v{T+1} offset:256')
        e(f'v_mov_b32 v{T+5}, s{S_TAG}\nv_mov_b32 v{T+7}, s{S_TAG}\nv_lshlrev_b32 v{T}, 4, v{T}')
        S_ST = 57
        e(f's_lshl_b32 s{S_ST}, s{RB4}, 15\ns_lshl_b32 s{t1}, s{S_W}, 9\ns_add_u32 s{S_ST}, s{S_ST}, s{t1}\ns_add_u32 s{S_ST}, s{S_ST}, {WS_STAT}')
        e(f's_lshl_b32 s{t1}, s{J4}, 11\ns_add_u32 s{t1}, s{t1}, s{S_ST}')
        e(f's_waitcnt lgkmcnt(0)\ns_mov_b32 exec_hi, 0\nbuffer_store_dwordx4 {vr(T+4,4)}, v{T}, {sr(SWS,4)}, s{t1} offen sc1\ns_mov_b32 exec_hi, -1')
        self.ts()
        AST = 13
        e(f'v_lshrrev_b32 v{T+1}, 5, v{V_LANE}\nv_lshl_add_u32 v{AST}, v{T+1}, 11, v{T}')
        e(f's_lshl_b32 s{t0}, s{RB4}, 3\ns_lshl_b32 s{t1}, s{S_W}, 1\ns_add_u32 s{t0}, s{t0}, s{t1}\ns_mul_i32 s{t0}, s{t0}, 56\ns_add_u32 s{t0}, s{t0}, s{M4}')
        e(f's_add_u32 s{t0}, s{t0}, {3*par}\ns_lshl_b32 s{t0}, s{t0}, 9\ns_add_u32 s{t0}, s{t0}, {WS_Z1F}\ns_add_u32 s{t1}, s{t0}, {56*512}')
        e(f'v_lshlrev_b32 v{AG}, 3, v{V_LANE}')
        for n in range(nz1):
            slot = nz2 + n
            for u in range(4): e(bread(BF+4*(u % 6), slot, u)); e(('mark', f'c{u}'))
            for u in range(16):
                e(('wlg', f'c{u}'))
                for tau in range(2):
                    acc = vr(Z1+4*tau, 4)
                    e(f'{MF} {acc}, {vr(BF+4*(u%6),4)}, {vr(af(u,tau),4)}, {acc if u else 0}')
                if u + 4 < 16: e(bread(BF+4*((u+4) % 6), slot, u+4)); e(('mark', f'c{u+4}'))
            for tau in range(2):
                e(self.gelu4(Z1+4*tau, RLt[tau], False, T))
                e(f'v_cvt_pk_bf16_f32 v{Z1+8+2*tau}, v{Z1+4*tau}, v{Z1+4*tau+1}\nv_cvt_pk_bf16_f32 v{Z1+9+2*tau}, v{Z1+4*tau+2}, v{Z1+4*tau+3}')
                e(f'buffer_store_dwordx2 {vr(Z1+8+2*tau,2)}, v{AG}, {sr(SWS,4)}, s{t0+tau} offen offset:{512*n} sc1')
        self.ts()
        GR = BF
        L = e.label_name('sp'); Dn = e.label_name('spd')
        e(f's_mov_b32 s{t0}, 0\n{L}:')
        for i in range(8):
            e(f's_add_u32 s{t1}, s{S_ST}, {i*4096}\nbuffer_load_dwordx4 {vr(GR+4*i,4)}, v{AST}, {sr(SWS,4)}, s{t1} offen sc1')
        e(f's_add_u32 s{t0}, s{t0}, 1\ns_cmp_ge_u32 s{t0}, {SPIN_MAX}\ns_cbranch_scc1 {Dn}\ns_waitcnt vmcnt(0)')
        e(f'v_xor_b32 v{T}, s{S_TAG}, v{GR+1}')
        for i in range(8):
            for o in (1, 3):
                if (i, o) != (0, 1): e(f'v_xor_b32 v{T+1}, s{S_TAG}, v{GR+4*i+o}\nv_or_b32 v{T}, v{T}, v{T+1}')
        e(f'v_cmp_ne_u32 vcc, 0, v{T}\ns_cbranch_vccnz {L}\n{Dn}:\ns_waitcnt vmcnt(0)')
        self.ts()
        for i in range(1, 8): e(f'v_add_f32 v{GR}, v{GR}, v{GR+4*i}\nv_add_f32 v{GR+2}, v{GR+2}, v{GR+4*i+2}')
        e(f'v_mov_b32 v{GR+1}, v{GR}\nv_mov_b32 v{GR+3}, v{GR+2}')
        e(f'v_permlane32_swap_b32 v{GR}, v{GR+1}\nv_permlane32_swap_b32 v{GR+2}, v{GR+3}')
        e(f'v_add_f32 v{GR}, v{GR}, v{GR+1}\nv_add_f32 v{GR+2}, v{GR+2}, v{GR+3}')
        e(f'v_mul_f32 v{GR}, {f32(1/896)}, v{GR}\nv_mul_f32 v{GR+2}, {f32(1/896)}, v{GR+2}')
        e(f'v_fma_f32 v{GR+2}, -v{GR}, v{GR}, v{GR+2}\nv_max_f32 v{GR+2}, 0, v{GR+2}\nv_add_f32 v{GR+2}, {f32(1e-5)}, v{GR+2}\nv_rsq_f32 v{GR+2}, v{GR+2}')
        e(f'v_mul_f32 v{GR}, -v{GR}, v{GR+2}')
        e(f's_lshl_b32 s{t0}, s{S_W}, 10\ns_add_u32 s{t0}, s{t0}, {L_SM}\nv_and_b32 v{T}, 31, v{V_LANE}\nv_lshl_add_u32 v{T}, v{T}, 2, s{t0}\nv_lshl_add_u32 v{T+1}, v{V_Q}, 4, s{t0}')
        e(f'ds_write_b32 v{T}, v{GR} offset:384\nds_write_b32 v{T}, v{GR+2} offset:512\ns_waitcnt lgkmcnt(0)')
        for kind in range(2):
            for tau in range(2): e(f'ds_read_b128 {vr(SQ+8*kind+4*tau,4)}, v{T+1} offset:{384+128*kind+64*tau}')
        e(f's_add_u32 s{t0}, s{M4}, {4*par}\ns_lshl_b32 s{t0}, s{t0}, 6\ns_lshl_b32 s{t1}, s{RB4}, 2\ns_add_u32 s{t0}, s{t0}, s{t1}\ns_add_u32 s{t0}, s{t0}, s{S_W}')
        e(f's_lshl_b32 s{t0}, s{t0}, 10\ns_add_u32 s{t0}, s{t0}, {WS_Z2F}\ns_waitcnt lgkmcnt(0)')
        for n in range(nz2):
            for tau in range(2):
                for h in (0, 2):
                    a = vr(za(n,tau)+h, 2)
                    e(f'v_pk_fma_f32 {a}, {a}, {vr(SQ+8+4*tau+h,2)}, {vr(SQ+4*tau+h,2)}')
                    e(f'v_cvt_pk_bf16_f32 v{BF+4*n+2*tau+h//2}, v{za(n,tau)+h}, v{za(n,tau)+h+1}')
            e(f'buffer_store_dwordx4 {vr(BF+4*n,4)}, v{V_L16}, {sr(SWS,4)}, s{t0} offen sc1')
            if n + 1 < nz2: e(f's_add_u32 s{t0}, s{t0}, 65536')
        e('s_waitcnt vmcnt(0)\ns_barrier')

    def p4_h(self):
        e = self.e; t0, t1, t2, t3 = S_T0, S_T0+1, S_T0+2, S_T0+3
        RB4, J4 = self.S_RB4, self.S_J4
        MF = 'v_mfma_f32_16x16x32_bf16'
        self.flag_write(F4)
        self.ts()
        self.wout_issue()
        AF = 128; af = lambda u, tau: AF + (u*2 + tau)*4
        MN, DF, M, PH, ACC, FR = 8, 10, 12, 16, 96, 112
        st = [[32, 40], [48, 56], [64, 72], [80, 88]]
        e(f's_lshl_b32 s{t0}, s{RB4}, 2\ns_add_u32 s{t0}, s{t0}, s{S_W}\ns_lshl_b32 s{t0}, s{t0}, 2\ns_add_u32 s{t0}, s{t0}, {WS_MEAN}\ns_add_u32 s{t1}, s{t0}, 4096')
        e(f'v_lshlrev_b32 v{PH}, 8, v{V_J}')
        for tau in range(2): e(f'buffer_load_dword v{MN+tau}, v{PH}, {sr(SWS,4)}, s{t0+tau} offen sc1')
        e(('mark', 'mn'))
        P = {}
        for n in range(2):
            P[n] = [32+32*n, 48+32*n]
        e(f's_lshl_b32 s{t0}, s{J4}, 5\nv_lshrrev_b32 v{PH}, 2, v{V_J}\nv_lshlrev_b32 v{PH}, 3, v{PH}\nv_and_b32 v{PH+1}, 3, v{V_J}\nv_add3_u32 v{PH}, v{PH}, v{PH+1}, s{t0}')
        e(f'v_lshl_add_u32 v{PH+2}, v{V_Q}, 2, 1\nv_cvt_f32_u32 v{PH+2}, v{PH+2}')
        for n in range(2):
            e(f'v_add_u32 v{PH+1}, {4*n}, v{PH}\nv_cvt_f32_u32 v{DF+n}, v{PH+1}\nv_mul_f32 v{DF+n}, {f32(1/512)}, v{DF+n}')
            e(f'v_mul_f32 v{M+2*n}, {f32(16.0)}, v{DF+n}\nv_mul_f32 v{PH+3}, v{PH+2}, v{DF+n}')
            for u in range(2):
                for r in range(4):
                    dst = P[n][u]
                    e(f'v_fmamk_f32 v{PH+4}, v{DF+n}, {f32(16*u+r)}, v{PH+3}\nv_cos_f32 v{dst+r}, v{PH+4}\nv_sin_f32 v{dst+4+r}, v{PH+4}')
            e(f'v_cos_f32 v{M+2*n}, v{M+2*n}')
            for u in range(2):
                for r in range(4):
                    dst = P[n][u]
                    e(f'v_mul_f32 v{dst+r}, {f32(1/16)}, v{dst+r}\nv_mul_f32 v{dst+4+r}, {f32(-1/16)}, v{dst+4+r}')
            e(f'v_add_f32 v{M+2*n}, v{M+2*n}, v{M+2*n}')
        e(f'v_mov_b32 v{PH+5}, 1.0\nv_mov_b32 v{PH+6}, {f32(1/math.sqrt(2))}\nv_cmp_eq_u32 vcc, 3, v{V_Q}\nv_cndmask_b32 v{PH+5}, v{PH+5}, v{PH+6}, vcc')
        for u in range(16):
            for n in range(2):
                if u >= 2:
                    prev, cur = P[n]
                    for i in range(0, 8, 2):
                        e(f'v_pk_fma_f32 {vr(prev+i,2)}, {vr(cur+i,2)}, {vr(M+2*n,2)}, {vr(prev+i,2)} op_sel_hi:[1,0,1] neg_lo:[0,0,1] neg_hi:[0,0,1]')
                    P[n] = [cur, prev]
                src = P[n][0] if u == 0 else P[n][1]
                if u == 15: e(f'v_mul_f32 v{src+3}, v{src+3}, v{PH+5}')
                fr = FR + ((u*2+n) % 4)*4
                for i in range(4): e(f'v_cvt_pk_bf16_f32 v{fr+i}, v{src+2*i}, v{src+2*i+1}')
                for tau in range(2):
                    acc = vr(ACC+(tau*2+n)*4, 4)
                    e(f'{MF} {acc}, {vr(fr,4)}, {vr(af(u,tau),4)}, {acc if u else 0}')
        e(('wvm', 'mn'))
        e(f's_lshl_b32 s{t0}, s{RB4}, 3\ns_lshl_b32 s{t1}, s{S_W}, 1\ns_add_u32 s{t0}, s{t0}, s{t1}\ns_lshl_b32 s{t0}, s{t0}, 4\ns_add_u32 s{t0}, s{t0}, s{J4}')
        e(f's_lshl_b32 s{t0}, s{t0}, 10\ns_add_u32 s{t0}, s{t0}, {WS_HF}\ns_add_u32 s{t1}, s{t0}, 16384')
        for tau in range(2):
            for i in range(8): e(f'v_add_f32 v{ACC+8*tau+i}, v{ACC+8*tau+i}, v{MN+tau}')
            for i in range(4): e(f'v_cvt_pk_bf16_f32 v{FR+4*tau+i}, v{ACC+8*tau+2*i}, v{ACC+8*tau+2*i+1}')
            e(f'buffer_store_dwordx4 {vr(FR+4*tau,4)}, v{V_L16}, {sr(SWS,4)}, s{t0+tau} offen sc1')
        e('s_waitcnt vmcnt(0)\ns_barrier')
        self.flag_write(FH)
        self.ts()

    S_TB6, S_DB = 58, 59
    def wout_issue(self):
        e = self.e; t0, t1 = S_T0, S_T0+1
        e(f's_and_b32 s{self.S_TB6}, s2, 31\ns_lshr_b32 s{self.S_DB}, s2, 5')
        e(f'v_lshrrev_b32 v16, 3, v{V_LANE}\nv_and_b32 v17, 7, v{V_LANE}\nv_and_b32 v18, 6, v16\nv_xor_b32 v17, v17, v18\nv_lshlrev_b32 v16, 10, v16\nv_lshl_add_u32 v16, v17, 4, v16')
        e(f's_mul_i32 s{t0}, s{S_W}, {224*1024}\ns_lshl_b32 s{t1}, s{self.S_DB}, 7\ns_add_u32 s{t0}, s{t0}, s{t1}\ns_mul_i32 s{t1}, s{S_W}, {224*128}')
        for i in range(28):
            e(f's_mov_b32 m0, s{t1}')
            e(f'buffer_load_dwordx4 v16, {sr(SWOUT,4)}, s{t0} offen lds')
            if i < 27: e(f's_add_u32 s{t0}, s{t0}, 8192\ns_add_u32 s{t1}, s{t1}, 1024')


    def p5(self):
        e = self.e; t0, t1, t2, t3 = S_T0, S_T0+1, S_T0+2, S_T0+3
        TB, FB = self.S_TB, self.S_FB
        MF = 'v_mfma_f32_16x16x32_bf16'
        RD = 16; PRE = 12
        RING, AC, RR, Z1, PK, BI, T = 64, 32, 128, 144, 160, 8, 16
        AWr, ARd, A8 = 10, 11, 12
        S_Z, S_P = 52, 53
        e(f'v_lshrrev_b32 v{T}, 1, v{V_LANE}\ns_lshl_b32 s{t0}, s{S_W}, 2\nv_add_u32 v{T}, s{t0}, v{T}\ns_lshr_b32 s{t0}, s{TB}, 1\nv_mov_b32 v{T+1}, s{t0}')
        e(f'v_cmp_gt_u32 vcc, 8, v{V_LANE}\nv_cndmask_b32 v{T}, v{T+1}, v{T}, vcc')
        e(f'v_lshrrev_b32 v{T+1}, 1, v{T}\nv_and_b32 v{T}, 1, v{T}\nv_lshl_add_u32 v{T}, v{T}, 3, v{T+1}')
        e(f'v_and_b32 v{T+1}, 1, v{V_LANE}\ns_lshl_b32 s{t0}, s{FB}, 1\nv_add_u32 v{T+1}, s{t0}, v{T+1}\nv_lshl_add_u32 v{T}, v{T+1}, 4, v{T}')
        e(f'v_lshlrev_b32 v{T}, 7, v{T}\nv_add_u32 v{T}, {F4}, v{T}')
        e(f's_lshl_b32 s{t0}, s{TB}, 7\ns_lshl_b32 s{t1}, s{S_W}, 5\ns_add_u32 s{t0}, s{t0}, s{t1}\nv_lshlrev_b32 v{T+1}, 1, v{V_J}')
        e(f'buffer_load_ushort v{BI}, v{T+1}, {sr(SBSP,4)}, s{t0} offen')
        e(f's_lshl_b32 s{t0}, s{S_W}, 12\ns_add_u32 s{t0}, s{t0}, {L_RING}\nv_add_u32 v{AWr}, s{t0}, v{V_L16}')
        e(f's_lshl_b32 s{t0}, s{S_W}, 10\ns_add_u32 s{t0}, s{t0}, {L_RING}\nv_add_u32 v{ARd}, s{t0}, v{V_L16}\nv_lshlrev_b32 v{A8}, 3, v{V_LANE}')
        e(f's_mul_i32 s{S_Z}, s{FB}, {7*65536}\ns_lshl_b32 s{t0}, s{S_W}, 14\ns_add_u32 s{S_Z}, s{S_Z}, s{t0}\ns_add_u32 s{S_Z}, s{S_Z}, {WS_Z2F}')
        e(f's_lshl_b32 s{S_P}, s{TB}, 3\ns_add_u32 s{S_P}, s{S_P}, s{FB}\ns_lshl_b32 s{S_P}, s{S_P}, 2\ns_add_u32 s{S_P}, s{S_P}, s{S_W}\ns_mul_i32 s{S_P}, s{S_P}, 3584\ns_add_u32 s{S_P}, s{S_P}, {WS_PF}')
        e(f's_lshl_b32 s{t2}, s{TB}, 2\ns_add_u32 s{t2}, s{t2}, s{S_W}\ns_mul_i32 s{t2}, s{t2}, 56\ns_mul_i32 s{t1}, s{FB}, 7\ns_add_u32 s{t2}, s{t2}, s{t1}\ns_lshl_b32 s{t2}, s{t2}, 9\ns_add_u32 s{t2}, s{t2}, {WS_Z1F}')
        self.poll(T)
        self.ts('p5 poll')
        e(f'v_lshlrev_b32 v{BI}, 16, v{BI}')
        def load(i):
            n, ks = divmod(i, 16)
            out = []
            if ks % 4 == 0: out.append(f's_add_u32 s{t3}, s{S_Z}, {n*65536 + ks*1024}')
            out += [f'buffer_load_dwordx4 {vr(RING+4*(i%RD),4)}, v{V_L16}, {sr(SWS,4)}, s{t3} offen offset:{(ks%4)*1024} sc1', ('mark', f'z{i}')]
            return out
        for i in range(PRE): e(load(i))
        for n in range(7): e(f'buffer_load_dwordx2 {vr(Z1+2*n,2)}, v{A8}, {sr(SWS,4)}, s{t2} offen offset:{512*n} sc1')
        def red_write(m): return [f'ds_write_b128 v{AWr}, {vr(AC+16*(m&1)+4*tau,4)} offset:{(m&1)*16384+tau*1024}' for tau in range(4)]
        def red_read(m): return ['s_waitcnt lgkmcnt(0)', 's_barrier'] + [f'ds_read_b128 {vr(RR+4*w2,4)}, v{ARd} offset:{(m&1)*16384+w2*4096}' for w2 in range(4)]
        def fin(m):
            o = ['s_waitcnt lgkmcnt(0)']
            for h in (0, 2): o += [f'v_pk_add_f32 {vr(RR+h,2)}, {vr(RR+h,2)}, {vr(RR+4+h,2)}', f'v_pk_add_f32 {vr(RR+8+h,2)}, {vr(RR+8+h,2)}, {vr(RR+12+h,2)}']
            for h in (0, 2): o += [f'v_lshlrev_b32 v{T+h}, 16, v{Z1+2*m+h//2}', f'v_and_b32 v{T+h+1}, 0xffff0000, v{Z1+2*m+h//2}']
            for h in (0, 2): o += [f'v_pk_add_f32 {vr(RR+h,2)}, {vr(RR+h,2)}, {vr(RR+8+h,2)}']
            for h in (0, 2): o += [f'v_pk_add_f32 {vr(RR+h,2)}, {vr(RR+h,2)}, {vr(BI,2)} op_sel_hi:[1,0]']
            for h in (0, 2): o += [f'v_pk_mul_f32 {vr(RR+h,2)}, {vr(RR+h,2)}, {vr(T+h,2)}']
            pk = PK + 4*((m >> 1) & 1) + 2*(m & 1)
            o += [f'v_cvt_pk_bf16_f32 v{pk}, v{RR}, v{RR+1}', f'v_cvt_pk_bf16_f32 v{pk+1}, v{RR+2}, v{RR+3}']
            if m == 6: o.append(f'buffer_store_dwordx2 {vr(pk,2)}, v{A8}, {sr(SWS,4)}, s{S_P} offen offset:3072 sc1')
            elif m & 1: o.append(f'buffer_store_dwordx4 {vr(pk-2,4)}, v{V_L16}, {sr(SWS,4)}, s{S_P} offen offset:{(m>>1)*1024} sc1')
            return o
        for n in range(7):
            tail = fin(n-1) if n else []
            for ks in range(16):
                i = n*16 + ks
                e(('wvm', f'z{i}'))
                for tau in range(4):
                    acc = vr(AC+16*(n&1)+4*tau, 4)
                    e(f'{MF} {acc}, {vr(RING+4*(i%RD),4)}, {ar((tau*16+ks)*4,4)}, {acc if ks else 0}')
                if i + PRE < 112: e(load(i + PRE))
                if n:
                    if ks == 2: e(red_write(n-1))
                    if ks == 5: e(red_read(n-1))
                    if 8 <= ks < 14: e(tail[(ks-8)*3:(ks-7)*3] if ks < 13 else tail[15:])
        self.ts('p5 mfma')
        e(red_write(6)); e(red_read(6)); e(fin(6))
        e('s_waitcnt vmcnt(0)\ns_barrier')
        self.flag_write(F5)
        self.ts('F5')

    def p6(self):
        e = self.e; t0, t1, t2, t3 = S_T0, S_T0+1, S_T0+2, S_T0+3
        TB, DB = self.S_TB6, self.S_DB
        MF = 'v_mfma_f32_16x16x32_bf16'
        WF, PA, HR, T = 128, 16, 240, 248
        steps = [(0, 1), (2, 3), (4, 5), (7, 8), (9, 10), (11, 12), (6, 13)]
        e(f'v_bfe_u32 v8, v{V_LANE}, 2, 2\nv_lshl_add_u32 v9, v{V_Q}, 2, v8\nv_lshrrev_b32 v10, 1, v9\nv_and_b32 v10, 3, v10\nv_lshlrev_b32 v9, 7, v9')
        e(f'v_lshl_add_u32 v9, v10, 5, v9\nv_and_b32 v10, 3, v{V_LANE}\nv_lshl_add_u32 v9, v10, 3, v9\ns_mul_i32 s{t0}, s{S_W}, 28672')
        for n in range(4): e(f'v_xor_b32 v{10+n}, {32*n}, v9\nv_add_u32 v{10+n}, s{t0}, v{10+n}')
        for si, (la, lb) in enumerate(steps):
            for n in range(4):
                e(f'ds_read_b64_tr_b16 {vr(WF+(si*4+n)*4,2)}, v{10+n} offset:{la*2048}\nds_read_b64_tr_b16 {vr(WF+(si*4+n)*4+2,2)}, v{10+n} offset:{lb*2048}')
        e(f'v_and_b32 v8, 1, v{V_LANE}\ns_lshl_b32 s{t0}, s{S_W}, 1\nv_add_u32 v9, s{t0}, v8')
        e(f'v_lshrrev_b32 v14, 2, v9\nv_and_b32 v9, 3, v9\nv_lshl_add_u32 v9, v9, 3, v14')
        e(f's_lshr_b32 s{t0}, s{TB}, 3\ns_lshl_b32 s{t0}, s{t0}, 1\ns_and_b32 s{t1}, s{TB}, 7\ns_lshl_b32 s{t1}, s{t1}, 5\ns_add_u32 s{t0}, s{t0}, s{t1}')
        e(f'v_add_u32 v9, s{t0}, v9\nv_lshlrev_b32 v9, 7, v9\nv_add_u32 v9, {F5}, v9')
        e(f's_lshr_b32 s{t0}, s{TB}, 2\ns_bfe_u32 s{t1}, s{TB}, 0x10001\ns_lshl_b32 s{t1}, s{t1}, 3\ns_add_u32 s{t0}, s{t0}, s{t1}\ns_lshl_b32 s{t1}, s{DB}, 5\ns_add_u32 s{t0}, s{t0}, s{t1}')
        e(f'v_lshl_add_u32 v8, v8, 4, s{t0}\nv_lshlrev_b32 v8, 7, v8\nv_add_u32 v8, {FH}, v8\nv_cmp_gt_u32 vcc, 2, v{V_LANE}\nv_cndmask_b32 v9, v8, v9, vcc')
        A8, AH, ARW, ARR, AO = 8, 10, 11, 12, 13
        S_P0, S_P1, S_H, S_O = 52, 53, 54, 55
        e('s_waitcnt lgkmcnt(0)')
        e(f'v_lshlrev_b32 v{A8}, 3, v{V_LANE}')
        e(f'v_bfe_u32 v14, v{V_LANE}, 2, 1\nv_lshlrev_b32 v{AH}, 10, v14\nv_and_b32 v14, 3, v{V_LANE}\nv_lshl_add_u32 v{AH}, v14, 8, v{AH}\nv_lshrrev_b32 v14, 3, v{V_LANE}\nv_lshl_add_u32 v{AH}, v14, 4, v{AH}')
        e(f's_mul_i32 s{t0}, s{S_W}, 4352\nv_mul_u32_u24 v{ARW}, 272, v{V_J}\nv_lshl_add_u32 v{ARW}, v{V_Q}, 4, v{ARW}\nv_add_u32 v{ARW}, s{t0}, v{ARW}')
        e(f's_mul_i32 s{t0}, s{S_W}, 17408\nv_mul_u32_u24 v{ARR}, 272, v14\nv_and_b32 v15, 7, v{V_LANE}\nv_lshl_add_u32 v{ARR}, v15, 5, v{ARR}\nv_add_u32 v{ARR}, s{t0}, v{ARR}')
        e(f'v_lshlrev_b32 v{AO}, 10, v14\nv_lshl_add_u32 v{AO}, v15, 4, v{AO}')
        e(f's_lshl_b32 s{S_P0}, s{TB}, 3\ns_lshl_b32 s{t0}, s{S_W}, 1\ns_add_u32 s{S_P0}, s{S_P0}, s{t0}\ns_mul_i32 s{S_P0}, s{S_P0}, {4*3584}\ns_add_u32 s{S_P0}, s{S_P0}, {WS_PF}')
        e(f's_lshl_b32 s{S_H}, s{TB}, 2\ns_add_u32 s{S_H}, s{S_H}, s{S_W}\ns_lshl_b32 s{S_O}, s{S_H}, 14\ns_lshl_b32 s{t0}, s{DB}, 7\ns_add_u32 s{S_O}, s{S_O}, s{t0}')
        e(f's_lshl_b32 s{S_H}, s{S_H}, 4\ns_lshl_b32 s{t0}, s{DB}, 1\ns_add_u32 s{S_H}, s{S_H}, s{t0}\ns_lshl_b32 s{S_H}, s{S_H}, 10\ns_add_u32 s{S_H}, s{S_H}, {WS_HF}')
        e('s_barrier')
        self.poll(9)
        self.ts('p6 poll')
        for tau in range(4):
            for h in range(2):
                e(f's_add_u32 s{t0}, s{S_P0}, {(h*4+tau)*3584}')
                for p in range(3): e(f'buffer_load_dwordx4 {vr(PA+(tau*7+h*3+p)*4,4)}, v{V_L16}, {sr(SWS,4)}, s{t0} offen offset:{1024*p} sc1')
                e(f'buffer_load_dwordx2 {vr(PA+(tau*7+6)*4+2*h,2)}, v{A8}, {sr(SWS,4)}, s{t0} offen offset:3072 sc1')
            e(('mark', f'p{tau}'))
        for h in range(2): e(f'buffer_load_dwordx4 {vr(HR+4*h,4)}, v{AH}, {sr(SWS,4)}, s{S_H} offen offset:{128*h} sc1')
        def wr(tau): return [f'ds_write_b128 v{ARW}, {ar(16*(tau&1)+4*n,4)} offset:{tau*17408+64*n}' for n in range(4)]
        for tau in range(4):
            e(('wvm', f'p{tau}'))
            for si in range(7):
                for n in range(4):
                    acc = ar(16*(tau&1)+4*n, 4)
                    e(f'{MF} {acc}, {vr(WF+(si*4+n)*4,4)}, {vr(PA+(tau*7+si)*4,4)}, {acc if si else 0}')
                if si == 2 and tau: e(wr(tau-1))
        e(wr(3)); e('s_waitcnt lgkmcnt(0)\ns_barrier')
        R = 16
        for h in range(2):
            for w2 in range(4):
                for x in range(2): e(f'ds_read_b128 {vr(R+((h*4+w2)*2+x)*4,4)}, v{ARR} offset:{w2*4352+h*2176+16*x}')
            e(('mark', f'r{h}'))
        e(f's_add_u32 s{t0}, s{S_O}, 8192\ns_waitcnt vmcnt(0)')
        for h in range(2):
            b = R + h*32
            for i in range(4): e(f'v_lshlrev_b32 v{T+2*i}, 16, v{HR+4*h+i}\nv_and_b32 v{T+2*i+1}, 0xffff0000, v{HR+4*h+i}')
            e(('wlg', f'r{h}'))
            for i in range(0, 8, 2):
                e(f'v_pk_add_f32 {vr(b+i,2)}, {vr(b+i,2)}, {vr(b+8+i,2)}\nv_pk_add_f32 {vr(b+16+i,2)}, {vr(b+16+i,2)}, {vr(b+24+i,2)}')
            for i in range(0, 8, 2): e(f'v_pk_add_f32 {vr(b+i,2)}, {vr(b+i,2)}, {vr(b+16+i,2)}')
            for i in range(0, 8, 2): e(f'v_pk_add_f32 {vr(b+i,2)}, {vr(b+i,2)}, {vr(T+i,2)}')
            for i in range(4): e(f'v_cvt_pk_bf16_f32 v{b+8+i}, v{b+2*i}, v{b+2*i+1}')
            e(f'buffer_store_dwordx4 {vr(b+8,4)}, v{AO}, {sr(SOUT,4)}, s{S_O if h == 0 else t0} offen')

    def epilogue(self):
        e = self.e
        if self.prof:
            self.ts()
            e(f's_lshl_b32 s{S_T0}, s2, 2\ns_add_u32 s{S_T0}, s{S_T0}, s{S_W}\ns_lshl_b32 s{S_T0}, s{S_T0}, 7\ns_add_u32 s{S_T0}, s{S_T0}, {WS_TS}')
            e('v_mov_b32 v7, 0\ns_mov_b64 exec, 1')
            for i in range(self.nts):
                e(f'v_mov_b32 v6, s{S_TS+i}\nbuffer_store_dword v6, v7, {sr(SWS,4)}, s{S_T0} offen offset:{4*i}')
        e('L_end:\ns_endpgm')

    def build(self):
        self.prologue()
        self.p1()
        for ph, fn in ((2, 'p2'), (4, 'p4'), (5, 'p5'), (6, 'p6')):
            if self.stop >= ph: getattr(self, fn)()
        self.epilogue()
        hdr = open('cdna_kernels/' + NAME + '.s.ref').read().split('; Override launch')[0]
        txt = hdr + f'; @launch grid=(256,1,1) block=(256,1,1) lds={LDS_BYTES}\n'
        txt += f'.amdgcn_target "amdgcn-amd-amdhsa--gfx950"\n.text\n.globl {KNAME}\n.p2align 8\n.type {KNAME},@function\n{KNAME}:\n'
        txt += self.e.text()
        txt += (f'.section .rodata,"a"\n.p2align 6\n.amdhsa_kernel {KNAME}\n  .amdhsa_next_free_vgpr 512\n  .amdhsa_next_free_sgpr 102\n'
                '  .amdhsa_accum_offset 256\n  .amdhsa_group_segment_fixed_size 0\n  .amdhsa_kernarg_size 88\n  .amdhsa_user_sgpr_count 2\n'
                '  .amdhsa_user_sgpr_kernarg_segment_ptr 1\n  .amdhsa_system_sgpr_workgroup_id_x 1\n  .amdhsa_float_denorm_mode_32 3\n.end_amdhsa_kernel\n')
        return txt

if __name__ == '__main__':
    import argparse
    ap = argparse.ArgumentParser(); ap.add_argument('-o', default='k.s'); ap.add_argument('--stop', type=int, default=99); ap.add_argument('--prof', action='store_true')
    a = ap.parse_args()
    g = Gen(a.stop, a.prof); t = g.build(); open(a.o, 'w').write(t)
    print('lines', t.count('\n'), 'nops', g.e.nops, 'stamps', g.nts)
```

```python
import math, struct, sys
from emit import *

NAME = 'sequential_preLN__spectral_gfnet__mixer_gmlp__prompt'
KNAME = NAME + '_kernel'
MF = 'v_mfma_f32_16x16x32_bf16'

def f32(x): return '0x%08x' % struct.unpack('<I', struct.pack('<f', x))[0]

KS = 8448
WS_EPOCH = 0
WS_FLAG = 0x10000
F1, F1B, F2, F4, FH, F5 = [WS_FLAG + i * 0x8000 for i in range(6)]
WS_SIG = 0x40000
WS_MEAN = 0x48000
WS_TS = 0x50000
WS_STAT = 0x80000
WS_X1T = 0x100000
WS_WT = 0x340000
WS_HT = 0x580000
WS_W2F = 0x7C0000
WS_Z1F = 0x980000
WS_Z2F = 0xD00000
WS_HF = 0x1100000
WS_PF = 0x1300000
WS_SIZE = 0x1700000

SX, SWR, SWI, SWIN, SWSP, SBSP, SWOUT, SOUT, SWS = 8, 12, 16, 20, 24, 28, 32, 36, 40
S_W, S_TAG, S_KB, S_RB = 44, 45, 46, 47
t0, t1, t2, t3 = 48, 49, 50, 51
S_TB, S_FB, S_RB4, S_J4, S_M4, S_DO = 64, 65, 66, 67, 68, 69
S_TS = 70
V_TID, V_LANE, V_L16, V_J, V_Q = 0, 1, 2, 3, 4
V_STG = 254

L_X, L_WIN, L_WTR, L_STAT, L_BNC, L_RS, L_STG = 0, 33280, 66048, 75264, 75776, 84992, 97280
L_X1C, L_EX, L_OB = 0, 8192, 16384
L_W2, L_RING, L_SM = 0, 114688, 147968
LDS_BYTES = 163840
SPIN_MAX = 1 << 16
WSr = sr(SWS, 4)

def diag_mask(r): return (1 << r) | (1 << (20 + r)) | (1 << (40 + r)) | (1 << (60 + r))
def set_exec(m): return [f's_mov_b32 exec_lo, {m & 0xffffffff:#x}', f's_mov_b32 exec_hi, {m >> 32:#x}']

class Gen:
    def __init__(self, stop=99, prof=False, opt=None):
        self.e = Emitter(); self.stop = stop; self.prof = prof; self.nts = 0; self.names = []
        self.opt = opt or {}

    def ts(self, name='', fine=None):
        if not self.prof: return
        grp = self.opt.get('fine')
        if grp:
            if fine == grp or name in self.opt.get('also', []):
                assert self.nts < 16
                self.e(f's_memtime {sr(S_TS + 2*self.nts, 2)}'); self.names.append(name); self.nts += 1
        elif fine is None:
            self.e(f's_memrealtime s[62:63]\ns_waitcnt lgkmcnt(0)\ns_mov_b32 s{S_TS + self.nts}, s62')
            self.names.append(name); self.nts += 1
    def tsl(self, name, fine):
        n0 = len(self.e.out)
        return ('call', lambda: self.ts(name, fine))

    def flag_write(self, farr):
        e = self.e; L = e.label_name('nf')
        e(f's_cmp_eq_u32 s{S_W}, 0\ns_cbranch_scc0 {L}')
        e(f's_lshl_b32 s{t0}, s2, 7\ns_add_u32 s{t0}, s{t0}, {farr}\nv_mov_b32 v6, s{S_TAG}\nv_mov_b32 v7, 0\ns_mov_b64 exec, 1')
        e(f'buffer_store_dword v6, v7, {WSr}, s{t0} offen sc1'); e.nvm -= 1
        e(f's_mov_b64 exec, -1\n{L}:')

    def poll(self, vaddr):
        e = self.e; L = e.label_name('poll'); D = e.label_name('pdone')
        e(f's_mov_b32 s{t0}, 0\n{L}:')
        e(f'buffer_load_dword v6, v{vaddr}, {WSr}, 0 offen sc1')
        e(f's_add_u32 s{t0}, s{t0}, 1\ns_cmp_ge_u32 s{t0}, {SPIN_MAX}\ns_cbranch_scc1 {D}')
        e(f's_waitcnt vmcnt(0)\nv_cmp_ne_u32 vcc, s{S_TAG}, v6\ns_cbranch_vccnz {L}\n{D}:\ns_waitcnt vmcnt(0)')

    def wsp_issue(self, rnd):
        setup = lines(f's_lshl_b32 s{S_DO}, s{S_TB}, 18\ns_lshl_b32 s{t0}, s{S_W}, 10\ns_add_u32 s{S_DO}, s{S_DO}, s{t0}\ns_add_u32 s{S_DO}, s{S_DO}, {rnd << 16}\n'
                      f's_mul_i32 s{t0}, s{S_W}, 16640\ns_add_u32 m0, s{t0}, {L_STG}')
        pieces = []
        for i in range(16):
            p = [f'buffer_load_dwordx4 v{V_L16}, {sr(SWSP,4)}, s{S_DO} offen nt lds']
            p += ['s_add_u32 m0, m0, 1040', f's_add_u32 s{S_DO}, s{S_DO}, 4096'] if i < 15 else [('mark', f'wsp{rnd}')]
            pieces.append(p)
        return setup, pieces
    def wsp_read(self, rnd):
        return [('wvm', f'wsp{rnd}')] + [f'ds_read2_b64 {ar((rnd*16+ks)*4,4)}, v{V_STG} offset0:{8*ks} offset1:{8*ks+4}' for ks in range(16)]
    def wsph_issue(self, half, vaddr):
        setup = lines(f's_lshl_b32 s{S_DO}, s{S_TB}, 18\ns_lshl_b32 s{t0}, s{S_W}, 10\ns_add_u32 s{S_DO}, s{S_DO}, s{t0}\ns_add_u32 s{S_DO}, s{S_DO}, {(3 << 16) + 512*half}\n'
                      f's_mul_i32 s{t0}, s{S_W}, 8320\ns_add_u32 m0, s{t0}, {L_RING}')
        pieces = []
        for i in range(8):
            p = [f'buffer_load_dwordx4 v{vaddr}, {sr(SWSP,4)}, s{S_DO} offen nt lds']
            p += ['s_add_u32 m0, m0, 1040', f's_add_u32 s{S_DO}, s{S_DO}, 8192'] if i < 7 else [('mark', f'wsph{half}')]
            pieces.append(p)
        return setup, pieces
    def wsph_read(self, half):
        return [('wvm', f'wsph{half}')] + [f'ds_read2_b64 {ar((48+8*half+ks)*4,4)}, v31 offset0:{8*ks} offset1:{8*ks+4}' for ks in range(8)]

    def p1(self):
        e = self.e
        FD, ACC, XF, G, WR, WI = 64, 128, 160, 192, 16, 24
        e('s_cmp_ge_u32 s2, 256\ns_cbranch_scc1 L_end')
        for base, off in ((SX, 0), (SWR, 8), (SWI, 16), (SWIN, 32), (SWSP, 40), (SBSP, 48), (SWOUT, 56), (SOUT, 64), (SWS, 80)):
            e(f's_load_dwordx2 {sr(base,2)}, s[0:1], {off}')
        if self.prof and not self.opt.get('fine'):
            e('s_memrealtime s[60:61]'); self.nts = 1; self.names = ['start']
        self.ts('start', 'p1')
        L = e.label_name('ncode')
        e('s_getpc_b64 s[6:7]'); e.raw('L_pc:')
        e(f's_bfe_u32 s{t0}, s2, 0x30003\ns_cmp_eq_u32 s{t0}, 7\ns_cselect_b32 s{t0}, 0, s{t0}\ns_lshl_b32 s{t0}, s{t0}, 13\ns_min_u32 s{t0}, s{t0}, L_padend-L_pc-8192')
        e(f's_add_u32 s6, s6, s{t0}\ns_addc_u32 s7, s7, 0\nv_lshlrev_b32 v6, 7, v0\nv_mov_b32 v7, s7\nv_add_co_u32 v6, vcc, s6, v6')
        e(f'v_lshrrev_b32 v5, 6, v0\nv_and_b32 v{V_LANE}, 63, v0\nv_addc_co_u32 v7, vcc, 0, v7, vcc\nv_cmp_gt_u32 vcc, 64, v0\nv_readfirstlane_b32 s{S_W}, v5')
        e(f's_and_saveexec_b64 s[6:7], vcc\ns_cbranch_execz {L}\nglobal_load_dword v15, v[6:7], off\n{L}:\ns_mov_b64 exec, -1'); e.nvm -= 1
        e(f'v_lshlrev_b32 v{V_L16}, 4, v{V_LANE}\nv_and_b32 v{V_J}, 15, v{V_LANE}\nv_lshrrev_b32 v{V_Q}, 4, v{V_LANE}\nv_lshlrev_b32 v8, 1, v{V_LANE}')
        e(f's_bfe_u32 s{S_KB}, s2, 0x20003\ns_lshr_b32 s{S_RB}, s2, 5\ns_lshl_b32 s{S_RB}, s{S_RB}, 3\ns_and_b32 s{t0}, s2, 7\ns_or_b32 s{S_RB}, s{S_RB}, s{t0}')
        for base, n in ((SX, 2097152), (SWR, 2048*514), (SWI, 2048*514), (SWIN, 512*3584), (SWSP, 2048*4096), (SBSP, 4096),
                        (SWOUT, 896*1024), (SOUT, 2097152), (SWS, WS_SIZE)):
            e(f's_mov_b32 s{base+2}, {n}\ns_mov_b32 s{base+3}, 0x20000')
        S_XO, S_WO, S_JC, S_WI = 52, 53, 54, 55
        e(f's_and_b32 s{S_XO}, s{S_RB}, 1\ns_lshl_b32 s{S_XO}, s{S_XO}, 10\ns_lshl_b32 s{t1}, s{S_W}, 8\ns_add_u32 s{S_XO}, s{S_XO}, s{t1}')
        e(f's_lshr_b32 s{t1}, s{S_RB}, 1\ns_add_u32 s{S_XO}, s{S_XO}, s{t1}\ns_lshl_b32 s{S_XO}, s{S_XO}, 10\ns_mul_i32 m0, s{S_W}, 8320')
        KF, SC, M, SG = G, G+1, G+2, G+4
        C0, S0, C1, S1, PH = G+8, G+16, G+24, G+32, G+40
        g = lines(f's_lshl_b32 s{t0}, s{S_KB}, 6\ns_lshl_b32 s{t1}, s{S_W}, 4\ns_add_u32 s{t0}, s{t0}, s{t1}\ns_add_u32 s{t0}, s{t0}, 1\nv_add_u32 v{KF}, s{t0}, v{V_J}')
        g += lines(f'v_mov_b32 v{SC}, {f32(1/16)}\nv_mov_b32 v{PH}, {f32(1/math.sqrt(512))}\nv_cmp_eq_u32 vcc, 0x100, v{KF}\nv_and_b32 v{SG}, 1, v{KF}\nv_lshlrev_b32 v{SG}, 31, v{SG}')
        g += lines(f'v_cndmask_b32 v{SC}, v{SC}, v{PH}, vcc\nv_or_b32 v{SG}, 1.0, v{SG}\nv_cvt_f32_u32 v{KF}, v{KF}\nv_mul_f32 v{KF}, {f32(1/512)}, v{KF}')
        g += lines(f'v_lshlrev_b32 v{PH}, 3, v{V_Q}\nv_cvt_f32_u32 v{PH}, v{PH}\nv_mul_f32 v{PH}, v{PH}, v{KF}\nv_mul_f32 v{M}, {f32(32.0)}, v{KF}')
        g += lines(f'v_add_f32 v{PH+8}, v{PH}, v{M}\nv_cos_f32 v{M}, v{M}')
        for i in range(1, 8): g += lines(f'v_add_f32 v{PH+i}, v{PH+i-1}, v{KF}\nv_add_f32 v{PH+8+i}, v{PH+8+i-1}, v{KF}')
        g.append(f'v_add_f32 v{M}, v{M}, v{M}')
        for i in range(8): g += lines(f'v_cos_f32 v{C0+i}, v{PH+i}\nv_sin_f32 v{S0+i}, v{PH+i}\nv_cos_f32 v{C1+i}, v{PH+8+i}\nv_sin_f32 v{S1+i}, v{PH+8+i}')
        g.append(f'v_mov_b32 v{PH}, v{SC}')
        n_early = len(g)
        for i in range(0, 8, 2):
            for b in (C0, C1): g.append(f'v_pk_mul_f32 {vr(b+i,2)}, {vr(b+i,2)}, {vr(PH,2)} op_sel_hi:[1,0]')
            for b in (S0, S1): g.append(f'v_pk_mul_f32 {vr(b+i,2)}, {vr(b+i,2)}, {vr(PH,2)} op_sel_hi:[1,0] neg_lo:[1,0] neg_hi:[1,0]')
        prev, cur = (C0, S0), (C1, S1)
        cvt = lambda u, src: [f'v_cvt_pk_bf16_f32 v{FD+8*u+4*c+i}, v{src[c]+2*i}, v{src[c]+2*i+1}' for c in range(2) for i in range(4)]
        g += cvt(0, prev) + cvt(1, cur)
        for u in range(2, 8):
            for c in range(2):
                for i in range(0, 8, 2):
                    g.append(f'v_pk_fma_f32 {vr(prev[c]+i,2)}, {vr(cur[c]+i,2)}, {vr(M,2)}, {vr(prev[c]+i,2)} op_sel_hi:[1,0,1] neg_lo:[0,0,1] neg_hi:[0,0,1]')
            prev, cur = cur, prev
            g += cvt(u, cur)
        e(g[:n_early])
        e(f's_and_b32 s{S_WO}, s{S_RB}, 7\ns_lshl_b32 s{S_JC}, s{S_WO}, 3\ns_lshr_b32 s{t1}, s{S_RB}, 3\ns_lshl_b32 s{S_WO}, s{t1}, 8\ns_add_u32 s{S_WO}, s{S_WO}, s{S_JC}\ns_add_u32 s{S_JC}, s{S_JC}, s{t1}')
        e(f's_lshl_b32 s{t1}, s{S_W}, 1\ns_add_u32 s{S_WO}, s{S_WO}, s{t1}\ns_mul_i32 s{S_WO}, s{S_WO}, 514\ns_lshl_b32 s{t1}, s{S_KB}, 7\ns_add_u32 s{S_WO}, s{S_WO}, s{t1}\ns_add_u32 s{S_WO}, s{S_WO}, 2')
        self.ts('pre kernarg', 'p1')
        e('s_waitcnt lgkmcnt(0)')
        self.ts('kernarg', 'p1')
        xs = []
        for i in range(8):
            xs.append([f'buffer_load_dwordx4 v{V_L16}, {sr(SX,4)}, s{S_XO} offen nt lds'] +
                      (['s_add_u32 m0, m0, 1040', f's_add_u32 s{S_XO}, s{S_XO}, 32768'] if i < 7 else [('mark', 'x'), f's_load_dword s{S_TAG}, {sr(SWS,2)}, {WS_EPOCH}']))
        ws = []
        for r in range(4):
            for mm in range(2):
                ws.append([f'buffer_load_ushort v{WR+mm*4+r}, v8, {sr(SWR,4)}, s{S_WO} offen offset:{mm*514} nt'])
                ws.append([f'buffer_load_ushort v{WI+mm*4+r}, v8, {sr(SWI,4)}, s{S_WO} offen offset:{mm*514} nt'])
            ws[-1].append(f's_add_u32 s{S_WO}, s{S_WO}, {64*514}' if r < 3 else ('mark', 'xw'))
        for p in xs[:5]: e(p)
        e(spread(g[n_early:], xs[5:] + ws, 0, len(g) - n_early))
        self.ts('fd done', 'p1')
        AX, ONES, SUM, SQ = G+8, G+12, G+16, G+20
        AW, AWR, AWG, AST, ASR, ARW, ARR, AB, AB2, AG, FS = G+24, G+25, G+26, G+27, G+28, G+29, G+30, G+32, G+34, G+35, G+36
        S_WT, S_X1, S_SG, S_MN = 56, 57, 58, 59
        a = lines(f'v_lshrrev_b32 v9, 2, v{V_LANE}\nv_mul_u32_u24 v9, 3584, v9\nv_and_b32 v10, 3, v{V_LANE}\nv_and_b32 v11, 2, v{V_Q}\nv_xor_b32 v10, v10, v11\nv_lshl_add_u32 v9, v10, 4, v9')
        a += lines(f's_min_u32 s{t0}, s{S_JC}, 55\ns_lshl_b32 s{t0}, s{t0}, 6\ns_mul_i32 s{t1}, s{S_W}, {128*3584}\ns_add_u32 s{S_WI}, s{t0}, s{t1}\ns_lshl_b32 s{t1}, s{S_W}, 13\ns_add_u32 m0, s{t1}, {L_WIN}')
        n0 = len(a)
        a += lines(f'v_mul_u32_u24 v12, 1040, v{V_J}\nv_lshl_add_u32 v12, v{V_Q}, 4, v12\ns_and_b32 s{t0}, s{S_W}, 1\ns_lshr_b32 s{t1}, s{S_W}, 1')
        a += lines(f's_mul_i32 s{t2}, s{t0}, 16640\ns_lshl_b32 s{t3}, s{t1}, 9\ns_add_u32 s{t2}, s{t2}, s{t3}\nv_add_u32 v{AX}, s{t2}, v12\nv_xor_b32 v13, 0x200, v{AX}')
        a += lines(f's_xor_b32 s{t2}, s{t0}, 1\ns_mul_i32 s{t2}, s{t2}, 16640\ns_add_u32 s{t2}, s{t2}, s{t3}\nv_add_u32 v{AX+2}, s{t2}, v12')
        a += lines(f's_xor_b32 s{t2}, s{t3}, 0x200\ns_sub_u32 s{t2}, s{t2}, s{t3}\nv_add_u32 v{AX+1}, s{t2}, v{AX}\nv_add_u32 v{AX+3}, s{t2}, v{AX+2}')
        a += [f'v_mov_b32 v{ONES+i}, 0x3f803f80' for i in range(4)]
        a += lines(f's_cmp_eq_u32 s{t1}, 0\ns_cselect_b64 vcc, -1, 0\nv_cndmask_b32 v{FS}, v{SG}, 1.0, vcc')
        a += lines(f's_lshl_b32 s{t2}, s{t0}, 8\ns_lshl_b32 s{t3}, s{t1}, 7\ns_add_u32 s{t2}, s{t2}, s{t3}\ns_add_u32 s{t2}, s{t2}, {L_STAT}\nv_lshl_add_u32 v{AST}, v{V_Q}, 4, s{t2}')
        a += lines(f'v_and_b32 v13, 1, v{V_Q}\nv_lshlrev_b32 v{ASR}, 8, v13\nv_lshl_add_u32 v{ASR}, v{V_J}, 2, v{ASR}\nv_add_u32 v{ASR}, {L_STAT}, v{ASR}')
        a += lines(f's_lshl_b32 s{t2}, s{S_W}, 7\ns_add_u32 s{t2}, s{t2}, {L_RS}\nv_and_b32 v13, 31, v{V_LANE}\nv_lshl_add_u32 v{ARW}, v13, 2, s{t2}')
        a += lines(f's_lshl_b32 s{t3}, s{t0}, 6\ns_add_u32 s{t2}, s{t2}, s{t3}\nv_lshl_add_u32 v{ARR}, v{V_Q}, 4, s{t2}\nv_xor_b32 v{ARR+1}, 64, v{ARR}')
        a += lines(f's_mul_i32 s{t2}, s{S_W}, 2304\ns_add_u32 s{t2}, s{t2}, {L_BNC}\nv_mul_u32_u24 v13, 144, v{V_J}\nv_lshl_add_u32 v13, v{V_Q}, 4, v13\nv_add_u32 v13, s{t2}, v13')
        a += lines(f'v_add_u32 v{AB}, s{t3}, v13\ns_xor_b32 s{t3}, s{t3}, 64\nv_add_u32 v{AB+1}, s{t3}, v13')
        a += lines(f'v_and_b32 v5, 7, v{V_LANE}\nv_lshlrev_b32 v5, 4, v5\nv_lshrrev_b32 v13, 3, v{V_LANE}\nv_mad_u32_u24 v{AB2}, v13, 0x90, v5' if False else
                   f'v_and_b32 v5, 7, v{V_LANE}\nv_lshlrev_b32 v5, 4, v5\nv_lshrrev_b32 v13, 3, v{V_LANE}\nv_mul_u32_u24 v{AB2}, 144, v13\nv_add3_u32 v{AB2}, v{AB2}, v5, s{t2}')
        a += lines(f'v_mul_u32_u24 v{AG}, {KS}, v13\nv_add_u32 v{AG}, v{AG}, v5')
        a += lines(f'v_mul_u32_u24 v{AW}, 144, v{V_LANE}\ns_lshl_b32 s{t2}, s{S_W}, 5\ns_add_u32 s{t2}, s{t2}, {L_WTR}\nv_add_u32 v{AW}, s{t2}, v{AW}')
        a += lines(f's_mul_i32 s{t2}, s{S_W}, {8*144-2304}\ns_add_u32 s{t2}, s{t2}, {L_WTR-L_BNC}\nv_add_u32 v{AWR}, s{t2}, v{AB2}')
        a += lines(f's_bfe_u32 s{S_WT}, s{S_RB}, 0x20001\ns_lshl_b32 s{S_WT}, s{S_WT}, 11\ns_lshr_b32 s{t1}, s{S_RB}, 5\ns_lshl_b32 s{t1}, s{t1}, 10\ns_add_u32 s{S_WT}, s{S_WT}, s{t1}')
        a += lines(f's_bfe_u32 s{t1}, s{S_RB}, 0x20003\ns_lshl_b32 s{t1}, s{t1}, 8\ns_add_u32 s{S_WT}, s{S_WT}, s{t1}\ns_and_b32 s{t1}, s{S_RB}, 1\ns_lshl_b32 s{t1}, s{t1}, 7\ns_add_u32 s{S_WT}, s{S_WT}, s{t1}')
        a += lines(f's_mul_i32 s{t1}, s{S_KB}, {64*KS}\ns_mul_i32 s{t2}, s{S_W}, {8*KS}\ns_add_u32 s{S_WT}, s{S_WT}, s{t1}\ns_add_u32 s{S_WT}, s{S_WT}, s{t2}\ns_add_u32 s{S_WT}, s{S_WT}, {WS_WT}')
        a += lines(f's_add_u32 s{S_X1}, s{t1}, s{t2}\ns_add_u32 s{S_X1}, s{S_X1}, s{t2}\ns_lshl_b32 s{t1}, s{S_RB}, 7\ns_add_u32 s{S_X1}, s{S_X1}, s{t1}\ns_add_u32 s{S_X1}, s{S_X1}, {WS_X1T}')
        a += lines(f's_lshl_b32 s{t2}, s{S_KB}, 13\ns_add_u32 s{t2}, s{t2}, {WS_SIG}\ns_cmp_eq_u32 s{S_W}, 0\ns_cselect_b32 s{S_SG}, s{t2}, {WS_MEAN}\ns_cselect_b32 s{S_MN}, -1, 0\ns_add_u32 s{S_SG}, s{S_SG}, s{t1}')
        a += lines(f's_lshl_b32 s{t2}, s{S_KB}, 2\ns_add_u32 s{t2}, s{t2}, s{S_W}\ns_cmp_eq_u32 s{t2}, 1\ns_cselect_b32 s{S_MN}, -1, s{S_MN}')
        a += lines(f's_and_b32 s{S_TB}, s2, 31\ns_lshr_b32 s{S_FB}, s2, 5')
        a += lines(f's_mul_i32 s{t0}, s{S_W}, 16640\ns_add_u32 s{t0}, s{t0}, {L_STG}\nv_mul_u32_u24 v{V_STG}, 1040, v{V_J}\nv_lshl_add_u32 v{V_STG}, v{V_Q}, 3, v{V_STG}\nv_add_u32 v{V_STG}, s{t0}, v{V_STG}')
        win = [[f'buffer_load_dwordx4 v9, {sr(SWIN,4)}, s{S_WI} offen nt lds'] + ([f's_add_u32 m0, m0, 1024', f's_add_u32 s{S_WI}, s{S_WI}, {16*3584}'] if i < 7 else []) for i in range(8)]
        e(a)
        e(f's_waitcnt lgkmcnt(0)\ns_mul_i32 s{S_TAG}, s{S_TAG}, 0x9e3779b1\ns_add_u32 s{S_TAG}, s{S_TAG}, 0x7f4a7c15')
        if self.prof and not self.opt.get('fine'): e(f's_mov_b32 s{S_TS}, s60')
        self.ts('gen done'); self.ts('gen done', 'p1')
        e(('wvm', 'x')); e('s_barrier')
        self.ts('x landed'); self.ts('x landed', 'p1')
        order = [(u, 0) for u in range(8)] + [(u, 1) for u in range(8)] + [(u, tp) for u in range(8, 16) for tp in range(2)]
        LA = 6
        def rd(n):
            u, tp = order[n]
            return [f'ds_read_b128 {vr(XF+4*(n%8),4)}, v{AX+tp*2+(u>>3)} offset:{(u&7)*64}', ('mark', f'x{n}')]
        acc = lambda tp, c, hp: ACC + ((tp*2 + c)*2 + hp)*4
        for n in range(LA): e(rd(n))
        R0, RS = 40, 32
        extra = {n: list(win[n]) for n in range(8)}
        st = set_exec(0x0001000100010001) + [f'ds_write_b128 v{AST}, {vr(SUM,4)}']
        for r in range(4): st += set_exec(diag_mask(r)) + [f'ds_write_b32 v{AST}, v{SQ+r} offset:{64+4*r}']
        extra[11] = st + ['s_mov_b64 exec, -1', ('mark', 'stw')]
        extra[14] = [('wlg', 'stw'), 's_barrier'] + [f'ds_read_b32 v{R0+i}, v{ASR} offset:{o}' for i, o in enumerate((0, 128, 64, 192))] + [('mark', 'str')]
        extra[18] = [('wlg', 'str')] + lines(f'v_add_f32 v{R0}, v{R0}, v{R0+1}\nv_add_f32 v{R0+2}, v{R0+2}, v{R0+3}\nv_mul_f32 v{R0}, {f32(1/512)}, v{R0}\nv_mul_f32 v{R0+2}, {f32(1/512)}, v{R0+2}')
        extra[19] = lines(f'v_fma_f32 v{R0+2}, -v{R0}, v{R0}, v{R0+2}\nv_max_f32 v{R0+2}, 0, v{R0+2}\nv_add_f32 v{R0+2}, {f32(1e-5)}, v{R0+2}\nv_rsq_f32 v{R0+1}, v{R0+2}')
        extra[20] = lines(f'v_sqrt_f32 v{R0+3}, v{R0+2}\ns_cmp_eq_u32 s{S_W}, 0\ns_cselect_b64 vcc, -1, 0\nds_write_b32 v{ARW}, v{R0+1}') + [('mark', 'rsw')]
        extra[21] = lines(f'v_cndmask_b32 v{R0}, v{R0}, v{R0+3}, vcc\nv_lshlrev_b32 v{R0+4}, 2, v{V_LANE}')
        extra[23] = [('wlg', 'rsw'), f'ds_read_b128 {vr(RS,4)}, v{ARR}', f'ds_read_b128 {vr(RS+4,4)}, v{ARR+1}', ('mark', 'rsr')]
        extra[24] = [f's_mov_b32 exec_lo, s{S_MN}', 's_mov_b32 exec_hi, 0', f'buffer_store_dword v{R0}, v{R0+4}, {WSr}, s{S_SG} offen sc1', 's_mov_b64 exec, -1']
        extra[26] = [('wvm', 'xw')] + [f'v_lshl_or_b32 v{WR+i}, v{WI+i}, 16, v{WR+i}' for i in range(4)]
        extra[27] = [f'v_lshl_or_b32 v{WR+i}, v{WI+i}, 16, v{WR+i}' for i in range(4, 8)] + [f'ds_write_b128 v{AW}, {vr(WR,4)}']
        extra[28] = [f'ds_write_b128 v{AW}, {vr(WR+4,4)} offset:16', ('mark', 'wtw')]
        extra[29] = [('wlg', 'rsr')] + [f'v_pk_mul_f32 {vr(RS+i,2)}, {vr(RS+i,2)}, {vr(FS,2)} op_sel_hi:[1,0]' for i in range(0, 8, 2)]
        extra[31] = [('wlg', 'wtw'), 's_barrier', f'ds_read_b128 {vr(WR,4)}, v{AWR}', f'ds_read_b128 {vr(WR+4,4)}, v{AWR} offset:{32*144}',
                     f's_add_u32 s{t1}, s{S_X1}, {8*KS}', f's_add_u32 s{t2}, s{S_WT}, {32*KS}']
        for n, (u, tp) in enumerate(order):
            e(('wlg', f'x{n}'))
            xf = vr(XF+4*(n%8), 4)
            for c in range(2):
                A = vr(acc(tp, c, u >> 3), 4)
                e(f'{MF} {A}, {xf}, {vr(FD+8*(u&7)+4*c,4)}, {A if u & 7 else 0}')
            if n < 8:
                e(f'{MF} {vr(SQ,4)}, {xf}, {xf}, {vr(SQ,4) if n else 0}\n{MF} {vr(SUM,4)}, {xf}, {vr(ONES,4)}, {vr(SUM,4) if n else 0}')
            if n + LA < 32: e(rd(n + LA))
            if n in extra: e(extra[n])
            if n in (0, 7, 15, 25, 31): self.ts(f'step {n}', 'p1')
        for tp in range(2):
            for c in range(2):
                for h in (0, 2):
                    lo, hi = vr(acc(tp,c,0)+h, 2), vr(acc(tp,c,1)+h, 2)
                    e(f'v_pk_fma_f32 {lo}, {hi}, {vr(SG,2)}, {lo} op_sel_hi:[1,0,1]')
            for c in range(2):
                for h in (0, 2):
                    lo = vr(acc(tp,c,0)+h, 2)
                    e(f'v_pk_mul_f32 {lo}, {lo}, {vr(RS+4*tp+h,2)}')
            for r in range(4): e(f'v_cvt_pk_bf16_f32 v{XF+tp*4+r}, v{acc(tp,0,0)+r}, v{acc(tp,1,0)+r}')
            e(f'ds_write_b128 v{AB+tp}, {vr(XF+tp*4,4)}')
            if tp == 0:
                e(f's_waitcnt lgkmcnt(1)\nbuffer_store_dwordx4 {vr(WR,4)}, v{AG}, {WSr}, s{S_WT} offen sc1\nbuffer_store_dwordx4 {vr(WR+4,4)}, v{AG}, {WSr}, s{t2} offen sc1')
        e('s_waitcnt lgkmcnt(0)')
        e(f'ds_read_b128 {vr(XF+8,4)}, v{AB2}\nds_read_b128 {vr(XF+12,4)}, v{AB2} offset:{8*144}')
        e(f's_waitcnt lgkmcnt(1)\nbuffer_store_dwordx4 {vr(XF+8,4)}, v{AG}, {WSr}, s{S_X1} offen sc1')
        e(f's_waitcnt lgkmcnt(0)\nbuffer_store_dwordx4 {vr(XF+12,4)}, v{AG}, {WSr}, s{t1} offen sc1')
        self.ts('X1 stored'); self.ts('X1 stored', 'p1')
        consts = self.p2_consts()
        A0, S_W2 = 184, 56
        e(f'v_bfe_u32 v8, v{V_LANE}, 2, 2\nv_lshl_add_u32 v8, v{V_Q}, 3, v8\nv_lshlrev_b32 v8, 6, v8')
        e(f'v_and_b32 v9, 1, v{V_Q}\nv_lshl_add_u32 v8, v9, 5, v8\nv_and_b32 v9, 3, v{V_LANE}\nv_lshl_add_u32 v8, v9, 3, v8')
        e(f'v_add_u32 v{A0}, {L_WIN}, v8\nv_xor_b32 v{A0+1}, 32, v8\nv_add_u32 v{A0+1}, {L_WIN}, v{A0+1}')
        e(f's_lshl_b32 s{S_W2}, s{S_JC}, 15\ns_lshl_b32 s{t1}, s{S_KB}, 12\ns_add_u32 s{S_W2}, s{S_W2}, s{t1}\ns_lshl_b32 s{t1}, s{S_W}, 10\ns_add_u32 s{S_W2}, s{S_W2}, s{t1}')
        e(f's_add_u32 s{S_W2}, s{S_W2}, {WS_W2F}\ns_add_u32 s{S_W2+1}, s{S_W2}, 16384\ns_cmp_lt_u32 s{S_JC}, 56\ns_cselect_b64 s[58:59], -1, 0')
        npre = self.opt.get('cpre', 90)
        e(consts[:npre])
        setup, pieces = self.wsp_issue(0); e(setup)
        self.ts('pre drain', 'p1')
        e('s_waitcnt vmcnt(4)')
        self.ts('win landed', 'p1')
        e('s_waitcnt vmcnt(0)')
        self.ts('drained'); self.ts('drained', 'p1')
        e('s_barrier')
        self.flag_write(F1)
        order = [(u, n) for u in range(16) for n in range(2)]
        def rdb(i):
            u, n = order[i]
            return [f'ds_read_b64_tr_b16 {vr(XF+4*(i%6),2)}, v{A0+n} offset:{u*2048}',
                    f'ds_read_b64_tr_b16 {vr(XF+4*(i%6)+2,2)}, v{A0+n} offset:{u*2048+256}', ('mark', f'b{i}')]
        accb = lambda c, n, half: ACC + ((c*2 + n)*2 + half)*4
        for i in range(4): e(rdb(i))
        main = []
        for i, (u, n) in enumerate(order):
            for c in range(2):
                A = vr(accb(c, n, u >> 3), 4)
                m = [f'{MF} {A}, {vr(FD+8*(u&7)+4*c,4)}, {vr(XF+4*(i%6),4)}, {A if u & 7 else 0}']
                if c == 0: m = [('wlg', f'b{i}')] + m
                else:
                    if i + 4 < 32: m += rdb(i + 4)
                    if i % 2 == 0: m += pieces[i // 2]
                main.append(m)
        e(spread(main, consts[npre:]))
        for n in range(2):
            for c in range(2):
                for h in (0, 2):
                    lo, hi = vr(accb(c,n,0)+h, 2), vr(accb(c,n,1)+h, 2)
                    e(f'v_pk_add_f32 {lo}, {lo}, {hi} neg_lo:[0,1]')
            for c in range(2):
                for h in range(2): e(f'v_cvt_pk_bf16_f32 v{XF+n*4+c*2+h}, v{accb(c,n,0)+2*h}, v{accb(c,n,0)+2*h+1}')
            e(f's_mov_b64 exec, s[58:59]\nbuffer_store_dwordx4 {vr(XF+n*4,4)}, v{V_L16}, {WSr}, s{S_W2+n} offen sc1\ns_mov_b64 exec, -1'); e.nvm -= 1
        self.ts('W2 stored'); self.ts('W2 stored', 'p1')

    BRE, BIM, GC, GS, GN = 8, 24, 40, 48, 56
    TC1, TS1, TC2, TS2, IDR, IDI = 188, 196, 204, 212, 220, 224
    P2A = 248
    def p2_consts(self):
        BRE, BIM, GC, GS, GN, TC1, TS1, TC2, TS2, IDR, IDI = (self.BRE, self.BIM, self.GC, self.GS, self.GN, self.TC1, self.TS1, self.TC2, self.TS2, self.IDR, self.IDI)
        T = 228; S_16W = 60 if not self.prof else 61
        AWr, AR = self.P2A, self.P2A + 2
        g = lines(f's_lshl_b32 s{S_16W}, s{S_W}, 4\nv_add_u32 v{T}, s{S_16W}, v{V_J}\nv_cvt_f32_u32 v{T}, v{T}')
        g += lines(f'v_lshlrev_b32 v{T+1}, 2, v{V_Q}\nv_cvt_f32_u32 v{T+1}, v{T+1}\nv_mul_f32 v{T+2}, {f32(1/2048)}, v{T}\nv_mul_f32 v{T+3}, v{T+2}, v{T+1}')
        for i in range(8): g.append(f'v_fmamk_f32 v{TC1+i}, v{T+2}, {f32(16*(i>>2)+(i&3))}, v{T+3}')
        for i in range(8): g += [f'v_sin_f32 v{TS1+i}, v{TC1+i}', f'v_cos_f32 v{TC1+i}, v{TC1+i}']
        g += lines(f'v_cvt_f32_u32 v{T+4}, v{V_J}\nv_cvt_f32_u32 v{T+5}, s{S_16W}\nv_add_f32 v{T+5}, v{T+5}, v{T+1}')
        for t in range(2):
            g += lines(f'v_add_f32 v{T+2}, {f32(16.0*t)}, v{T+4}\nv_mul_f32 v{T+2}, {f32(1/2048)}, v{T+2}\nv_mul_f32 v{T+3}, v{T+2}, v{T+5}')
            for r in range(4): g.append(f'v_fmamk_f32 v{TC2+4*t+r}, v{T+2}, {f32(r)}, v{T+3}')
        for i in range(8): g += [f'v_sin_f32 v{TS2+i}, v{TC2+i}', f'v_cos_f32 v{TC2+i}, v{TC2+i}']
        g.append(f'v_mov_b32 v{T+2}, {f32(1/2048)}')
        for i in range(0, 16, 2): g.append(f'v_pk_mul_f32 {vr(TC2+i,2)}, {vr(TC2+i,2)}, {vr(T+2,2)} op_sel_hi:[1,0]')
        g += lines(f'v_lshlrev_b32 v{T+6}, 2, v{V_Q}\nv_sub_u32 v{T+6}, v{V_J}, v{T+6}\nv_mov_b32 v{T+7}, 0x3f80')
        for i in range(4):
            g += [f'v_cmp_eq_u32 vcc, {i}, v{T+6}', f'v_or_b32 v{T+8}, {4*i}, v{V_Q}', f'v_xor_b32 v{T+8}, v{T+8}, v{V_J}', f'v_cndmask_b32 v{IDR+i}, 0, v{T+7}, vcc',
                  f'v_lshlrev_b32 v{T+8}, 4, v{T+8}', f'v_lshlrev_b32 v{IDI+i}, 16, v{IDR+i}', f'v_lshl_add_u32 v{AR+i}, v{V_J}, 8, v{T+8}']
        for h in range(2):
            g += lines(f'v_lshl_add_u32 v{T+8}, s{S_W}, 3, v{V_Q}\nv_add_u32 v{T+8}, {4*h}, v{T+8}\nv_xor_b32 v{T+9}, v{T+8}, v{V_J}\nv_and_b32 v{T+9}, 15, v{T+9}')
            g += lines(f'v_lshlrev_b32 v{T+9}, 4, v{T+9}\nv_lshl_add_u32 v{AWr+h}, v{T+8}, 8, v{T+9}')
        g += lines(f'v_mul_f32 v{T+2}, {f32(1/64)}, v{T}\nv_mul_f32 v{T+3}, v{T+2}, v{T+1}')
        for u in range(4):
            for i in range(4): g.append(f'v_fmamk_f32 v{T+8+i}, v{T+2}, {f32(16*u+i)}, v{T+3}')
            for i in range(4): g += [f'v_sin_f32 v{T+12+i}, v{T+8+i}', f'v_cos_f32 v{T+8+i}, v{T+8+i}']
            for i in range(4):
                g += [f'v_cvt_pk_bf16_f32 v{BRE+4*u+i}, v{T+8+i}, v{T+12+i}', f'v_cvt_pk_bf16_f32 v{BIM+4*u+i}, -v{T+12+i}, v{T+8+i}']
        for m in range(2):
            g += lines(f'v_add_f32 v{T+2}, {f32(16.0*m)}, v{T+4}\nv_mul_f32 v{T+2}, {f32(1/32)}, v{T+2}\nv_mul_f32 v{T+3}, v{T+2}, v{T+1}')
            for hh in range(2):
                for i in range(4): g.append(f'v_fmamk_f32 v{T+8+i}, v{T+2}, {f32(16*hh+i)}, v{T+3}')
                for i in range(4): g += [f'v_sin_f32 v{T+12+i}, v{T+8+i}', f'v_cos_f32 v{T+8+i}, v{T+8+i}']
                for i in range(2):
                    o = 4*m + 2*hh + i
                    g += [f'v_cvt_pk_bf16_f32 v{GC+o}, v{T+8+2*i}, v{T+9+2*i}', f'v_cvt_pk_bf16_f32 v{GS+o}, v{T+12+2*i}, v{T+13+2*i}',
                          f'v_cvt_pk_bf16_f32 v{GN+o}, -v{T+12+2*i}, -v{T+13+2*i}']
        return g

    def p2(self):
        e = self.e
        BRE, BIM, GC, GS, GN, TC1, TS1, TC2, TS2, IDR, IDI = (self.BRE, self.BIM, self.GC, self.GS, self.GN, self.TC1, self.TS1, self.TC2, self.TS2, self.IDR, self.IDI)
        XR, WT, SG, AF, AO, D0, D1, XD = 64, 72, 80, 96, 128, 136, 152, 168
        AWr, AR = self.P2A, self.P2A + 2
        AP, AOa, ASg, AEX, AOB = 88, 89, 90, 91, 92
        S_X, S_WT, S_SG, S_HT, S_NY = 52, 53, 54, 55, 56
        e(('mark', 'w2st'))
        e(f's_lshr_b32 s{t1}, s2, 6\ns_lshl_b32 s{t2}, s{t1}, 3')
        e(f'v_and_b32 v{AP}, 7, v{V_LANE}\nv_lshrrev_b32 v93, 3, v{V_LANE}\nv_lshl_add_u32 v{AP}, v93, 5, v{AP}\nv_add_u32 v{AP}, s{t2}, v{AP}')
        e(f'v_lshlrev_b32 v{AP}, 7, v{AP}\nv_add_u32 v{AP}, {F1}, v{AP}')
        e(f's_lshl_b32 s{t2}, s{S_W}, 2\nv_or_b32 v93, s{t2}, v{V_Q}\nv_xor_b32 v93, v93, v{V_J}\nv_lshlrev_b32 v93, 4, v93\nv_lshl_add_u32 v{AOa}, v{V_J}, 8, v93')
        e(f's_mul_i32 s{S_HT}, s2, {KS}\ns_lshl_b32 s{t2}, s{S_W}, 11\ns_add_u32 s{S_X}, s{S_HT}, s{t2}\ns_add_u32 s{S_WT}, s{S_X}, {WS_WT}\ns_add_u32 s{S_X}, s{S_X}, {WS_X1T}')
        e(f's_lshl_b32 s{S_SG}, s{t1}, 13\ns_lshl_b32 s{t1}, s{S_W}, 6\ns_add_u32 s{S_SG}, s{S_SG}, s{t1}\ns_add_u32 s{S_SG}, s{S_SG}, {WS_SIG}')
        e(f's_lshl_b32 s{t1}, s{S_W}, 10\ns_add_u32 s{S_HT}, s{S_HT}, s{t1}\ns_add_u32 s{S_HT}, s{S_HT}, {WS_HT}\ns_cmp_eq_u32 s2, 255\ns_cselect_b32 s{S_NY}, 0, -1')
        e(f'v_lshlrev_b32 v{ASg}, 10, v{V_Q}\nv_lshl_add_u32 v{ASg}, v{V_J}, 2, v{ASg}\nv_add_u32 v{AEX}, s{t1}, v{V_L16}')
        e(f'v_lshlrev_b32 v{AOB}, 6, v{V_J}\nv_lshl_add_u32 v{AOB}, v{V_Q}, 3, v{AOB}\nv_add_u32 v{AOB}, s{t1}, v{AOB}')
        L = e.label_name('np')
        e(f's_cmp_eq_u32 s{S_W}, 0\ns_cbranch_scc0 {L}')
        self.poll(AP)
        e(f'{L}:\ns_waitcnt vmcnt(0)\ns_barrier')
        self.ts('F1 seen')
        e(f'buffer_load_dwordx4 {vr(XR,4)}, v{V_L16}, {WSr}, s{S_X} offen sc1')
        e(f'buffer_load_dwordx4 {vr(XR+4,4)}, v{V_L16}, {WSr}, s{S_X} offen offset:1024 sc1')
        e(('mark', 'x1'))
        e(f'buffer_load_dwordx4 {vr(WT,4)}, v{V_L16}, {WSr}, s{S_WT} offen sc1')
        e(f'buffer_load_dwordx4 {vr(WT+4,4)}, v{V_L16}, {WSr}, s{S_WT} offen offset:1024 sc1')
        e(('mark', 'wt'))
        e(f's_add_u32 s{t2}, s{S_SG}, 4096')
        for t in range(2):
            for r in range(4):
                e(f'buffer_load_dword v{SG+4*t+r}, v{ASg}, {WSr}, s{S_SG if t == 0 else t2} offen offset:{256*r} sc1')
        e(('mark', 'sg'))
        self.flag_write(F1B)
        e(self.wsp_read(0)[1:])
        setup, pc = self.wsp_issue(1); e(setup)
        e(('wvm', 'x1'))
        self.ts('X1 landed')
        e(f'ds_write_b128 v{AWr}, {vr(XR,4)} offset:{L_X1C}\nds_write_b128 v{AWr+1}, {vr(XR+4,4)} offset:{L_X1C}')
        e('s_waitcnt lgkmcnt(0)\ns_barrier')
        for u in range(4):
            for t in range(2):
                e(f'ds_read_b128 {vr(AF+(t*4+u)*4,4)}, v{AR+u} offset:{L_X1C+4096*t}'); e(('mark', f'a{t}{u}'))
        for t in range(2): e(f'ds_read_b128 {vr(AO+4*t,4)}, v{AOa} offset:{L_X1C+4096*t}')
        e(pc[0]); e(pc[1])
        dre = lambda base, t: base + 8*t
        dim = lambda base, t: base + 8*t + 4
        for u in range(4):
            for t in range(2):
                e(('wlg', f'a{t}{u}'))
                e(f'{MF} {vr(dre(D0,t),4)}, {vr(AF+(t*4+u)*4,4)}, {vr(BRE+4*u,4)}, {vr(dre(D0,t),4) if u else 0}')
                e(f'{MF} {vr(dim(D0,t),4)}, {vr(AF+(t*4+u)*4,4)}, {vr(BIM+4*u,4)}, {vr(dim(D0,t),4) if u else 0}')
            e(pc[2+u])
        e('s_waitcnt lgkmcnt(0)')
        for t in range(2):
            e(f'{MF} {vr(dre(XD,t),4)}, {vr(AO+4*t,4)}, {vr(IDR,4)}, 0\n{MF} {vr(dim(XD,t),4)}, {vr(AO+4*t,4)}, {vr(IDI,4)}, 0')
        e(pc[6])
        def cmul(src, dst, c, s, conj):
            n1 = 'neg_lo:[1,0,0] neg_hi:[1,0,0]'
            for t in range(2):
                for h in range(0, 4, 2):
                    re, im, o_re, o_im = dre(src,t)+h, dim(src,t)+h, dre(dst,t)+h, dim(dst,t)+h
                    cc, ss = vr(c+4*t+h,2), vr(s+4*t+h,2)
                    e(f'v_pk_mul_f32 {vr(o_re,2)}, {vr(re,2)}, {cc}\nv_pk_mul_f32 {vr(o_im,2)}, {vr(im,2)}, {cc}')
                    e(f'v_pk_fma_f32 {vr(o_re,2)}, {vr(im,2)}, {ss}, {vr(o_re,2)} {n1 if conj else ""}')
                    e(f'v_pk_fma_f32 {vr(o_im,2)}, {vr(re,2)}, {ss}, {vr(o_im,2)} {"" if conj else n1}')
        FR, FI = AF, AF+4
        def pack_rows(src):
            for t in range(2):
                for h in range(2):
                    e(f'v_cvt_pk_bf16_f32 v{FR+2*t+h}, v{dre(src,t)+2*h}, v{dre(src,t)+2*h+1}')
                    e(f'v_cvt_pk_bf16_f32 v{FI+2*t+h}, v{dim(src,t)+2*h}, v{dim(src,t)+2*h+1}')
        cmul(D0, D1, TC1, TS1, False); pack_rows(D1)
        e(pc[7])
        for m in range(2):
            e(f'{MF} {vr(dre(D0,m),4)}, {vr(GC+4*m,4)}, {vr(FR,4)}, 0\n{MF} {vr(dim(D0,m),4)}, {vr(GC+4*m,4)}, {vr(FI,4)}, 0')
        e(pc[8])
        for m in range(2):
            e(f'{MF} {vr(dre(D0,m),4)}, {vr(GS+4*m,4)}, {vr(FI,4)}, {vr(dre(D0,m),4)}\n{MF} {vr(dim(D0,m),4)}, {vr(GN+4*m,4)}, {vr(FR,4)}, {vr(dim(D0,m),4)}')
        e(('wvm', 'wt'))
        for i in range(8): e(f'v_lshlrev_b32 v{XR+i}, 16, v{WT+i}\nv_and_b32 v{WT+i}, 0xffff0000, v{WT+i}')
        cmul(D0, D1, XR, WT, True); pack_rows(D1)
        e(pc[9])
        for t in range(2):
            e(f'{MF} {vr(dre(D0,t),4)}, {vr(FR,4)}, {vr(GC+4*t,4)}, 0\n{MF} {vr(dim(D0,t),4)}, {vr(FI,4)}, {vr(GC+4*t,4)}, 0')
        e(pc[10])
        for t in range(2):
            e(f'{MF} {vr(dre(D0,t),4)}, {vr(FI,4)}, {vr(GN+4*t,4)}, {vr(dre(D0,t),4)}\n{MF} {vr(dim(D0,t),4)}, {vr(FR,4)}, {vr(GS+4*t,4)}, {vr(dim(D0,t),4)}')
        e(('wvm', 'sg'))
        for t in range(2):
            for h in range(0, 4, 2):
                e(f'v_pk_mul_f32 {vr(dre(XD,t)+h,2)}, {vr(dre(XD,t)+h,2)}, {vr(SG+4*t+h,2)}')
                e(f'v_pk_mul_f32 {vr(dim(XD,t)+h,2)}, {vr(dim(XD,t)+h,2)}, {vr(SG+4*t+h,2)} neg_lo:[1,0] neg_hi:[1,0]')
        cmul(D0, D1, TC2, TS2, True)
        for t in range(2):
            for r in range(4): e(f'v_cvt_pk_bf16_f32 v{AO+4*t+r}, v{dre(D1,t)+r}, -v{dim(D1,t)+r}')
            e(f'ds_write_b128 v{AEX}, {vr(AO+4*t,4)} offset:{L_EX+4096*t}')
        e(pc[11])
        e('s_waitcnt lgkmcnt(0)\ns_barrier')
        for u in range(4):
            for t in range(2):
                e(f'ds_read_b128 {vr(AF+(t*4+u)*4,4)}, v{V_L16} offset:{L_EX+4096*t+1024*u}'); e(('mark', f'a{t}{u}'))
        e(pc[12])
        for u in range(4):
            for t in range(2):
                e(('wlg', f'a{t}{u}'))
                e(f'{MF} {vr(dre(XD,t),4)}, {vr(AF+(t*4+u)*4,4)}, {vr(BRE+4*u,4)}, {vr(dre(XD,t),4)}')
                e(f'{MF} {vr(dim(XD,t),4)}, {vr(AF+(t*4+u)*4,4)}, {vr(BIM+4*u,4)}, {vr(dim(XD,t),4)}')
            if u < 3: e(pc[13+u])
        e(f's_add_u32 s{t2}, s{S_HT}, 4096')
        for t in range(2):
            for c in range(2):
                src = XD + 8*t + 4*c; o = D0 + (t*2+c)*2; ng = '-' if c else ''
                e(f'v_cvt_pk_bf16_f32 v{o}, {ng}v{src}, {ng}v{src+1}\nv_cvt_pk_bf16_f32 v{o+1}, {ng}v{src+2}, {ng}v{src+3}')
                if c: e(f'v_and_b32 v{o}, s{S_NY}, v{o}\nv_and_b32 v{o+1}, s{S_NY}, v{o+1}')
                e(f'ds_write_b64 v{AOB}, {vr(o,2)} offset:{L_OB+4096*c+32*t}')
        e('s_waitcnt lgkmcnt(0)')
        e(f'ds_read_b128 {vr(D0+8,4)}, v{AEX} offset:{L_OB}\nds_read_b128 {vr(D0+12,4)}, v{AEX} offset:{L_OB+4096}')
        e(f's_waitcnt lgkmcnt(1)\nbuffer_store_dwordx4 {vr(D0+8,4)}, v{V_L16}, {WSr}, s{S_HT} offen sc1')
        e(f's_waitcnt lgkmcnt(0)\nbuffer_store_dwordx4 {vr(D0+12,4)}, v{V_L16}, {WSr}, s{t2} offen sc1')
        self.ts('HT stored')
        e(self.wsp_read(1))
        e('s_waitcnt vmcnt(0)\ns_barrier')
        self.flag_write(F2)
        self.ts('F2')


    GA = -2*math.sqrt(2/math.pi)*math.log2(math.e); GB = GA*0.044715
    V_KA, V_KB = 14, 30
    def gelu4(self, acc, scale, scale_pair, T):
        out = []; KA, KB = self.V_KA, self.V_KB
        for h in (0, 2):
            a = vr(acc+h, 2)
            out.append(f'v_pk_mul_f32 {a}, {a}, {vr(scale+h,2)}' if scale_pair else f'v_pk_mul_f32 {a}, {a}, {vr(scale,2)} op_sel_hi:[1,0]')
        for h in (0, 2): out.append(f'v_pk_mul_f32 {vr(T+h,2)}, {vr(acc+h,2)}, {vr(acc+h,2)}')
        for h in (0, 2): out.append(f'v_pk_fma_f32 {vr(T+h,2)}, {vr(T+h,2)}, {vr(KB,2)}, {vr(KA,2)} op_sel_hi:[1,0,0]')
        for h in (0, 2): out.append(f'v_pk_mul_f32 {vr(T+h,2)}, {vr(T+h,2)}, {vr(acc+h,2)}')
        for i in range(4): out.append(f'v_exp_f32 v{T+i}, v{T+i}')
        for h in (0, 2): out.append(f'v_pk_add_f32 {vr(T+h,2)}, {vr(T+h,2)}, 1.0 op_sel_hi:[1,0]')
        for i in range(4): out.append(f'v_rcp_f32 v{T+i}, v{T+i}')
        for h in (0, 2): out.append(f'v_pk_mul_f32 {vr(acc+h,2)}, {vr(acc+h,2)}, {vr(T+h,2)}')
        return out
    @staticmethod
    def zip2(a, b):
        out = []
        for i in range(max(len(a), len(b))): out += a[i:i+1] + b[i:i+1]
        return out

    S_P4, S_TL = 52, 53
    def w2_dma(self, n):
        return [f's_lshl_b32 s{t3}, s{S_W}, 12', f's_add_u32 m0, s{t3}, {L_W2+n*16384}', f's_add_u32 s{t3}, s{t3}, s{self.S_TL+n}'] + \
               [f'buffer_load_dwordx4 v{V_L16}, {WSr}, s{t3} offen offset:{1024*i} sc1 lds' for i in range(4)]

    def p4(self):
        e = self.e; S_P4, S_TL = self.S_P4, self.S_TL
        e('s_waitcnt lgkmcnt(0)')
        setup, pc = self.wsp_issue(2); e(setup)
        a = lines(f's_and_b32 s{S_RB4}, s2, 7\ns_lshl_b32 s{S_RB4}, s{S_RB4}, 1\ns_bfe_u32 s{t0}, s2, 0x10003\ns_or_b32 s{S_RB4}, s{S_RB4}, s{t0}')
        a += lines(f's_lshr_b32 s{S_J4}, s2, 4\ns_lshr_b32 s{S_M4}, s{S_J4}, 1\ns_mul_i32 s{S_M4}, s{S_M4}, 7\ns_and_b32 s{S_P4}, s{S_J4}, 1\ns_lshl_b32 s{S_P4}, s{S_P4}, 2')
        a += lines(f's_add_u32 s{t0}, s{S_P4}, 56\ns_mul_i32 s{t1}, s{S_P4}, 14\ns_sub_u32 s{t1}, 56, s{t1}\ns_sub_u32 s{t2}, s{S_P4}, 4')
        a += lines(f'v_lshrrev_b32 v8, 2, v{V_LANE}\nv_min_u32 v8, 6, v8\nv_mov_b32 v9, s{t2}\nv_mov_b32 v10, s{t1}\nv_cmp_eq_u32 vcc, 3, v8\nv_mov_b32 v11, s{t0}\ns_nop 0\nv_cndmask_b32 v9, v9, v10, vcc')
        a += lines(f'v_cmp_gt_u32 vcc, 3, v8\ns_nop 1\nv_cndmask_b32 v9, v9, v11, vcc\nv_add3_u32 v8, v8, v9, s{S_M4}\nv_lshrrev_b32 v8, 1, v8')
        a += lines(f'v_and_b32 v9, 7, v8\nv_lshrrev_b32 v8, 3, v8\nv_lshl_add_u32 v9, v9, 5, v8\nv_and_b32 v8, 3, v{V_LANE}\nv_lshl_add_u32 v9, v8, 3, v9')
        a += lines(f'v_lshlrev_b32 v9, 7, v9\nv_add_u32 v15, {F1B}, v9')
        for n, o in enumerate([t0, t0, t0, t1, t2, t2, t2]):
            a += lines(f's_add_u32 s{S_TL+n}, s{S_M4}, s{o}\ns_add_u32 s{S_TL+n}, s{S_TL+n}, {n}\ns_lshl_b32 s{S_TL+n}, s{S_TL+n}, 14\ns_add_u32 s{S_TL+n}, s{S_TL+n}, {WS_W2F}')
        AG, AWr, AR, AB2 = 8, 9, 10, 12
        a += lines(f's_mul_i32 s{t0}, s{S_W}, {4*KS}\ns_lshl_b32 s{t1}, s{S_RB4}, 8\ns_add_u32 s{t0}, s{t0}, s{t1}')
        a += lines(f'v_mul_u32_u24 v{AG}, {KS}, v{V_Q}\nv_lshl_add_u32 v{AG}, v{V_J}, 4, v{AG}\nv_add_u32 v{AG}, s{t0}, v{AG}')
        a += lines(f's_and_b32 s{t0}, s{S_W}, 1\nv_lshl_add_u32 v16, v{V_Q}, 1, s{t0}\nv_lshlrev_b32 v16, 1, v16\nv_xor_b32 v16, v16, v{V_J}\nv_lshlrev_b32 v16, 4, v16')
        a += lines(f's_lshl_b32 s{t0}, s{S_W}, 10\ns_add_u32 s{t0}, s{t0}, {L_RING}\nv_lshl_add_u32 v{AWr}, v{V_Q}, 8, v16\nv_add_u32 v{AWr}, s{t0}, v{AWr}')
        a += lines(f'v_bfe_u32 v16, v{V_LANE}, 2, 2\nv_and_b32 v17, 1, v{V_Q}\nv_lshl_add_u32 v17, v16, 1, v17\ns_lshl_b32 s{t0}, s{S_W}, 1\nv_xor_b32 v17, s{t0}, v17')
        a += lines(f'v_lshl_add_u32 v16, v{V_Q}, 2, v16\nv_lshlrev_b32 v16, 8, v16\nv_lshl_add_u32 v16, v17, 5, v16\nv_and_b32 v17, 3, v{V_LANE}\nv_lshl_add_u32 v16, v17, 3, v16')
        a += lines(f'v_add_u32 v{AR}, {L_RING}, v16\nv_xor_b32 v16, 32, v16\nv_add_u32 v{AR+1}, {L_RING}, v16\nv_add_u32 v{AB2}, 0x10000, v{V_L16}')
        a += lines(f'v_mov_b32 v{self.V_KA}, {f32(self.GA)}\nv_mov_b32 v{self.V_KB}, {f32(self.GB)}')
        a += lines(f'v_lshrrev_b32 v16, 2, v{V_LANE}\nv_lshlrev_b32 v16, 4, v16\nv_and_b32 v17, 3, v{V_LANE}\ns_lshl_b32 s{t0}, s{S_W}, 2\nv_add3_u32 v16, v16, v17, s{t0}')
        a += lines(f'v_lshlrev_b32 v16, 7, v16\nv_add_u32 v16, {F2}, v16')
        a += lines(f'v_lshrrev_b32 v17, 1, v{V_J}\nv_mul_u32_u24 v17, 1040, v17\nv_and_b32 v18, 1, v{V_J}\nv_lshl_add_u32 v17, v18, 9, v17\nv_lshl_add_u32 v17, v{V_Q}, 3, v17')
        a += lines(f's_mul_i32 s{t0}, s{S_W}, 8320\ns_add_u32 s{t0}, s{t0}, {L_RING}\nv_add_u32 v31, s{t0}, v17')
        a += lines(f'v_lshrrev_b32 v17, 5, v{V_LANE}\nv_lshlrev_b32 v17, 12, v17\nv_and_b32 v18, 31, v{V_LANE}\nv_lshl_add_u32 v5, v18, 4, v17')
        e(spread(a, pc))
        e(f's_mul_i32 s{t0}, s2, 3584\nv_lshlrev_b32 v17, 7, v{V_LANE}\ns_cmp_eq_u32 s{S_W}, 3\ns_cselect_b32 exec_lo, 0xfffffff, 0\ns_mov_b32 exec_hi, 0')
        e(f'buffer_load_dword v18, v17, {sr(SWOUT,4)}, s{t0} offen\ns_mov_b64 exec, -1'); e.nvm -= 1
        self.poll(15)
        self.ts('F1B seen')
        for n in range(4): e(self.w2_dma(n))
        e(self.wsp_read(2)[1:])
        self.ts('pre F2 poll')
        self.poll(16)
        self.ts('F2 seen')
        for sg in range(3): e(self.h_loads(sg))
        e('s_waitcnt lgkmcnt(0)\ns_barrier')
        LP = e.label_name('par1'); LJ = e.label_name('p4join')
        e(f's_cmp_lg_u32 s{S_P4}, 0\ns_cbranch_scc1 {LP}')
        nv, nt = e.nvm, self.nts
        self.p4_body(0); e(f's_branch {LJ}\n{LP}:')
        e.nvm = nv; self.nts = nt; self.names = self.names[:nt]
        self.p4_body(1); e(f'{LJ}:')
        self.p4_h()

    def h_loads(self, sg):
        out = []
        for v in range(2):
            for c in range(2):
                out += [f's_mov_b32 s{t0}, {WS_HT + (32*sg+16*v)*KS + c*4096}', f'buffer_load_dwordx4 {vr(128+sg*16+(v*2+c)*4,4)}, v8, {WSr}, s{t0} offen sc1']
        return out + [('mark', f'h{sg}')]

    def p4_body(self, par):
        e = self.e
        AG, AWr, AR, AB2 = 8, 9, 10, 12
        AF, ZA, Z1, SQ, DG, BF, T = 128, 64, 96, 112, 56, 32, 16
        nz2, nz1 = 4 - par, 3 + par
        af = lambda u, tau: AF + (u*2 + tau)*4
        za = lambda n, tau: ZA + (n*2 + tau)*4
        def bread(dst, slot, u):
            return (f'ds_read_b128 {vr(dst,4)}, v{V_L16} offset:{slot*16384+u*1024}' if slot < 4 else
                    f'ds_read_b128 {vr(dst,4)}, v{AB2} offset:{(slot-4)*16384+u*1024}')
        items = [(u, n) for u in range(16) for n in range(nz2)]
        LA = 4
        rdi = lambda i: [bread(BF+4*(i % 6), items[i][1], items[i][0]), ('mark', f'bf{i}')]
        def block(sg):
            groups = []
            for i, (u, n) in enumerate(items):
                if u >> 1 != sg: continue
                g = []
                if n == 0:
                    if u & 1 == 0: g.append(('wlg', f'tr{sg}'))
                    g += [f'{MF} {vr(DG+4*tau,4)}, {vr(af(u,tau),4)}, {vr(af(u,tau),4)}, {vr(DG+4*tau,4) if u else 0}' for tau in range(2)]
                g.append(('wlg', f'bf{i}'))
                g += [f'{MF} {vr(za(n,tau),4)}, {vr(af(u,tau),4)}, {vr(BF+4*(i%6),4)}, {vr(za(n,tau),4) if u else 0}' for tau in range(2)]
                if i + LA < len(items): g += rdi(i + LA)
                groups.append(g)
            return groups
        z1dma = [self.w2_dma(n) for n in range(4, 7)]
        for sg in range(9):
            prev = block(sg - 1) if sg else []
            half = len(prev) // 2
            if sg < 8:
                e(('wvm', f'h{sg}'))
                for v in range(2):
                    for c in range(2):
                        e(f'ds_write_b128 v{AWr}, {vr(AF+sg*16+(v*2+c)*4,4)} offset:{(sg&1)*16384+(v*32+c*16)*256}')
                e(('mark', f'hw{sg}'))
                nxt = self.h_loads(sg + 3) if sg + 3 < 8 else z1dma[sg - 5]
                if sg == 0:
                    for i in range(LA): e(rdi(i))
                e(spread(prev[:half], nxt) if prev else nxt)
                e(('wlg', f'hw{sg}')); e('s_barrier')
                for v in range(2):
                    for tau in range(2):
                        for c in range(2):
                            e(f'ds_read_b64_tr_b16 {vr(af(2*sg+v,tau)+2*c,2)}, v{AR+tau} offset:{(sg&1)*16384+(v*32+c*16)*256}')
                e(('mark', f'tr{sg}'))
                e(prev[half:])
            else:
                e(prev)
            if sg in (0, 3, 7): self.ts(f'stage {sg}', 'p4')
        e(('mark', 'w2z1'))
        self.ts('stream done'); self.ts('stream done', 'p4')
        ASM = 13; RLt = [26, 28]
        e(f's_lshl_b32 s{t0}, s{S_W}, 10\ns_add_u32 s{t0}, s{t0}, {L_SM}\nv_lshl_add_u32 v{ASM}, v{V_Q}, 4, s{t0}\nv_lshl_add_u32 v{T}, v{V_J}, 2, s{t0}')
        for r in range(4):
            e(set_exec(diag_mask(r)))
            for tau in range(2): e(f'ds_write_b32 v{ASM}, v{DG+4*tau+r} offset:{64*tau+4*r}')
        e('s_mov_b64 exec, -1\ns_waitcnt lgkmcnt(0)')
        for tau in range(2):
            e(f'ds_read_b128 {vr(DG+4*tau,4)}, v{ASM} offset:{64*tau}\nds_read_b32 v{RLt[tau]}, v{T} offset:{64*tau}')
        e(f's_or_b32 s{t1}, s2, s{S_W}\ns_cmp_eq_u32 s{t1}, 0\ns_cselect_b32 exec_lo, 1, 0\ns_mov_b32 exec_hi, 0\nv_mov_b32 v6, s{S_TAG}\nv_mov_b32 v7, 0')
        e(f'buffer_store_dword v6, v7, {WSr}, 0 offen offset:{WS_EPOCH} sc1\ns_mov_b64 exec, -1'); e.nvm -= 1
        e(f'v_mov_b32 v{T+2}, {f32(1/512)}\nv_mov_b32 v{T+4}, {f32(1e-5)}\ns_waitcnt lgkmcnt(0)')
        for i in range(0, 8, 2): e(f'v_pk_fma_f32 {vr(DG+i,2)}, {vr(DG+i,2)}, {vr(T+2,2)}, {vr(T+4,2)} op_sel_hi:[1,0,0]')
        for rg in RLt: e(f'v_fma_f32 v{rg}, v{rg}, v{T+2}, v{T+4}')
        for rg in [DG+i for i in range(8)] + RLt: e(f'v_rsq_f32 v{rg}, v{rg}')
        self.ts('rh', 'p4')
        for n in range(nz2):
            e(self.zip2(self.gelu4(za(n,0), DG, True, T), self.gelu4(za(n,1), DG+4, True, T+4)))
            for tau in range(2):
                for h in (0, 2):
                    a = vr(za(n,tau)+h, 2); sS = vr(SQ+4*tau+h, 2); sQ = vr(SQ+8+4*tau+h, 2)
                    if n == 0: e(f'v_pk_mul_f32 {sQ}, {a}, {a}')
                    elif n == 1: e(f'v_pk_add_f32 {sS}, {vr(za(0,tau)+h,2)}, {a}\nv_pk_fma_f32 {sQ}, {a}, {a}, {sQ}')
                    else: e(f'v_pk_add_f32 {sS}, {sS}, {a}\nv_pk_fma_f32 {sQ}, {a}, {a}, {sQ}')
        self.ts('z2 gelu', 'p4')
        for sh in (8, 4, 2, 1):
            for i in range(16): e(f'v_add_f32_dpp v{SQ+i}, v{SQ+i}, v{SQ+i} row_ror:{sh} row_mask:0xf bank_mask:0xf')
        e(set_exec(0x0001000100010001))
        for kind in range(2):
            for tau in range(2): e(f'ds_write_b128 v{ASM}, {vr(SQ+8*kind+4*tau,4)} offset:{128+128*kind+64*tau}')
        S_ST = 53
        e(f's_mov_b64 exec, -1\nv_and_b32 v{T}, 31, v{V_LANE}\nv_lshl_add_u32 v{T+1}, v{T}, 2, s{t0}')
        e(f'v_mov_b32 v{T+5}, s{S_TAG}\nv_mov_b32 v{T+7}, s{S_TAG}\nv_lshlrev_b32 v{T}, 4, v{T}\ns_waitcnt lgkmcnt(0)')
        e(f'ds_read_b32 v{T+4}, v{T+1} offset:128\nds_read_b32 v{T+6}, v{T+1} offset:256')
        e(f's_lshl_b32 s{S_ST}, s{S_RB4}, 15\ns_lshl_b32 s{t1}, s{S_W}, 9\ns_add_u32 s{S_ST}, s{S_ST}, s{t1}\ns_add_u32 s{S_ST}, s{S_ST}, {WS_STAT}')
        e(f's_lshl_b32 s{t1}, s{S_J4}, 11\ns_add_u32 s{t1}, s{t1}, s{S_ST}')
        e(f's_waitcnt lgkmcnt(0)\ns_mov_b32 exec_hi, 0\nbuffer_store_dwordx4 {vr(T+4,4)}, v{T}, {WSr}, s{t1} offen sc1\ns_mov_b32 exec_hi, -1')
        self.ts('stats out'); self.ts('stats out', 'p4')
        AST, S_Z1 = 13, 54
        e(f'v_lshrrev_b32 v{T+1}, 5, v{V_LANE}\nv_lshl_add_u32 v{AST}, v{T+1}, 11, v{T}\nv_lshlrev_b32 v{AG}, 3, v{V_LANE}')
        e(f's_lshl_b32 s{S_Z1}, s{S_RB4}, 3\ns_lshl_b32 s{t1}, s{S_W}, 1\ns_add_u32 s{S_Z1}, s{S_Z1}, s{t1}\ns_mul_i32 s{S_Z1}, s{S_Z1}, 56\ns_add_u32 s{S_Z1}, s{S_Z1}, s{S_M4}')
        e(f's_add_u32 s{S_Z1}, s{S_Z1}, {3*par}\ns_lshl_b32 s{S_Z1}, s{S_Z1}, 9\ns_add_u32 s{S_Z1}, s{S_Z1}, {WS_Z1F}\ns_add_u32 s{S_Z1+1}, s{S_Z1}, {56*512}')
        sA, pA = self.wsph_issue(0, 5); sB, pB = self.wsph_issue(1, 5)
        e(sA); e(('wvm', 'w2z1')); e('s_barrier')
        zit = [(n, u) for n in range(nz1) for u in range(16)]
        rdz = lambda i: [bread(BF+4*(i % 6), nz2+zit[i][0], zit[i][1]), ('mark', f'c{i}')]
        def z1fin(n):
            b = Z1 + 8*(n & 1); o = self.zip2(self.gelu4(b, RLt[0], False, T), self.gelu4(b+4, RLt[1], False, T+4))
            for tau in range(2):
                o += [f'v_cvt_pk_bf16_f32 v{T+2*tau}, v{b+4*tau}, v{b+4*tau+1}', f'v_cvt_pk_bf16_f32 v{T+2*tau+1}, v{b+4*tau+2}, v{b+4*tau+3}',
                      f'buffer_store_dwordx2 {vr(T+2*tau,2)}, v{AG}, {WSr}, s{S_Z1+tau} offen offset:{512*n} sc1']
            return o
        for i in range(LA): e(rdz(i))
        for n in range(nz1):
            main = []
            for u in range(16):
                i = n*16 + u
                for tau in range(2):
                    acc = vr(Z1+8*(n&1)+4*tau, 4)
                    m = [f'{MF} {acc}, {vr(BF+4*(i%6),4)}, {vr(af(u,tau),4)}, {acc if u else 0}']
                    if tau == 0: m = [('wlg', f'c{i}')] + m
                    elif i + LA < len(zit): m += rdz(i + LA)
                    main.append(m)
            fill = z1fin(n-1) if n else pA
            if n == 2: fill = self.wsph_read(0) + [('mark', 'hA')] + fill[:24] + [('wlg', 'hA')] + sB + pB[:4] + fill[24:] + pB[4:]
            e(spread(main, fill, 4 if n else 0))
        e(z1fin(nz1-1))
        self.ts('z1 done'); self.ts('z1 done', 'p4')
        GR = BF
        L = e.label_name('sp'); Dn = e.label_name('spd')
        e(f's_mov_b32 s{t0}, 0\n{L}:')
        for i in range(8):
            e(f's_add_u32 s{t1}, s{S_ST}, {i*4096}\nbuffer_load_dwordx4 {vr(GR+4*i,4)}, v{AST}, {WSr}, s{t1} offen sc1')
        e(f's_add_u32 s{t0}, s{t0}, 1\ns_cmp_ge_u32 s{t0}, {SPIN_MAX}\ns_cbranch_scc1 {Dn}\ns_waitcnt vmcnt(0)')
        e(f'v_xor_b32 v{T}, s{S_TAG}, v{GR+1}\nv_xor_b32 v{T+1}, s{S_TAG}, v{GR+3}')
        for i in range(1, 8):
            e(f'v_xor_b32 v{T+2}, s{S_TAG}, v{GR+4*i+1}\nv_xor_b32 v{T+3}, s{S_TAG}, v{GR+4*i+3}\nv_or3_b32 v{T+(i&1)}, v{T+(i&1)}, v{T+2}, v{T+3}')
        e(f'v_or_b32 v{T}, v{T}, v{T+1}\nv_cmp_ne_u32 vcc, 0, v{T}\ns_cbranch_vccnz {L}\n{Dn}:\ns_waitcnt vmcnt(0)')
        self.ts('stats in'); self.ts('stats in', 'p4')
        e(f's_lshl_b32 s{t0}, s{S_W}, 10\ns_add_u32 s{t0}, s{t0}, {L_SM}')
        for st in (4, 2, 1):
            for i in range(st): e(f'v_add_f32 v{GR+4*i}, v{GR+4*i}, v{GR+4*(i+st)}\nv_add_f32 v{GR+4*i+2}, v{GR+4*i+2}, v{GR+4*(i+st)+2}')
        e(f'v_mov_b32 v{GR+1}, v{GR}\nv_mov_b32 v{GR+3}, v{GR+2}\nv_and_b32 v{T}, 31, v{V_LANE}\nv_lshl_add_u32 v{T}, v{T}, 2, s{t0}')
        e(f'v_permlane32_swap_b32 v{GR}, v{GR+1}\nv_permlane32_swap_b32 v{GR+2}, v{GR+3}\nv_lshl_add_u32 v{T+1}, v{V_Q}, 4, s{t0}')
        e(f'v_add_f32 v{GR}, v{GR}, v{GR+1}\nv_add_f32 v{GR+2}, v{GR+2}, v{GR+3}')
        e(f'v_mul_f32 v{GR}, {f32(1/896)}, v{GR}\nv_mul_f32 v{GR+2}, {f32(1/896)}, v{GR+2}')
        e(f'v_fma_f32 v{GR+2}, -v{GR}, v{GR}, v{GR+2}\nv_max_f32 v{GR+2}, 0, v{GR+2}\nv_add_f32 v{GR+2}, {f32(1e-5)}, v{GR+2}\nv_rsq_f32 v{GR+2}, v{GR+2}')
        e(f'v_mul_f32 v{GR}, -v{GR}, v{GR+2}')
        e(f'ds_write_b32 v{T}, v{GR+2} offset:512\nds_write_b32 v{T}, v{GR} offset:384')
        e(f's_add_u32 s{t0}, s{S_M4}, {4*par}\ns_lshl_b32 s{t0}, s{t0}, 6\ns_lshl_b32 s{t1}, s{S_RB4}, 2\ns_add_u32 s{t0}, s{t0}, s{t1}\ns_add_u32 s{t0}, s{t0}, s{S_W}')
        e(f's_lshl_b32 s{t0}, s{t0}, 10\ns_add_u32 s{t0}, s{t0}, {WS_Z2F}\ns_waitcnt lgkmcnt(0)')
        for tau in range(2):
            for kind in range(2): e(f'ds_read_b128 {vr(SQ+8*kind+4*tau,4)}, v{T+1} offset:{384+128*kind+64*tau}')
        e('s_waitcnt lgkmcnt(0)')
        for n in range(nz2):
            for tau in range(2):
                for h in (0, 2):
                    a = vr(za(n,tau)+h, 2)
                    e(f'v_pk_fma_f32 {a}, {a}, {vr(SQ+8+4*tau+h,2)}, {vr(SQ+4*tau+h,2)}')
            for tau in range(2):
                for h in (0, 2): e(f'v_cvt_pk_bf16_f32 v{BF+4*n+2*tau+h//2}, v{za(n,tau)+h}, v{za(n,tau)+h+1}')
            e(f'buffer_store_dwordx4 {vr(BF+4*n,4)}, v{V_L16}, {WSr}, s{t0} offen sc1')
            if n + 1 < nz2: e(f's_add_u32 s{t0}, s{t0}, 65536')
        self.ts('z2 stored'); self.ts('z2 stored', 'p4')

    def h_gen(self):
        AF = 128; af = lambda u, tau: AF + (u*2 + tau)*4
        DF, M, PH, ACC, FR = 10, 12, 20, 96, 112
        P = {n: [64+16*n, 72+16*n] for n in range(2)}
        pre = lines(f's_lshl_b32 s{t0}, s{S_J4}, 5\nv_lshrrev_b32 v{PH}, 2, v{V_J}\nv_lshlrev_b32 v{PH}, 3, v{PH}\nv_and_b32 v{PH+1}, 3, v{V_J}\nv_add3_u32 v{PH}, v{PH}, v{PH+1}, s{t0}')
        pre += lines(f'v_lshl_add_u32 v{PH+2}, v{V_Q}, 2, 1\nv_cvt_f32_u32 v{PH+2}, v{PH+2}\nv_mov_b32 v{PH+6}, {f32(1/16)}')
        for n in range(2):
            pre += lines(f'v_add_u32 v{PH+1}, {4*n}, v{PH}\nv_cvt_f32_u32 v{DF+n}, v{PH+1}\nv_mul_f32 v{DF+n}, {f32(1/512)}, v{DF+n}')
            pre += lines(f'v_mul_f32 v{M+2*n}, {f32(16.0)}, v{DF+n}\nv_mul_f32 v{PH+3}, v{PH+2}, v{DF+n}\nv_cos_f32 v{M+2*n}, v{M+2*n}')
            for u in range(2):
                for r in range(4): pre.append(f'v_fmamk_f32 v{P[n][u]+r}, v{DF+n}, {f32(16*u+r)}, v{PH+3}')
            pre.append(f'v_add_f32 v{M+2*n}, v{M+2*n}, v{M+2*n}')
            for u in range(2):
                for r in range(4): pre += [f'v_sin_f32 v{P[n][u]+4+r}, v{P[n][u]+r}', f'v_cos_f32 v{P[n][u]+r}, v{P[n][u]+r}']
        pre += lines(f'v_mov_b32 v{PH+4}, 1.0\nv_mov_b32 v{PH+5}, {f32(1/math.sqrt(2))}\nv_cmp_eq_u32 vcc, 3, v{V_Q}\ns_nop 1\nv_cndmask_b32 v{PH+4}, v{PH+4}, v{PH+5}, vcc')
        main = []
        for u in range(16):
            for n in range(2):
                g = []
                if u >= 2:
                    prev, cur = P[n]
                    g += [f'v_pk_fma_f32 {vr(prev+i,2)}, {vr(cur+i,2)}, {vr(M+2*n,2)}, {vr(prev+i,2)} op_sel_hi:[1,0,1] neg_lo:[0,0,1] neg_hi:[0,0,1]' for i in range(0, 8, 2)]
                    P[n] = [cur, prev]
                src = P[n][0] if u == 0 else P[n][1]
                if u == 15: g.append(f'v_mul_f32 v{src+3}, v{src+3}, v{PH+4}')
                fr = FR + ((u*2+n) % 4)*4
                g += [f'v_cvt_pk_bf16_f32 v{fr+i}, {"-" if i > 1 else ""}v{src+2*i}, {"-" if i > 1 else ""}v{src+2*i+1}' for i in range(4)]
                mm = [f'{MF} {vr(ACC+(tau*2+n)*4,4)}, {vr(fr,4)}, {vr(af(u,tau),4)}, {vr(ACC+(tau*2+n)*4,4) if u else 0}' for tau in range(2)]
                main.append((g, mm))
        return pre, main, (PH+6, ACC, FR)

    def p4_h(self):
        e = self.e
        pre, main, (SC, ACC, FR) = self.h_gen()
        MN = 8
        e(('mark', 'z2st'))
        e(self.wsph_read(1)[1:])
        e(f's_lshl_b32 s{t0}, s{S_RB4}, 2\ns_add_u32 s{t0}, s{t0}, s{S_W}\ns_lshl_b32 s{t0}, s{t0}, 2\ns_add_u32 s{t0}, s{t0}, {WS_MEAN}\ns_add_u32 s{t1}, s{t0}, 4096\nv_lshlrev_b32 v18, 8, v{V_J}')
        for tau in range(2): e(f'buffer_load_dword v{MN+tau}, v18, {WSr}, s{t0+tau} offen sc1')
        e(('mark', 'mn'))
        e(pre)
        e(f'v_lshrrev_b32 v16, 3, v{V_LANE}\nv_and_b32 v17, 7, v{V_LANE}\nv_and_b32 v18, 6, v16\nv_xor_b32 v17, v17, v18\nv_lshlrev_b32 v16, 10, v16\nv_lshl_add_u32 v16, v17, 4, v16')
        e(f's_mul_i32 s{S_DO}, s{S_W}, {224*1024}\ns_lshl_b32 s{t1}, s{S_FB}, 7\ns_add_u32 s{S_DO}, s{S_DO}, s{t1}\ns_mul_i32 m0, s{S_W}, {224*128}')
        e(('wvm', 'z2st')); e('s_barrier')
        self.flag_write(F4)
        self.ts('F4'); self.ts('F4', 'p4')
        dma = [[f'buffer_load_dwordx4 v16, {sr(SWOUT,4)}, s{S_DO} offen lds'] + (['s_add_u32 m0, m0, 1024', f's_add_u32 s{S_DO}, s{S_DO}, 8192'] if i < 27 else []) for i in range(28)]
        e(main[0][0])
        for i, (g, mm) in enumerate(main):
            nx = main[i+1][0] if i + 1 < len(main) else []
            e(mm[0]); e(nx[:len(nx)//2]); e(mm[1]); e(nx[len(nx)//2:])
            if i < 28: e(dma[i])
        e(f's_lshl_b32 s{t0}, s{S_RB4}, 3\ns_lshl_b32 s{t1}, s{S_W}, 1\ns_add_u32 s{t0}, s{t0}, s{t1}\ns_lshl_b32 s{t0}, s{t0}, 4\ns_add_u32 s{t0}, s{t0}, s{S_J4}')
        e(f's_lshl_b32 s{t0}, s{t0}, 10\ns_add_u32 s{t0}, s{t0}, {WS_HF}\ns_add_u32 s{t1}, s{t0}, 16384')
        e(('wvm', 'mn'))
        for tau in range(2):
            for i in range(8): e(f'v_fma_f32 v{ACC+8*tau+i}, v{ACC+8*tau+i}, v{SC}, v{MN+tau}')
            for i in range(4): e(f'v_cvt_pk_bf16_f32 v{FR+4*tau+i}, v{ACC+8*tau+2*i}, v{ACC+8*tau+2*i+1}')
            e(f'buffer_store_dwordx4 {vr(FR+4*tau,4)}, v{V_L16}, {WSr}, s{t0+tau} offen sc1')
        self.ts('h stored'); self.ts('h stored', 'p4')

    def p5(self):
        e = self.e
        RD = 16; PRE = self.opt.get('pre5', 12)
        RING, AC, RR, Z1, PK, BI, T = 64, 32, 128, 144, 160, 8, 16
        AWr, ARd, A8 = 10, 11, 12
        S_Z, S_P = 52, 53
        e(f'v_lshrrev_b32 v{T}, 1, v{V_LANE}\ns_lshl_b32 s{t0}, s{S_W}, 2\nv_add_u32 v{T}, s{t0}, v{T}\ns_lshr_b32 s{t0}, s{S_TB}, 1\nv_mov_b32 v{T+1}, s{t0}')
        e(f'v_cmp_gt_u32 vcc, 8, v{V_LANE}\nv_cndmask_b32 v{T}, v{T+1}, v{T}, vcc')
        e(f'v_lshrrev_b32 v{T+1}, 1, v{T}\nv_and_b32 v{T}, 1, v{T}\nv_lshl_add_u32 v{T}, v{T}, 3, v{T+1}')
        e(f'v_and_b32 v{T+1}, 1, v{V_LANE}\ns_lshl_b32 s{t0}, s{S_FB}, 1\nv_add_u32 v{T+1}, s{t0}, v{T+1}\nv_lshl_add_u32 v{T}, v{T+1}, 4, v{T}')
        e(f'v_lshlrev_b32 v{T}, 7, v{T}\nv_add_u32 v{T}, {F4}, v{T}')
        e(f's_lshl_b32 s{t0}, s{S_TB}, 7\ns_lshl_b32 s{t1}, s{S_W}, 5\ns_add_u32 s{t0}, s{t0}, s{t1}\nv_lshlrev_b32 v{T+1}, 1, v{V_J}')
        e(f'buffer_load_ushort v{BI}, v{T+1}, {sr(SBSP,4)}, s{t0} offen')
        e(f's_lshl_b32 s{t0}, s{S_W}, 12\ns_add_u32 s{t0}, s{t0}, {L_RING}\nv_add_u32 v{AWr}, s{t0}, v{V_L16}')
        e(f's_lshl_b32 s{t0}, s{S_W}, 10\ns_add_u32 s{t0}, s{t0}, {L_RING}\nv_add_u32 v{ARd}, s{t0}, v{V_L16}\nv_lshlrev_b32 v{A8}, 3, v{V_LANE}')
        e(f's_mul_i32 s{S_Z}, s{S_FB}, {7*65536}\ns_lshl_b32 s{t0}, s{S_W}, 14\ns_add_u32 s{S_Z}, s{S_Z}, s{t0}\ns_add_u32 s{S_Z}, s{S_Z}, {WS_Z2F}')
        e(f's_lshl_b32 s{S_P}, s{S_TB}, 3\ns_add_u32 s{S_P}, s{S_P}, s{S_FB}\ns_lshl_b32 s{S_P}, s{S_P}, 2\ns_add_u32 s{S_P}, s{S_P}, s{S_W}\ns_mul_i32 s{S_P}, s{S_P}, 3584\ns_add_u32 s{S_P}, s{S_P}, {WS_PF}')
        e(f's_lshl_b32 s{t2}, s{S_TB}, 2\ns_add_u32 s{t2}, s{t2}, s{S_W}\ns_mul_i32 s{t2}, s{t2}, 56\ns_mul_i32 s{t1}, s{S_FB}, 7\ns_add_u32 s{t2}, s{t2}, s{t1}\ns_lshl_b32 s{t2}, s{t2}, 9\ns_add_u32 s{t2}, s{t2}, {WS_Z1F}')
        self.poll(T)
        self.ts('F4 seen'); self.ts('F4 seen', 'p5')
        def load(i):
            n, ks = divmod(i, 16)
            out = []
            if ks % 4 == 0: out.append(f's_add_u32 s{t3}, s{S_Z}, {n*65536 + ks*1024}')
            out += [f'buffer_load_dwordx4 {vr(RING+4*(i%RD),4)}, v{V_L16}, {WSr}, s{t3} offen offset:{(ks%4)*1024} sc1', ('mark', f'z{i}')]
            return out
        for i in range(PRE): e(load(i))
        for n in range(7): e(f'buffer_load_dwordx2 {vr(Z1+2*n,2)}, v{A8}, {WSr}, s{t2} offen offset:{512*n} sc1')
        e(f'v_lshlrev_b32 v{BI}, 16, v{BI}\ns_waitcnt lgkmcnt(0)\ns_barrier')
        self.flag_write(FH)
        def red_write(m): return [f'ds_write_b128 v{AWr}, {vr(AC+16*(m&1)+4*tau,4)} offset:{(m&1)*16384+tau*1024}' for tau in range(4)]
        def red_read(m): return ['s_waitcnt lgkmcnt(0)', 's_barrier'] + [f'ds_read_b128 {vr(RR+4*w2,4)}, v{ARd} offset:{(m&1)*16384+w2*4096}' for w2 in range(4)]
        def fin(m):
            o = ['s_waitcnt lgkmcnt(0)']
            for h in (0, 2): o += [f'v_pk_add_f32 {vr(RR+h,2)}, {vr(RR+h,2)}, {vr(RR+4+h,2)}', f'v_pk_add_f32 {vr(RR+8+h,2)}, {vr(RR+8+h,2)}, {vr(RR+12+h,2)}']
            for h in (0, 2): o += [f'v_lshlrev_b32 v{T+h}, 16, v{Z1+2*m+h//2}', f'v_and_b32 v{T+h+1}, 0xffff0000, v{Z1+2*m+h//2}']
            for h in (0, 2): o += [f'v_pk_add_f32 {vr(RR+h,2)}, {vr(RR+h,2)}, {vr(RR+8+h,2)}']
            for h in (0, 2): o += [f'v_pk_add_f32 {vr(RR+h,2)}, {vr(RR+h,2)}, {vr(BI,2)} op_sel_hi:[1,0]']
            for h in (0, 2): o += [f'v_pk_mul_f32 {vr(RR+h,2)}, {vr(RR+h,2)}, {vr(T+h,2)}']
            pk = PK + 4*((m >> 1) & 1) + 2*(m & 1)
            o += [f'v_cvt_pk_bf16_f32 v{pk}, v{RR}, v{RR+1}', f'v_cvt_pk_bf16_f32 v{pk+1}, v{RR+2}, v{RR+3}']
            if m == 6: o.append(f'buffer_store_dwordx2 {vr(pk,2)}, v{A8}, {WSr}, s{S_P} offen offset:3072 sc1')
            elif m & 1: o.append(f'buffer_store_dwordx4 {vr(pk-2,4)}, v{V_L16}, {WSr}, s{S_P} offen offset:{(m>>1)*1024} sc1')
            return o
        for n in range(7):
            tail = fin(n-1) if n else []
            for ks in range(16):
                i = n*16 + ks
                e(('wvm', f'z{i}'))
                for tau in range(4):
                    acc = vr(AC+16*(n&1)+4*tau, 4)
                    e(f'{MF} {acc}, {vr(RING+4*(i%RD),4)}, {ar((tau*16+ks)*4,4)}, {acc if ks else 0}')
                    if tau == 1 and i + PRE < 112: e(load(i + PRE))
                if n:
                    if ks == 2: e(red_write(n-1))
                    if ks == 5: e(red_read(n-1))
                    if 8 <= ks < 14: e(tail[(ks-8)*3:(ks-7)*3] if ks < 13 else tail[15:])
            self.ts(f'tile {n}', 'p5')
        self.ts('p5 mfma')
        e(red_write(6)); e(red_read(6)); e(fin(6))
        self.ts('p stored'); self.ts('p stored', 'p5')

    def p6(self):
        e = self.e
        TB, DB = S_TB, S_FB
        WF, PA, HR, T = 128, 16, 240, 248
        steps = [(0, 1), (2, 3), (4, 5), (7, 8), (9, 10), (11, 12), (6, 13)]
        e(f'v_bfe_u32 v8, v{V_LANE}, 2, 2\nv_lshl_add_u32 v9, v{V_Q}, 2, v8\nv_lshrrev_b32 v10, 1, v9\nv_and_b32 v10, 3, v10\nv_lshlrev_b32 v9, 7, v9')
        e(f'v_lshl_add_u32 v9, v10, 5, v9\nv_and_b32 v10, 3, v{V_LANE}\nv_lshl_add_u32 v9, v10, 3, v9\ns_mul_i32 s{t0}, s{S_W}, 28672')
        for n in range(4): e(f'v_xor_b32 v{20+n}, {32*n}, v9\nv_add_u32 v{20+n}, s{t0}, v{20+n}')
        rds = []
        for si, (la, lb) in enumerate(steps):
            for n in range(4):
                rds += [f'ds_read_b64_tr_b16 {vr(WF+(si*4+n)*4,2)}, v{20+n} offset:{la*2048}', f'ds_read_b64_tr_b16 {vr(WF+(si*4+n)*4+2,2)}, v{20+n} offset:{lb*2048}']
        e(rds[16:])
        e('s_waitcnt vmcnt(0)\ns_barrier')
        self.flag_write(F5)
        self.ts('F5'); self.ts('F5', 'p5')
        e(rds[:16])
        e(f'v_and_b32 v8, 1, v{V_LANE}\ns_lshl_b32 s{t0}, s{S_W}, 6\ns_add_u32 s{t0}, s{t0}, s{TB}\nv_lshl_add_u32 v9, v8, 5, s{t0}\nv_lshlrev_b32 v9, 7, v9\nv_add_u32 v9, {F5}, v9')
        e(f's_lshr_b32 s{t0}, s{TB}, 2\ns_bfe_u32 s{t1}, s{TB}, 0x10001\ns_lshl_b32 s{t1}, s{t1}, 3\ns_add_u32 s{t0}, s{t0}, s{t1}\ns_lshl_b32 s{t1}, s{DB}, 5\ns_add_u32 s{t0}, s{t0}, s{t1}')
        e(f'v_lshl_add_u32 v8, v8, 4, s{t0}\nv_lshlrev_b32 v8, 7, v8\nv_add_u32 v8, {FH}, v8\nv_cmp_gt_u32 vcc, 2, v{V_LANE}\nv_cndmask_b32 v9, v8, v9, vcc')
        A8, AH, ARW, ARR, AO = 8, 10, 11, 12, 13
        S_P0, S_H, S_O = 52, 54, 55
        e(f'v_lshlrev_b32 v{A8}, 3, v{V_LANE}')
        e(f'v_bfe_u32 v14, v{V_LANE}, 2, 1\nv_lshlrev_b32 v{AH}, 10, v14\nv_and_b32 v14, 3, v{V_LANE}\nv_lshl_add_u32 v{AH}, v14, 8, v{AH}\nv_lshrrev_b32 v14, 3, v{V_LANE}\nv_lshl_add_u32 v{AH}, v14, 4, v{AH}')
        e(f's_mul_i32 s{t0}, s{S_W}, 4352\nv_mul_u32_u24 v{ARW}, 272, v{V_J}\nv_lshl_add_u32 v{ARW}, v{V_Q}, 4, v{ARW}\nv_add_u32 v{ARW}, s{t0}, v{ARW}')
        e(f's_mul_i32 s{t0}, s{S_W}, 17408\nv_mul_u32_u24 v{ARR}, 272, v14\nv_and_b32 v15, 7, v{V_LANE}\nv_lshl_add_u32 v{ARR}, v15, 5, v{ARR}\nv_add_u32 v{ARR}, s{t0}, v{ARR}')
        e(f'v_lshlrev_b32 v{AO}, 10, v14\nv_lshl_add_u32 v{AO}, v15, 4, v{AO}')
        e(f's_lshl_b32 s{S_P0}, s{TB}, 3\ns_lshl_b32 s{t0}, s{S_W}, 1\ns_add_u32 s{S_P0}, s{S_P0}, s{t0}\ns_mul_i32 s{S_P0}, s{S_P0}, {4*3584}\ns_add_u32 s{S_P0}, s{S_P0}, {WS_PF}')
        e(f's_lshl_b32 s{S_H}, s{TB}, 2\ns_add_u32 s{S_H}, s{S_H}, s{S_W}\ns_lshl_b32 s{S_O}, s{S_H}, 14\ns_lshl_b32 s{t0}, s{DB}, 7\ns_add_u32 s{S_O}, s{S_O}, s{t0}')
        e(f's_lshl_b32 s{S_H}, s{S_H}, 4\ns_lshl_b32 s{t0}, s{DB}, 1\ns_add_u32 s{S_H}, s{S_H}, s{t0}\ns_lshl_b32 s{S_H}, s{S_H}, 10\ns_add_u32 s{S_H}, s{S_H}, {WS_HF}')
        e('s_waitcnt lgkmcnt(0)\ns_barrier')
        self.poll(9)
        self.ts('F5 seen'); self.ts('F5 seen', 'p5')
        def loads(tau):
            out = []
            for h in range(2):
                out.append([f's_add_u32 s{t1+h}, s{S_P0}, {(h*4+tau)*3584}', f'buffer_load_dwordx4 {vr(PA+(tau*7+h*3)*4,4)}, v{V_L16}, {WSr}, s{t1+h} offen sc1', ('mark', f'p{tau}_{h*3}')])
                for p in (1, 2): out.append([f'buffer_load_dwordx4 {vr(PA+(tau*7+h*3+p)*4,4)}, v{V_L16}, {WSr}, s{t1+h} offen offset:{1024*p} sc1', ('mark', f'p{tau}_{h*3+p}')])
            out.append([f'buffer_load_dwordx2 {vr(PA+(tau*7+6)*4+2*h,2)}, v{A8}, {WSr}, s{t1+h} offen offset:3072 sc1' for h in range(2)] + [('mark', f'p{tau}_6')])
            return out
        ld = [x for tau in range(4) for x in loads(tau)]
        ld.append([f'buffer_load_dwordx4 {vr(HR+4*h,4)}, v{AH}, {WSr}, s{S_H} offen offset:{128*h} sc1' for h in range(2)])
        P6 = self.opt.get('pre6', 12)
        for x in ld[:P6]: e(x)
        def wr(tau): return [f'ds_write_b128 v{ARW}, {ar(16*(tau&1)+4*n,4)} offset:{tau*17408+64*n}' for n in range(4)]
        for tau in range(4):
            for si in range(7):
                e(('wvm', f'p{tau}_{si}'))
                for n in range(4):
                    acc = ar(16*(tau&1)+4*n, 4)
                    e(f'{MF} {acc}, {vr(WF+(si*4+n)*4,4)}, {vr(PA+(tau*7+si)*4,4)}, {acc if si else 0}')
                    if n == 1 and tau*7 + si + P6 < len(ld): e(ld[tau*7 + si + P6])
                if si == 2 and tau: e(wr(tau-1))
        self.ts('p6 mfma'); self.ts('p6 mfma', 'p5')
        e(wr(3)); e('s_waitcnt lgkmcnt(0)\ns_barrier')
        R = 16
        for h in range(2):
            for w2 in range(4):
                for x in range(2): e(f'ds_read_b128 {vr(R+((h*4+w2)*2+x)*4,4)}, v{ARR} offset:{w2*4352+h*2176+16*x}')
            e(('mark', f'r{h}'))
        e(f's_add_u32 s{t0}, s{S_O}, 8192\ns_waitcnt vmcnt(0)')
        for h in range(2):
            b = R + h*32
            for i in range(4): e(f'v_lshlrev_b32 v{T+2*i}, 16, v{HR+4*h+i}\nv_and_b32 v{T+2*i+1}, 0xffff0000, v{HR+4*h+i}')
            e(('wlg', f'r{h}'))
            for i in range(0, 8, 2):
                e(f'v_pk_add_f32 {vr(b+i,2)}, {vr(b+i,2)}, {vr(b+8+i,2)}\nv_pk_add_f32 {vr(b+16+i,2)}, {vr(b+16+i,2)}, {vr(b+24+i,2)}')
            for i in range(0, 8, 2): e(f'v_pk_add_f32 {vr(b+i,2)}, {vr(b+i,2)}, {vr(b+16+i,2)}')
            for i in range(0, 8, 2): e(f'v_pk_add_f32 {vr(b+i,2)}, {vr(b+i,2)}, {vr(T+i,2)}')
            for i in range(4): e(f'v_cvt_pk_bf16_f32 v{b+8+i}, v{b+2*i}, v{b+2*i+1}')
            e(f'buffer_store_dwordx4 {vr(b+8,4)}, v{AO}, {sr(SOUT,4)}, s{S_O if h == 0 else t0} offen')

    def epilogue(self):
        e = self.e
        if self.prof:
            self.ts('end')
            e(f's_lshl_b32 s{t0}, s2, 2\ns_add_u32 s{t0}, s{t0}, s{S_W}\ns_lshl_b32 s{t0}, s{t0}, 7\ns_add_u32 s{t0}, s{t0}, {WS_TS}')
            e('v_mov_b32 v7, 0\ns_mov_b64 exec, 1')
            e('s_waitcnt lgkmcnt(0)')
            for i in range(self.nts):
                e(f'v_mov_b32 v6, s{S_TS+i*(2 if self.opt.get("fine") else 1)}\nbuffer_store_dword v6, v7, {WSr}, s{t0} offen offset:{4*i}')
        e('L_end:\ns_endpgm')
        e.raw('.type L_pad,@object\nL_pad:\n.fill 2048, 4, 0xbf800000\nL_padend:')

    def build(self):
        self.p1()
        for ph, fn in ((2, 'p2'), (4, 'p4'), (5, 'p5'), (6, 'p6')):
            if self.stop >= ph: getattr(self, fn)()
        self.epilogue()
        hdr = open('cdna_kernels/' + NAME + '.s.ref').read().split('; Override launch')[0]
        txt = hdr + f'; @launch grid=(256,1,1) block=(256,1,1) lds={LDS_BYTES}\n'
        txt += f'.amdgcn_target "amdgcn-amd-amdhsa--gfx950"\n.text\n.globl {KNAME}\n.p2align 8\n.type {KNAME},@function\n{KNAME}:\n'
        txt += self.e.text()
        txt += (f'.section .rodata,"a"\n.p2align 6\n.amdhsa_kernel {KNAME}\n  .amdhsa_next_free_vgpr 512\n  .amdhsa_next_free_sgpr 102\n'
                '  .amdhsa_accum_offset 256\n  .amdhsa_group_segment_fixed_size 0\n  .amdhsa_kernarg_size 88\n  .amdhsa_user_sgpr_count 2\n'
                '  .amdhsa_user_sgpr_kernarg_segment_ptr 1\n  .amdhsa_system_sgpr_workgroup_id_x 1\n  .amdhsa_float_denorm_mode_32 3\n.end_amdhsa_kernel\n')
        return txt

def main(cls):
    import argparse, json
    ap = argparse.ArgumentParser(); ap.add_argument('-o', default='k.s'); ap.add_argument('--stop', type=int, default=99)
    ap.add_argument('--prof', action='store_true'); ap.add_argument('--opt', default='{}')
    a = ap.parse_args()
    g = cls(a.stop, a.prof, json.loads(a.opt)); t = g.build(); open(a.o, 'w').write(t)
    if a.prof: open(a.o + '.names', 'w').write('\n'.join(g.names))
    print('lines', t.count('\n'), 'nops', g.e.nops, 'stamps', g.nts)

if __name__ == '__main__': main(Gen)
```

```python
import math, struct, sys
from emit import *

NAME = 'sequential_preLN__spectral_gfnet__mixer_gmlp__prompt'
KNAME = NAME + '_kernel'
MF = 'v_mfma_f32_16x16x32_bf16'

def f32(x): return '0x%08x' % struct.unpack('<I', struct.pack('<f', x))[0]

KS = 8448
WS_EPOCH = 0
WS_FLAG = 0x10000
F1, F1B, F2, F4, FH, F5 = [WS_FLAG + i * 0x8000 for i in range(6)]
WS_SIG = 0x40000
WS_MEAN = 0x48000
WS_TS = 0x50000
WS_STAT = 0x80000
WS_X1T = 0x100000
WS_WT = 0x340000
WS_HT = 0x580000
WS_W2F = 0x7C0000
WS_Z1F = 0x980000
WS_Z2F = 0xD00000
WS_HF = 0x1100000
WS_PF = 0x1300000
WS_SIZE = 0x1700000

SX, SWR, SWI, SWIN, SWSP, SBSP, SWOUT, SOUT, SWS = 8, 12, 16, 20, 24, 28, 32, 36, 40
S_W, S_TAG, S_KB, S_RB = 44, 45, 46, 47
t0, t1, t2, t3 = 48, 49, 50, 51
S_TB, S_FB, S_RB4, S_J4, S_M4, S_DO = 64, 65, 66, 67, 68, 69
S_TB6, S_DB = 3, 60
S_TS = 70
V_TID, V_LANE, V_L16, V_J, V_Q = 0, 1, 2, 3, 4
V_STG = 254

L_X, L_WIN, L_WTR, L_STAT, L_BNC, L_RS, L_STG = 0, 33280, 66048, 86016, 75776, 84992, 97280
L_X1C, L_EX, L_OB, L_STG2 = 0, 8192, 16384, 24576
L_W2, L_RING, L_SM = 0, 114688, 147456
LDS_BYTES = 163840
SPIN_MAX = 1 << 16
WSr = sr(SWS, 4)

M_J1, M_J2 = 's[4:5]', 's[6:7]'
def pick4(dst, src, tmp):
    return [f'v_cndmask_b32 v{tmp}, v{src}, v{src+1}, {M_J1}', f'v_cndmask_b32 v{dst}, v{src+2}, v{src+3}, {M_J1}', f'v_cndmask_b32 v{dst}, v{tmp}, v{dst}, {M_J2}']
def diag_mask(r): return (1 << r) | (1 << (20 + r)) | (1 << (40 + r)) | (1 << (60 + r))
def set_exec(m): return [f's_mov_b32 exec_lo, {m & 0xffffffff:#x}', f's_mov_b32 exec_hi, {m >> 32:#x}']

class Gen:
    def __init__(self, stop=99, prof=False, opt=None):
        self.e = Emitter(); self.stop = stop; self.prof = prof; self.nts = 0; self.names = []
        self.opt = opt or {}
        self.nt = ' nt' if self.opt.get('nt', 1) else ''
        self.map5 = self.opt.get('map5', 'C'); self.map4 = self.opt.get('map4', 4)
        self.ntw = ' nt' if self.opt.get('ntw', self.map5 == 'B') else ''

    def ts(self, name='', fine=None):
        if not self.prof: return
        grp = self.opt.get('fine')
        if grp:
            if fine == grp or name in self.opt.get('also', []):
                assert self.nts < 16
                self.e(f's_memtime {sr(S_TS + 2*self.nts, 2)}'); self.names.append(name); self.nts += 1
        elif fine is None:
            self.e(f's_memrealtime s[62:63]\ns_waitcnt lgkmcnt(0)\ns_mov_b32 s{S_TS + self.nts}, s62')
            self.names.append(name); self.nts += 1
    def tsl(self, name, fine):
        n0 = len(self.e.out)
        return ('call', lambda: self.ts(name, fine))

    def uncount(self):
        return ('call', lambda: setattr(self.e, 'nvm', self.e.nvm - 1))

    def flag_write(self, farr):
        e = self.e; L = e.label_name('nf')
        e(f's_cmp_eq_u32 s{S_W}, 0\ns_cbranch_scc0 {L}')
        e(f's_lshl_b32 s{t0}, s2, 7\ns_add_u32 s{t0}, s{t0}, {farr}\nv_mov_b32 v6, s{S_TAG}\nv_mov_b32 v7, 0\ns_mov_b64 exec, 1')
        e(f'buffer_store_dword v6, v7, {WSr}, s{t0} offen sc1'); e.nvm -= 1
        e(f's_mov_b64 exec, -1\n{L}:')

    def poll(self, vaddr):
        e = self.e; L = e.label_name('poll'); D = e.label_name('pdone')
        e(f's_mov_b32 s{t0}, 0\n{L}:')
        e(f'buffer_load_dword v6, v{vaddr}, {WSr}, 0 offen sc1')
        e(f's_add_u32 s{t0}, s{t0}, 1\ns_cmp_ge_u32 s{t0}, {SPIN_MAX}\ns_cbranch_scc1 {D}')
        e(f's_waitcnt vmcnt(0)\nv_cmp_ne_u32 vcc, s{S_TAG}, v6\ns_cbranch_vccnz {L}\n{D}:\ns_waitcnt vmcnt(0)')

    def wsp_issue(self, rnd, t0=t0):
        setup = lines(f's_lshl_b32 s{S_DO}, s{S_TB}, 18\ns_lshl_b32 s{t0}, s{S_W}, 10\ns_add_u32 s{S_DO}, s{S_DO}, s{t0}\ns_add_u32 s{S_DO}, s{S_DO}, {rnd << 16}\n'
                      f's_mul_i32 s{t0}, s{S_W}, 16640\ns_add_u32 m0, s{t0}, {L_STG}')
        pieces = []
        for i in range(16):
            p = [f'buffer_load_dwordx4 v{V_L16}, {sr(SWSP,4)}, s{S_DO} offen{self.ntw} lds']
            p += ['s_add_u32 m0, m0, 1040', f's_add_u32 s{S_DO}, s{S_DO}, 4096'] if i < 15 else [('mark', f'wsp{rnd}')]
            pieces.append(p)
        return setup, pieces
    def wsp_read(self, rnd):
        return [f'ds_read2_b64 {ar((rnd*16+ks)*4,4)}, v{V_STG} offset0:{8*ks} offset1:{8*ks+4}' for ks in range(16)]
    def wsph_issue(self, half, vaddr):
        setup = lines(f's_lshl_b32 s{S_DO}, s{S_TB}, 18\ns_lshl_b32 s{t0}, s{S_W}, 10\ns_add_u32 s{S_DO}, s{S_DO}, s{t0}\ns_add_u32 s{S_DO}, s{S_DO}, {(3 << 16) + 512*half}\n'
                      f's_mul_i32 m0, s{S_W}, 8320')
        pieces = []
        for i in range(8):
            p = [f'buffer_load_dwordx4 v{vaddr}, {sr(SWSP,4)}, s{S_DO} offen{self.ntw} lds']
            p += ['s_add_u32 m0, m0, 1040', f's_add_u32 s{S_DO}, s{S_DO}, 8192'] if i < 7 else [('mark', f'wsph{half}')]
            pieces.append(p)
        return setup, pieces
    def wsph_read(self, half, vaddr):
        return [f'ds_read2_b64 {ar((48+8*half+ks)*4,4)}, v{vaddr} offset0:{8*ks} offset1:{8*ks+4}' for ks in range(8)]
    def check_or_poll(self, vflag, vaddr):
        e = self.e; L = e.label_name('ok')
        e(f'v_cmp_ne_u32 vcc, s{S_TAG}, v{vflag}\ns_cbranch_vccz {L}')
        nv = e.nvm; self.poll(vaddr); e.nvm = nv
        e(f'{L}:')

    def p1(self):
        e = self.e
        FD, ACC, XF, G, WR, WI = 64, 128, 160, 192, 16, 24
        e('s_cmp_ge_u32 s2, 256\ns_cbranch_scc1 L_end')
        for base, off in ((SX, 0), (SWR, 8), (SWI, 16), (SWS, 80), (SWIN, 32), (SWSP, 40), (SBSP, 48), (SWOUT, 56), (SOUT, 64)):
            e(f's_load_dwordx2 {sr(base,2)}, s[0:1], {off}')
        if self.prof and not self.opt.get('fine'):
            e('s_memrealtime s[60:61]'); self.nts = 1; self.names = ['start']
        self.ts('start', 'p1')
        L = e.label_name('ncode')
        e('s_getpc_b64 s[6:7]'); e.raw('L_pc:')
        e(f's_bfe_u32 s{t0}, s2, 0x30003\ns_cmp_eq_u32 s{t0}, 7\ns_cselect_b32 s{t0}, 0, s{t0}\ns_lshl_b32 s{t0}, s{t0}, 13\ns_min_u32 s{t0}, s{t0}, L_padend-L_pc-8192')
        e(f's_add_u32 s6, s6, s{t0}\ns_addc_u32 s7, s7, 0\nv_lshlrev_b32 v6, 7, v0\nv_mov_b32 v7, s7\nv_add_co_u32 v6, vcc, s6, v6')
        e(f'v_lshrrev_b32 v5, 6, v0\nv_and_b32 v{V_LANE}, 63, v0\nv_addc_co_u32 v7, vcc, 0, v7, vcc\nv_cmp_gt_u32 vcc, 64, v0\nv_readfirstlane_b32 s{S_W}, v5')
        e(f's_and_saveexec_b64 s[6:7], vcc\ns_cbranch_execz {L}\nglobal_load_dword v15, v[6:7], off\n{L}:\ns_mov_b64 exec, -1'); e.nvm -= 1
        e(f'v_lshlrev_b32 v{V_L16}, 4, v{V_LANE}\nv_and_b32 v{V_J}, 15, v{V_LANE}\nv_lshrrev_b32 v{V_Q}, 4, v{V_LANE}')
        e(f's_bfe_u32 s{S_KB}, s2, 0x20003\ns_lshr_b32 s{S_RB}, s2, 5\ns_lshl_b32 s{S_RB}, s{S_RB}, 3\ns_and_b32 s{t0}, s2, 7\ns_or_b32 s{S_RB}, s{S_RB}, s{t0}')
        srd = lambda base, n: [f's_mov_b32 s{base+2}, {n}', f's_mov_b32 s{base+3}, 0x20000']
        S_XO, S_WO, S_JC, S_WI = 52, 53, 54, 55
        e(srd(SX, 2097152))
        e(f's_and_b32 s{S_XO}, s{S_RB}, 1\ns_lshl_b32 s{S_XO}, s{S_XO}, 10\ns_lshl_b32 s{t1}, s{S_W}, 8\ns_add_u32 s{S_XO}, s{S_XO}, s{t1}')
        e(f's_lshr_b32 s{t1}, s{S_RB}, 1\ns_add_u32 s{S_XO}, s{S_XO}, s{t1}\ns_lshl_b32 s{S_XO}, s{S_XO}, 10\ns_mul_i32 m0, s{S_W}, 8320')
        KF, KI, M, SG = G, G+1, G+2, G+4
        C0, S0, C1, S1 = G+8, G+16, G+24, G+32
        g = lines(f's_lshl_b32 s{t0}, s{S_KB}, 6\ns_lshl_b32 s{t1}, s{S_W}, 4\ns_add_u32 s{t0}, s{t0}, s{t1}\ns_add_u32 s{t0}, s{t0}, 1\nv_add_u32 v{KI}, s{t0}, v{V_J}')
        g += lines(f'v_cvt_f32_u32 v{KF}, v{KI}\nv_lshlrev_b32 v{C0}, 3, v{V_Q}\nv_mul_f32 v{KF}, {f32(1/512)}, v{KF}\nv_cvt_f32_u32 v{C0}, v{C0}')
        g += lines(f'v_mul_f32 v{M}, {f32(32.0)}, v{KF}\nv_mul_f32 v{C0}, v{C0}, v{KF}\nv_add_f32 v{C1}, v{C0}, v{M}\nv_cos_f32 v{M}, v{M}')
        for i in range(1, 8): g += lines(f'v_add_f32 v{C0+i}, v{C0+i-1}, v{KF}\nv_add_f32 v{C1+i}, v{C1+i-1}, v{KF}')
        g.append(f'v_add_f32 v{M}, v{M}, v{M}')
        n_early = len(g) + self.opt.get('early', 12)
        for b, sn in ((C0, S0), (C1, S1)):
            for i in range(8): g += [f'v_sin_f32 v{sn+i}, v{b+i}', f'v_cos_f32 v{b+i}, v{b+i}']
        prev, cur = (C0, S0), (C1, S1)
        cvt = lambda u, src: [f'v_cvt_pk_bf16_f32 v{FD+8*u+4*c+i}, {"-" if c else ""}v{src[c]+2*i}, {"-" if c else ""}v{src[c]+2*i+1}' for c in range(2) for i in range(4)]
        g += cvt(0, prev) + cvt(1, cur)
        for u in range(2, 8):
            for c in range(2):
                for i in range(0, 8, 2):
                    g.append(f'v_pk_fma_f32 {vr(prev[c]+i,2)}, {vr(cur[c]+i,2)}, {vr(M,2)}, {vr(prev[c]+i,2)} op_sel_hi:[1,0,1] neg_lo:[0,0,1] neg_hi:[0,0,1]')
            prev, cur = cur, prev
            g += cvt(u, cur)
        e(g[:n_early])
        self.ts('pre kernarg', 'p1')
        e('s_waitcnt lgkmcnt(0)')
        xs = []
        for i in range(8):
            xs.append([f'buffer_load_dwordx4 v{V_L16}, {sr(SX,4)}, s{S_XO} offen{self.nt} lds'] +
                      (['s_add_u32 m0, m0, 1040', f's_add_u32 s{S_XO}, s{S_XO}, 32768'] if i < 7 else [('mark', 'x'), f's_load_dword s{S_TAG}, {sr(SWS,2)}, {WS_EPOCH}']))
        wpre = srd(SWR, 2048*514) + srd(SWI, 2048*514)
        wpre += lines(f'v_bfe_u32 v8, v{V_LANE}, 3, 2\nv_lshlrev_b32 v8, 6, v8\nv_lshrrev_b32 v9, 5, v{V_LANE}\nv_add_u32 v8, v8, v9\nv_mul_u32_u24 v8, 514, v8\nv_and_b32 v5, 7, v{V_LANE}\nv_lshlrev_b32 v5, 4, v5\nv_add_u32 v8, v8, v5')
        wpre += lines(f's_and_b32 s{S_WO}, s{S_RB}, 7\ns_lshl_b32 s{S_JC}, s{S_WO}, 3\ns_lshr_b32 s{t1}, s{S_RB}, 3\ns_lshl_b32 s{S_WO}, s{t1}, 8\ns_add_u32 s{S_WO}, s{S_WO}, s{S_JC}\ns_add_u32 s{S_JC}, s{S_JC}, s{t1}')
        wpre += lines(f's_lshl_b32 s{t1}, s{S_W}, 1\ns_add_u32 s{S_WO}, s{S_WO}, s{t1}\ns_mul_i32 s{S_WO}, s{S_WO}, 514\ns_lshl_b32 s{t1}, s{S_KB}, 7\ns_add_u32 s{S_WO}, s{S_WO}, s{t1}\ns_add_u32 s{S_WO}, s{S_WO}, 2')
        ws = [[f'buffer_load_dwordx4 {vr(WI,4)}, v8, {sr(SWR,4)}, s{S_WO} offen{self.nt}'], [f'buffer_load_dwordx4 {vr(WI+4,4)}, v8, {sr(SWI,4)}, s{S_WO} offen{self.nt}', ('mark', 'xw')]]
        tlb = srd(SWS, WS_SIZE)
        if self.opt.get('tlb', 1):
            tlb += [f'v_lshlrev_b32 v9, 21, v{V_J}', f's_lshl_b32 s{t1}, s2, 7', f's_cmp_eq_u32 s{S_W}, 0', 's_cselect_b32 exec_lo, 0xfff, 0', 's_mov_b32 exec_hi, 0',
                    f'buffer_load_dword v14, v9, {WSr}, s{t1} offen nt', 's_mov_b64 exec, -1', ('call', lambda: setattr(e, 'nvm', e.nvm - 1))]
        for p in xs[:5]: e(p)
        e(spread(g[n_early:], xs[5:] + [wpre] + ws + [tlb], 0, 60))
        self.ts('fd done', 'p1')
        AX, ONES, SUM, SQ = G+8, G+12, G+16, G+20
        AW, AWR, AST, ASR, ARW, ARR, AB, AB2, AG, FS = G+24, G+25, G+27, G+28, G+29, G+30, G+32, G+34, G+35, G+36
        S_WT, S_X1, S_SG, S_MN = 56, 57, 58, 59
        a = lines(f'v_mul_u32_u24 v12, 1040, v{V_J}\ns_and_b32 s{t0}, s{S_W}, 1\ns_lshr_b32 s{t1}, s{S_W}, 1\nv_lshl_add_u32 v12, v{V_Q}, 4, v12')
        a += lines(f's_mul_i32 s{t2}, s{t0}, 16640\ns_lshl_b32 s{t3}, s{t1}, 9\ns_add_u32 s{t2}, s{t2}, s{t3}\nv_add_u32 v{AX}, s{t2}, v12')
        a += lines(f's_xor_b32 s{t2}, s{t0}, 1\ns_mul_i32 s{t2}, s{t2}, 16640\ns_add_u32 s{t2}, s{t2}, s{t3}\nv_add_u32 v{AX+2}, s{t2}, v12')
        a += lines(f's_xor_b32 s{t2}, s{t3}, 0x200\ns_sub_u32 s{t2}, s{t2}, s{t3}\nv_add_u32 v{AX+1}, s{t2}, v{AX}\nv_add_u32 v{AX+3}, s{t2}, v{AX+2}')
        a += [f'v_mov_b32 v{ONES+i}, 0x3f803f80' for i in range(4)]
        a += srd(SWIN, 512*3584)
        a += lines(f'v_lshrrev_b32 v9, 2, v{V_LANE}\nv_mul_u32_u24 v9, 3584, v9\nv_and_b32 v10, 3, v{V_LANE}\nv_and_b32 v11, 2, v{V_Q}\nv_xor_b32 v10, v10, v11\nv_lshl_add_u32 v9, v10, 4, v9')
        a += lines(f's_lshl_b32 s{t2}, s{S_JC}, 6\ns_mul_i32 s{t3}, s{S_W}, {128*3584}\ns_add_u32 s{S_WI}, s{t2}, s{t3}\ns_cmp_lt_u32 s{S_JC}, 56\ns_cselect_b32 s{S_WI}, s{S_WI}, 0x200000')
        a += lines(f's_lshl_b32 s{t3}, s{S_W}, 13\ns_add_u32 m0, s{t3}, {L_WIN}')
        e(a)
        b = lines(f's_mov_b32 s4, 0xaaaaaaaa\ns_mov_b32 s5, 0xaaaaaaaa\ns_mov_b32 s6, 0xcccccccc\ns_mov_b32 s7, 0xcccccccc')
        b += lines(f'v_mul_u32_u24 v{AW}, 65, v5\nv_lshrrev_b32 v13, 3, v{V_LANE}\nv_lshl_add_u32 v{AW}, v13, 2, v{AW}\ns_lshl_b32 s{t2}, s{S_W}, 5\ns_add_u32 s{t2}, s{t2}, {L_WTR}\nv_add_u32 v{AW}, s{t2}, v{AW}')
        b += lines(f's_mul_i32 s{t2}, s{S_W}, 1040\ns_add_u32 s{t2}, s{t2}, {L_WTR}\nv_add_u32 v{AWR}, s{t2}, v{V_L16}\ns_mov_b32 s8, 0x05040100\ns_mov_b32 s9, 0x07060302')
        b += lines(f's_lshl_b32 s{t2}, s{t0}, 8\ns_lshl_b32 s{t3}, s{t1}, 7\ns_add_u32 s{t2}, s{t2}, s{t3}\ns_add_u32 s{t2}, s{t2}, {L_STAT}\nv_lshl_add_u32 v{AST}, v{V_J}, 3, s{t2}')
        b += lines(f'v_lshrrev_b32 v13, 2, v{V_J}\nv_cmp_eq_u32 vcc, v13, v{V_Q}\nv_lshlrev_b32 v13, 3, v0\nv_add_u32 v13, {L_STAT+512}, v13\nv_cndmask_b32 v{AST}, v13, v{AST}, vcc')
        b += lines(f'v_and_b32 v13, 1, v{V_Q}\nv_lshlrev_b32 v{ASR}, 8, v13\nv_lshl_add_u32 v{ASR}, v{V_J}, 3, v{ASR}\nv_add_u32 v{ASR}, {L_STAT}, v{ASR}')
        b += lines(f's_mul_i32 s{t2}, s{S_W}, 2304\ns_add_u32 s{t2}, s{t2}, {L_BNC}\nv_lshrrev_b32 v13, 3, v{V_LANE}')
        b += lines(f'v_mul_u32_u24 v{AB2}, 144, v13\nv_add3_u32 v{AB2}, v{AB2}, v5, s{t2}\nv_mul_u32_u24 v{AG}, {KS}, v13\nv_add_u32 v{AG}, v{AG}, v5')
        b += lines(f'v_mul_u32_u24 v13, 144, v{V_J}\nv_lshl_add_u32 v13, v{V_Q}, 4, v13\ns_lshl_b32 s{t3}, s{t0}, 6\ns_add_u32 s{t2}, s{t2}, s{t3}\nv_add_u32 v{AB}, s{t2}, v13')
        b += lines(f's_xor_b32 s{S_WT}, s{t3}, 64\ns_sub_u32 s{S_WT}, s{S_WT}, s{t3}\nv_add_u32 v{AB+1}, s{S_WT}, v{AB}')
        b += lines(f's_lshl_b32 s{t2}, s{S_W}, 7\ns_add_u32 s{t2}, s{t2}, {L_RS}\nv_and_b32 v13, 31, v{V_LANE}\nv_lshl_add_u32 v{ARW}, v13, 2, s{t2}')
        b += lines(f's_add_u32 s{t2}, s{t2}, s{t3}\nv_lshl_add_u32 v{ARR}, v{V_Q}, 4, s{t2}\nv_xor_b32 v{ARR+1}, 64, v{ARR}')
        b += lines(f's_bfe_u32 s{S_WT}, s{S_RB}, 0x20001\ns_lshl_b32 s{S_WT}, s{S_WT}, 11\ns_lshr_b32 s{t2}, s{S_RB}, 5\ns_lshl_b32 s{t2}, s{t2}, 10\ns_add_u32 s{S_WT}, s{S_WT}, s{t2}')
        b += lines(f's_bfe_u32 s{t2}, s{S_RB}, 0x20003\ns_lshl_b32 s{t2}, s{t2}, 8\ns_add_u32 s{S_WT}, s{S_WT}, s{t2}\ns_and_b32 s{t2}, s{S_RB}, 1\ns_lshl_b32 s{t2}, s{t2}, 7\ns_add_u32 s{S_WT}, s{S_WT}, s{t2}')
        b += lines(f's_mul_i32 s{t3}, s{S_KB}, {64*KS}\ns_mul_i32 s{t2}, s{S_W}, {8*KS}\ns_add_u32 s{S_WT}, s{S_WT}, s{t3}\ns_add_u32 s{S_WT}, s{S_WT}, s{t2}\ns_add_u32 s{S_WT}, s{S_WT}, {WS_WT}')
        b += lines(f's_add_u32 s{S_X1}, s{t3}, s{t2}\ns_add_u32 s{S_X1}, s{S_X1}, s{t2}\ns_lshl_b32 s{t3}, s{S_RB}, 7\ns_add_u32 s{S_X1}, s{S_X1}, s{t3}\ns_add_u32 s{S_X1}, s{S_X1}, {WS_X1T}')
        b += [lines(f's_lshl_b32 s{t2}, s{S_KB}, 13\ns_add_u32 s{t2}, s{t2}, {WS_SIG}\ns_cmp_eq_u32 s{S_W}, 0\ns_cselect_b32 s{S_SG}, s{t2}, {WS_MEAN}\ns_cselect_b32 s{S_MN}, -1, 0\ns_add_u32 s{S_SG}, s{S_SG}, s{t3}')]
        b += [lines(f's_lshl_b32 s{t2}, s{S_KB}, 2\ns_add_u32 s{t2}, s{t2}, s{S_W}\ns_cmp_eq_u32 s{t2}, 1\ns_cselect_b32 s{S_MN}, -1, s{S_MN}')]
        b += srd(SWSP, 2048*4096)
        if self.map5 == 'B': b += lines(f's_and_b32 s{S_TB}, s2, 31\ns_lshr_b32 s{S_FB}, s2, 5')
        else: b += lines(f's_and_b32 s{S_FB}, s2, 1\ns_lshl_b32 s{S_FB}, s{S_FB}, 2\ns_or_b32 s{S_FB}, s{S_FB}, s{S_KB}\ns_bfe_u32 s{S_TB}, s2, 0x20001\ns_lshl_b32 s{S_TB}, s{S_TB}, 3\ns_lshr_b32 s{t2}, s2, 5\ns_or_b32 s{S_TB}, s{S_TB}, s{t2}')
        b += lines(f'v_and_b32 v{SG}, 1, v{KI}\nv_lshlrev_b32 v{SG}, 31, v{SG}\nv_mov_b32 v{FS}, {f32(1/16)}\nv_mov_b32 v13, {f32(1/math.sqrt(512))}\nv_cmp_eq_u32 vcc, 0x100, v{KI}')
        b += lines(f's_lshl_b32 s{t2}, s{t1}, 31\nv_and_b32 v12, s{t2}, v{SG}\nv_cndmask_b32 v{FS}, v{FS}, v13, vcc\nv_or_b32 v{SG}, 1.0, v{SG}\nv_xor_b32 v{FS}, v{FS}, v12')
        win = [[f'buffer_load_dwordx4 v9, {sr(SWIN,4)}, s{S_WI} offen{self.nt} lds'] + ([f's_add_u32 m0, m0, 1024', f's_add_u32 s{S_WI}, s{S_WI}, {16*3584}'] if i < 7 else []) for i in range(8)]
        self.ts('gen done'); self.ts('gen done', 'p1')
        e(('wvm', 'x')); e('s_barrier')
        self.ts('x landed'); self.ts('x landed', 'p1')
        order = [(u, 0) for u in range(8)] + [(u, 1) for u in range(8)] + [(u, tp) for u in range(8, 16) for tp in range(2)]
        LA = 6
        def rd(n):
            u, tp = order[n]
            return [f'ds_read_b128 {vr(XF+4*(n%8),4)}, v{AX+tp*2+(u>>3)} offset:{(u&7)*64}', ('mark', f'x{n}')]
        acc = lambda tp, c, hp: ACC + ((tp*2 + c)*2 + hp)*4
        for n in range(LA): e(rd(n))
        R0, RS = 40, 32
        mm = []
        for n, (u, tp) in enumerate(order):
            xf = vr(XF+4*(n%8), 4)
            grp = [f'{MF} {vr(acc(tp,c,u>>3),4)}, {xf}, {vr(FD+8*(u&7)+4*c,4)}, {vr(acc(tp,c,u>>3),4) if u & 7 else 0}' for c in range(2)]
            if n < 8: grp += [f'{MF} {vr(SQ,4)}, {xf}, {xf}, {vr(SQ,4) if n else 0}', f'{MF} {vr(SUM,4)}, {xf}, {vr(ONES,4)}, {vr(SUM,4) if n else 0}']
            grp = [[x] for x in grp]
            grp[0] = [('wlg', f'x{n}')] + grp[0]
            if n + LA < 32: grp[-1] += rd(n + LA)
            if n < 8: grp[1] += win[n]
            mm += grp
        e(spread(mm[:34], b))
        f1 = [('wvm', 'xw')]
        for i in range(8): f1 += [f'v_perm_b32 v{WR+i}, v{WI+4+i//2}, v{WI+i//2}, s{8+(i&1)}', f'ds_write_b32 v{AW}, v{WR+i} offset:{128*i}']
        f1 += pick4(R0, SUM, R0+2) + pick4(R0+1, SQ, R0+2) + [f'ds_write_b64 v{AST}, {vr(R0,2)}', ('mark', 'stw')]
        self.ts('step 8', 'p1')
        e(spread(mm[34:44], f1))
        self.ts('step 13', 'p1')
        e(mm[44:48])
        e([('wlg', 'stw'), 's_barrier', f'ds_read_b64 {vr(R0,2)}, v{ASR}', f'ds_read_b64 {vr(R0+2,2)}, v{ASR} offset:128', ('mark', 'str'),
           f'ds_read_b128 {vr(WR,4)}, v{AWR}', f'ds_read_b128 {vr(WR+4,4)}, v{AWR} offset:{4*1040}', ('mark', 'wtr')])
        self.ts('bar', 'p1')
        e(mm[48:54])
        f2 = [('wlg', 'str')] + lines(f'v_add_f32 v{R0}, v{R0}, v{R0+2}\nv_add_f32 v{R0+2}, v{R0+1}, v{R0+3}\nv_mul_f32 v{R0}, {f32(1/512)}, v{R0}\nv_mul_f32 v{R0+2}, {f32(1/512)}, v{R0+2}')
        f2 += lines(f'v_fma_f32 v{R0+2}, -v{R0}, v{R0}, v{R0+2}\nv_max_f32 v{R0+2}, 0, v{R0+2}\nv_add_f32 v{R0+2}, {f32(1e-5)}, v{R0+2}\nv_rsq_f32 v{R0+1}, v{R0+2}\nv_sqrt_f32 v{R0+3}, v{R0+2}')
        f2 += [f'ds_write_b32 v{ARW}, v{R0+1}', ('mark', 'rsw'), [f's_cmp_eq_u32 s{S_W}, 0', 's_cselect_b64 vcc, -1, 0'], f's_add_u32 s{t2}, s{S_WT}, {32*KS}', ('wlg', 'wtr'),
               f'buffer_store_dwordx4 {vr(WR,4)}, v{AG}, {WSr}, s{S_WT} offen sc1', f'v_cndmask_b32 v{R0}, v{R0}, v{R0+3}, vcc', f'v_lshlrev_b32 v{R0+4}, 2, v{V_LANE}',
               f'buffer_store_dwordx4 {vr(WR+4,4)}, v{AG}, {WSr}, s{t2} offen sc1',
               [('wlg', 'rsw'), f'ds_read_b128 {vr(RS,4)}, v{ARR}', f'ds_read_b128 {vr(RS+4,4)}, v{ARR+1}', ('mark', 'rsr')],
               [f's_mov_b32 exec_lo, s{S_MN}', 's_mov_b32 exec_hi, 0', f'buffer_store_dword v{R0}, v{R0+4}, {WSr}, s{S_SG} offen sc1', 's_mov_b64 exec, -1', self.uncount()]]
        e(spread(mm[54:70], f2))
        f3 = [f's_add_u32 s{t1}, s{S_X1}, {8*KS}', ('wlg', 'rsr')] + [f'v_mul_f32 v{RS+i}, v{RS+i}, v{FS}' for i in range(8)]
        self.ts('step 26', 'p1')
        e(mm[70:74]); e(spread(mm[74:], f3))
        self.ts('mfma', 'p1')
        for tp in range(2):
            for c in range(2):
                for h in (0, 2):
                    lo, hi = vr(acc(tp,c,0)+h, 2), vr(acc(tp,c,1)+h, 2)
                    e(f'v_pk_fma_f32 {lo}, {hi}, {vr(SG,2)}, {lo} op_sel_hi:[1,0,1]')
            for c in range(2):
                for h in (0, 2):
                    lo = vr(acc(tp,c,0)+h, 2)
                    e(f'v_pk_mul_f32 {lo}, {lo}, {vr(RS+4*tp+h,2)}')
            for r in range(4): e(f'v_cvt_pk_bf16_f32 v{XF+tp*4+r}, v{acc(tp,0,0)+r}, v{acc(tp,1,0)+r}')
            e(f'ds_write_b128 v{AB+tp}, {vr(XF+tp*4,4)}')
        e('s_waitcnt lgkmcnt(0)')
        e(f'ds_read_b128 {vr(XF+8,4)}, v{AB2}\nds_read_b128 {vr(XF+12,4)}, v{AB2} offset:{8*144}')
        e(f's_waitcnt lgkmcnt(1)\nbuffer_store_dwordx4 {vr(XF+8,4)}, v{AG}, {WSr}, s{S_X1} offen sc1')
        e(f's_waitcnt lgkmcnt(0)\nbuffer_store_dwordx4 {vr(XF+12,4)}, v{AG}, {WSr}, s{t1} offen sc1')
        e(('mark', 'x1st'))
        self.ts('X1 stored'); self.ts('X1 stored', 'p1')
        setup, pieces = self.wsp_issue(0); e(setup)
        nr0 = self.opt.get('nr0', 10)
        e(pieces[:4])
        A0, S_W2, NYF = 184, 56, 186
        e(f's_mul_i32 s{S_TAG}, s{S_TAG}, 0x9e3779b1\ns_add_u32 s{S_TAG}, s{S_TAG}, 0x7f4a7c15')
        if self.prof and not self.opt.get('fine'): e(f's_mov_b32 s{S_TS}, s60')
        e(srd(SBSP, 4096) + srd(SWOUT, 896*1024) + srd(SOUT, 2097152))
        e(f'v_bfe_u32 v8, v{V_LANE}, 2, 2\nv_lshl_add_u32 v8, v{V_Q}, 3, v8\nv_lshlrev_b32 v8, 6, v8')
        e(f'v_and_b32 v9, 1, v{V_Q}\nv_lshl_add_u32 v8, v9, 5, v8\nv_and_b32 v9, 3, v{V_LANE}\nv_lshl_add_u32 v8, v9, 3, v8')
        e(f'v_add_u32 v{A0}, {L_WIN}, v8\nv_xor_b32 v{A0+1}, 32, v8\nv_add_u32 v{A0+1}, {L_WIN}, v{A0+1}')
        e(f's_mul_i32 s{t0}, s{S_W}, 16640\ns_add_u32 s{t0}, s{t0}, {L_STG}\nv_mul_u32_u24 v{V_STG}, 1040, v{V_J}\nv_lshl_add_u32 v{V_STG}, v{V_Q}, 3, v{V_STG}\nv_add_u32 v{V_STG}, s{t0}, v{V_STG}')
        e(f's_lshl_b32 s{t1}, s{S_KB}, 2\ns_add_u32 s{t1}, s{t1}, s{S_W}\ns_cmp_eq_u32 s{t1}, 15\ns_cselect_b32 s{t2}, 3, 4\nv_mov_b32 v{NYF}, 1.0\nv_mov_b32 v9, {f32(1/math.sqrt(2))}\nv_cmp_eq_u32 vcc, s{t2}, v{V_Q}')
        e(f's_lshl_b32 s{S_W2}, s{S_JC}, 15\ns_lshl_b32 s{t1}, s{t1}, 10\ns_add_u32 s{S_W2}, s{S_W2}, s{t1}\nv_cndmask_b32 v{NYF}, v{NYF}, v9, vcc')
        e(f's_add_u32 s{S_W2}, s{S_W2}, {WS_W2F}\ns_add_u32 s{S_W2+1}, s{S_W2}, 16384\ns_cmp_lt_u32 s{S_JC}, 56\ns_cselect_b64 s[58:59], -1, 0')
        consts = self.p2_consts()
        npre = self.opt.get('cpre', 120)
        e(spread(consts[:npre], pieces[4:nr0], 0, 80))
        pieces = pieces[nr0:] + [[]]*16
        self.ts('pre drain', 'p1')
        e(('wvm', 'x1st'))
        self.ts('drained'); self.ts('drained', 'p1')
        e('s_barrier')
        self.flag_write(F1)
        order = [(u, n) for u in range(16) for n in range(2)]
        def rdb(i):
            u, n = order[i]
            return [f'ds_read_b64_tr_b16 {vr(XF+4*(i%6),2)}, v{A0+n} offset:{u*2048}',
                    f'ds_read_b64_tr_b16 {vr(XF+4*(i%6)+2,2)}, v{A0+n} offset:{u*2048+256}', ('mark', f'b{i}')]
        accb = lambda c, n, half: ACC + ((c*2 + n)*2 + half)*4
        for i in range(4): e(rdb(i))
        main = []
        for i, (u, n) in enumerate(order):
            nx = rdb(i + 4) if i + 4 < 32 else [[], []]
            for c in range(2):
                A = vr(accb(c, n, u >> 3), 4)
                m = [f'{MF} {A}, {vr(FD+8*(u&7)+4*c,4)}, {vr(XF+4*(i%6),4)}, {A if u & 7 else 0}']
                if c == 0: m = [('wlg', f'b{i}')] + m + (pieces[i // 2] if i % 2 == 0 else [])
                else: m += nx
                main.append(m)
        e(spread(main, consts[npre:]))
        for n in range(2):
            for c in range(2):
                for h in (0, 2):
                    lo, hi = vr(accb(c,n,0)+h, 2), vr(accb(c,n,1)+h, 2)
                    e(f'v_pk_add_f32 {lo}, {lo}, {hi} neg_lo:[0,1]')
            e(f'v_mul_f32 v{accb(0,n,0)+3}, v{accb(0,n,0)+3}, v{NYF}')
            for c in range(2):
                for h in range(2): e(f'v_cvt_pk_bf16_f32 v{XF+n*4+c*2+h}, v{accb(c,n,0)+2*h}, v{accb(c,n,0)+2*h+1}')
            e(f's_mov_b64 exec, s[58:59]\nbuffer_store_dwordx4 {vr(XF+n*4,4)}, v{V_L16}, {WSr}, s{S_W2+n} offen sc1\ns_mov_b64 exec, -1'); e.nvm -= 1
        e(('mark', 'w2st'))
        self.ts('W2 stored'); self.ts('W2 stored', 'p1')

    BRE, BIM, GC, GS, GN = 8, 24, 40, 48, 56
    TC1, TS1, TC2, TS2, IDR, IDI = 188, 196, 204, 212, 220, 224
    P2A = 248
    def p2_consts(self):
        BRE, BIM, GC, GS, GN, TC1, TS1, TC2, TS2, IDR, IDI = (self.BRE, self.BIM, self.GC, self.GS, self.GN, self.TC1, self.TS1, self.TC2, self.TS2, self.IDR, self.IDI)
        T = 228; S_16W = 61
        AWr, AR = self.P2A, self.P2A + 2
        g = lines(f's_lshl_b32 s{S_16W}, s{S_W}, 4\nv_add_u32 v{T}, s{S_16W}, v{V_J}\nv_cvt_f32_u32 v{T}, v{T}')
        g += lines(f'v_lshlrev_b32 v{T+1}, 2, v{V_Q}\nv_cvt_f32_u32 v{T+1}, v{T+1}\nv_mul_f32 v{T+2}, {f32(1/2048)}, v{T}\nv_mul_f32 v{T+3}, v{T+2}, v{T+1}')
        for i in range(8): g.append(f'v_fmamk_f32 v{TC1+i}, v{T+2}, {f32(16*(i>>2)+(i&3))}, v{T+3}')
        for i in range(8): g += [f'v_sin_f32 v{TS1+i}, v{TC1+i}', f'v_cos_f32 v{TC1+i}, v{TC1+i}']
        g += lines(f'v_cvt_f32_u32 v{T+4}, v{V_J}\nv_cvt_f32_u32 v{T+5}, s{S_16W}\nv_add_f32 v{T+5}, v{T+5}, v{T+1}')
        for t in range(2):
            g += lines(f'v_add_f32 v{T+2}, {f32(16.0*t)}, v{T+4}\nv_mul_f32 v{T+2}, {f32(1/2048)}, v{T+2}\nv_mul_f32 v{T+3}, v{T+2}, v{T+5}')
            for r in range(4): g.append(f'v_fmamk_f32 v{TC2+4*t+r}, v{T+2}, {f32(r)}, v{T+3}')
        for i in range(8): g += [f'v_sin_f32 v{TS2+i}, v{TC2+i}', f'v_cos_f32 v{TC2+i}, v{TC2+i}']
        g.append(f'v_mov_b32 v{T+2}, {f32(1/2048)}')
        for i in range(0, 16, 2): g.append(f'v_pk_mul_f32 {vr(TC2+i,2)}, {vr(TC2+i,2)}, {vr(T+2,2)} op_sel_hi:[1,0]')
        g += lines(f'v_lshlrev_b32 v{T+6}, 2, v{V_Q}\nv_sub_u32 v{T+6}, v{V_J}, v{T+6}\nv_mov_b32 v{T+7}, 0x3f80')
        for i in range(4):
            g += [f'v_cmp_eq_u32 vcc, {i}, v{T+6}', f'v_or_b32 v{T+8}, {4*i}, v{V_Q}', f'v_xor_b32 v{T+8}, v{T+8}, v{V_J}', f'v_cndmask_b32 v{IDR+i}, 0, v{T+7}, vcc',
                  f'v_lshlrev_b32 v{T+8}, 4, v{T+8}', f'v_lshlrev_b32 v{IDI+i}, 16, v{IDR+i}', f'v_lshl_add_u32 v{AR+i}, v{V_J}, 8, v{T+8}']
        for h in range(2):
            g += lines(f'v_lshl_add_u32 v{T+8}, s{S_W}, 3, v{V_Q}\nv_add_u32 v{T+8}, {4*h}, v{T+8}\nv_xor_b32 v{T+9}, v{T+8}, v{V_J}\nv_and_b32 v{T+9}, 15, v{T+9}')
            g += lines(f'v_lshlrev_b32 v{T+9}, 4, v{T+9}\nv_lshl_add_u32 v{AWr+h}, v{T+8}, 8, v{T+9}')
        g += lines(f'v_mul_f32 v{T+2}, {f32(1/64)}, v{T}\nv_mul_f32 v{T+3}, v{T+2}, v{T+1}')
        for u in range(4):
            for i in range(4): g.append(f'v_fmamk_f32 v{T+8+i}, v{T+2}, {f32(16*u+i)}, v{T+3}')
            for i in range(4): g += [f'v_sin_f32 v{T+12+i}, v{T+8+i}', f'v_cos_f32 v{T+8+i}, v{T+8+i}']
            for i in range(4):
                g += [f'v_cvt_pk_bf16_f32 v{BRE+4*u+i}, v{T+8+i}, v{T+12+i}', f'v_cvt_pk_bf16_f32 v{BIM+4*u+i}, -v{T+12+i}, v{T+8+i}']
        for m in range(2):
            g += lines(f'v_add_f32 v{T+2}, {f32(16.0*m)}, v{T+4}\nv_mul_f32 v{T+2}, {f32(1/32)}, v{T+2}\nv_mul_f32 v{T+3}, v{T+2}, v{T+1}')
            for hh in range(2):
                for i in range(4): g.append(f'v_fmamk_f32 v{T+8+i}, v{T+2}, {f32(16*hh+i)}, v{T+3}')
                for i in range(4): g += [f'v_sin_f32 v{T+12+i}, v{T+8+i}', f'v_cos_f32 v{T+8+i}, v{T+8+i}']
                for i in range(2):
                    o = 4*m + 2*hh + i
                    g += [f'v_cvt_pk_bf16_f32 v{GC+o}, v{T+8+2*i}, v{T+9+2*i}', f'v_cvt_pk_bf16_f32 v{GS+o}, v{T+12+2*i}, v{T+13+2*i}',
                          f'v_cvt_pk_bf16_f32 v{GN+o}, -v{T+12+2*i}, -v{T+13+2*i}']
        return g

    def p2(self):
        e = self.e
        BRE, BIM, GC, GS, GN, TC1, TS1, TC2, TS2, IDR, IDI = (self.BRE, self.BIM, self.GC, self.GS, self.GN, self.TC1, self.TS1, self.TC2, self.TS2, self.IDR, self.IDI)
        XR, WT, SG, AF, AO, D0, D1, XD = 64, 72, 80, 96, 128, 136, 152, 168
        AWr, AR = self.P2A, self.P2A + 2
        AP, AOa, ASg, AEX, AOB = 88, 89, 90, 91, 92
        S_X, S_WT, S_SG, S_HT, S_NY = 12, 13, 14, 15, 16
        a = lines(f's_lshr_b32 s{t1}, s2, 6\ns_lshl_b32 s{t2}, s{t1}, 3')
        a += lines(f'v_and_b32 v{AP}, 7, v{V_LANE}\nv_lshrrev_b32 v93, 3, v{V_LANE}\nv_lshl_add_u32 v{AP}, v93, 5, v{AP}\nv_add_u32 v{AP}, s{t2}, v{AP}')
        a += lines(f'v_lshlrev_b32 v{AP}, 7, v{AP}\nv_add_u32 v{AP}, {F1}, v{AP}')
        a += lines(f's_lshl_b32 s{t2}, s{S_W}, 2\nv_or_b32 v93, s{t2}, v{V_Q}\nv_xor_b32 v93, v93, v{V_J}\nv_lshlrev_b32 v93, 4, v93\nv_lshl_add_u32 v{AOa}, v{V_J}, 8, v93')
        a += lines(f's_mul_i32 s{S_HT}, s2, {KS}\ns_lshl_b32 s{t2}, s{S_W}, 11\ns_add_u32 s{S_X}, s{S_HT}, s{t2}\ns_add_u32 s{S_WT}, s{S_X}, {WS_WT}\ns_add_u32 s{S_X}, s{S_X}, {WS_X1T}')
        a += lines(f's_lshl_b32 s{S_SG}, s{t1}, 13\ns_lshl_b32 s{t1}, s{S_W}, 6\ns_add_u32 s{S_SG}, s{S_SG}, s{t1}\ns_add_u32 s{S_SG}, s{S_SG}, {WS_SIG}\ns_add_u32 s{S_SG+3}, s{S_SG}, 4096')
        a += lines(f's_lshl_b32 s{S_HT}, s2, 9\ns_lshl_b32 s{t1}, s{S_W}, 19\ns_add_u32 s{S_HT}, s{S_HT}, s{t1}\ns_add_u32 s{S_HT}, s{S_HT}, {WS_HT}\ns_lshl_b32 s{t1}, s{S_W}, 10')
        a += lines(f'v_lshlrev_b32 v5, 17, v{V_Q}\nv_lshl_add_u32 v5, v{V_J}, 4, v5')
        a += [lines(f's_cmp_eq_u32 s2, 255\ns_cselect_b32 s{S_NY}, 0, -1')]
        a += lines(f'v_lshlrev_b32 v{ASg}, 10, v{V_Q}\nv_lshl_add_u32 v{ASg}, v{V_J}, 2, v{ASg}\nv_add_u32 v{AEX}, s{t1}, v{V_L16}')
        a += lines(f'v_lshlrev_b32 v{AOB}, 6, v{V_J}\nv_lshl_add_u32 v{AOB}, v{V_Q}, 3, v{AOB}\nv_add_u32 v{AOB}, s{t1}, v{AOB}')
        a += self.p4_ids(94, 95, 93)
        e(a)
        e(('wvm', 'wsp0')); e(self.wsp_read(0))
        setup, pc = self.wsp_issue(1)
        L = e.label_name('np')
        e(f's_cmp_eq_u32 s{S_W}, 0\ns_cbranch_scc0 {L}')
        nv = e.nvm; self.poll(AP); e.nvm = nv
        e(f'{L}:'); e(('wvm', 'w2st')); e('s_barrier')
        self.ts('F1 seen'); self.ts('F1 seen', 'p2')
        e(f'buffer_load_dwordx4 {vr(XR,4)}, v{V_L16}, {WSr}, s{S_X} offen sc1')
        e(f'buffer_load_dwordx4 {vr(XR+4,4)}, v{V_L16}, {WSr}, s{S_X} offen offset:1024 sc1')
        e(('mark', 'x1'))
        e(f'buffer_load_dwordx4 {vr(WT,4)}, v{V_L16}, {WSr}, s{S_WT} offen sc1')
        e(f'buffer_load_dwordx4 {vr(WT+4,4)}, v{V_L16}, {WSr}, s{S_WT} offen offset:1024 sc1')
        e(('mark', 'wt'))
        for t in range(2):
            for r in range(4):
                e(f'buffer_load_dword v{SG+4*t+r}, v{ASg}, {WSr}, s{S_SG+3*t} offen offset:{256*r} sc1')
        e(('mark', 'sg'))
        self.flag_write(F1B)
        e(setup)
        self.ts('pre x1', 'p2')
        e(('wvm', 'x1'))
        self.ts('X1 landed'); self.ts('X1 landed', 'p2')
        e(f'ds_write_b128 v{AWr}, {vr(XR,4)} offset:{L_X1C}\nds_write_b128 v{AWr+1}, {vr(XR+4,4)} offset:{L_X1C}')
        e('s_waitcnt lgkmcnt(0)\ns_barrier')
        for u in range(4):
            for t in range(2):
                e(f'ds_read_b128 {vr(AF+(t*4+u)*4,4)}, v{AR+u} offset:{L_X1C+4096*t}'); e(('mark', f'a{t}{u}'))
        for t in range(2): e(f'ds_read_b128 {vr(AO+4*t,4)}, v{AOa} offset:{L_X1C+4096*t}')
        self.ts('bar1', 'p2')
        pc = [pc[0] + pc[1], pc[2] + pc[3]] + pc[4:14] + [pc[14] + pc[15] + [f'buffer_load_dword v94, v95, {WSr}, 0 offen sc1', ('mark', 'f1b')]] + [[]]*8
        e(pc[0]); e(pc[1])
        dre = lambda base, t: base + 8*t
        dim = lambda base, t: base + 8*t + 4
        for u in range(4):
            for t in range(2):
                e(('wlg', f'a{t}{u}'))
                e(f'{MF} {vr(dre(D0,t),4)}, {vr(AF+(t*4+u)*4,4)}, {vr(BRE+4*u,4)}, {vr(dre(D0,t),4) if u else 0}')
                e(f'{MF} {vr(dim(D0,t),4)}, {vr(AF+(t*4+u)*4,4)}, {vr(BIM+4*u,4)}, {vr(dim(D0,t),4) if u else 0}')
            e(pc[2+u])
        e('s_waitcnt lgkmcnt(0)')
        for t in range(2):
            e(f'{MF} {vr(dre(XD,t),4)}, {vr(AO+4*t,4)}, {vr(IDR,4)}, 0\n{MF} {vr(dim(XD,t),4)}, {vr(AO+4*t,4)}, {vr(IDI,4)}, 0')
        e(pc[6])
        self.ts('s1', 'p2')
        def cmul(src, dst, c, s, conj):
            n1 = 'neg_lo:[1,0,0] neg_hi:[1,0,0]'
            for t in range(2):
                for h in range(0, 4, 2):
                    re, im, o_re, o_im = dre(src,t)+h, dim(src,t)+h, dre(dst,t)+h, dim(dst,t)+h
                    cc, ss = vr(c+4*t+h,2), vr(s+4*t+h,2)
                    e(f'v_pk_mul_f32 {vr(o_re,2)}, {vr(re,2)}, {cc}\nv_pk_mul_f32 {vr(o_im,2)}, {vr(im,2)}, {cc}')
                    e(f'v_pk_fma_f32 {vr(o_re,2)}, {vr(im,2)}, {ss}, {vr(o_re,2)} {n1 if conj else ""}')
                    e(f'v_pk_fma_f32 {vr(o_im,2)}, {vr(re,2)}, {ss}, {vr(o_im,2)} {"" if conj else n1}')
        FR, FI = AF, AF+4
        def pack_rows(src):
            for t in range(2):
                for h in range(2):
                    e(f'v_cvt_pk_bf16_f32 v{FR+2*t+h}, v{dre(src,t)+2*h}, v{dre(src,t)+2*h+1}')
                    e(f'v_cvt_pk_bf16_f32 v{FI+2*t+h}, v{dim(src,t)+2*h}, v{dim(src,t)+2*h+1}')
        cmul(D0, D1, TC1, TS1, False); pack_rows(D1)
        self.ts('tw1', 'p2')
        e(pc[7])
        for m in range(2):
            e(f'{MF} {vr(dre(D0,m),4)}, {vr(GC+4*m,4)}, {vr(FR,4)}, 0\n{MF} {vr(dim(D0,m),4)}, {vr(GC+4*m,4)}, {vr(FI,4)}, 0')
        e(pc[8])
        for m in range(2):
            e(f'{MF} {vr(dre(D0,m),4)}, {vr(GS+4*m,4)}, {vr(FI,4)}, {vr(dre(D0,m),4)}\n{MF} {vr(dim(D0,m),4)}, {vr(GN+4*m,4)}, {vr(FR,4)}, {vr(dim(D0,m),4)}')
        self.ts('s2', 'p2')
        e(('wvm', 'wt'))
        for i in range(8): e(f'v_lshlrev_b32 v{XR+i}, 16, v{WT+i}\nv_and_b32 v{WT+i}, 0xffff0000, v{WT+i}')
        cmul(D0, D1, XR, WT, True); pack_rows(D1)
        self.ts('filt', 'p2')
        e(pc[9])
        for t in range(2):
            e(f'{MF} {vr(dre(D0,t),4)}, {vr(FR,4)}, {vr(GC+4*t,4)}, 0\n{MF} {vr(dim(D0,t),4)}, {vr(FI,4)}, {vr(GC+4*t,4)}, 0')
        e(pc[10])
        for t in range(2):
            e(f'{MF} {vr(dre(D0,t),4)}, {vr(FI,4)}, {vr(GN+4*t,4)}, {vr(dre(D0,t),4)}\n{MF} {vr(dim(D0,t),4)}, {vr(FR,4)}, {vr(GS+4*t,4)}, {vr(dim(D0,t),4)}')
        self.ts('s3', 'p2')
        e(('wvm', 'sg'))
        for t in range(2):
            for h in range(0, 4, 2):
                e(f'v_pk_mul_f32 {vr(dre(XD,t)+h,2)}, {vr(dre(XD,t)+h,2)}, {vr(SG+4*t+h,2)}')
                e(f'v_pk_mul_f32 {vr(dim(XD,t)+h,2)}, {vr(dim(XD,t)+h,2)}, {vr(SG+4*t+h,2)} neg_lo:[1,0] neg_hi:[1,0]')
        cmul(D0, D1, TC2, TS2, True)
        for t in range(2):
            for r in range(4): e(f'v_cvt_pk_bf16_f32 v{AO+4*t+r}, v{dre(D1,t)+r}, -v{dim(D1,t)+r}')
            e(f'ds_write_b128 v{AEX}, {vr(AO+4*t,4)} offset:{L_EX+4096*t}')
        self.ts('tw2', 'p2')
        e(pc[11])
        e('s_waitcnt lgkmcnt(0)\ns_barrier')
        for u in range(4):
            for t in range(2):
                e(f'ds_read_b128 {vr(AF+(t*4+u)*4,4)}, v{V_L16} offset:{L_EX+4096*t+1024*u}'); e(('mark', f'a{t}{u}'))
        self.ts('bar2', 'p2')
        e(pc[12])
        for u in range(4):
            for t in range(2):
                e(('wlg', f'a{t}{u}'))
                e(f'{MF} {vr(dre(XD,t),4)}, {vr(AF+(t*4+u)*4,4)}, {vr(BRE+4*u,4)}, {vr(dre(XD,t),4)}')
                e(f'{MF} {vr(dim(XD,t),4)}, {vr(AF+(t*4+u)*4,4)}, {vr(BIM+4*u,4)}, {vr(dim(XD,t),4)}')
            if u < 3: e(pc[13+u])
        self.ts('s4', 'p2')
        for t in range(2):
            for c in range(2):
                src = XD + 8*t + 4*c; o = D0 + (t*2+c)*2; ng = '-' if c else ''
                e(f'v_cvt_pk_bf16_f32 v{o}, {ng}v{src}, {ng}v{src+1}\nv_cvt_pk_bf16_f32 v{o+1}, {ng}v{src+2}, {ng}v{src+3}')
                if c: e(f'v_and_b32 v{o}, s{S_NY}, v{o}\nv_and_b32 v{o+1}, s{S_NY}, v{o+1}')
                e(f'ds_write_b64 v{AOB}, {vr(o,2)} offset:{L_OB+4096*c+32*t}')
        e('s_waitcnt lgkmcnt(0)')
        e(f'ds_read_b128 {vr(D0+8,4)}, v{AEX} offset:{L_OB}\nds_read_b128 {vr(D0+12,4)}, v{AEX} offset:{L_OB+4096}')
        e(f's_waitcnt lgkmcnt(1)\nbuffer_store_dwordx4 {vr(D0+8,4)}, v5, {WSr}, s{S_HT} offen sc1')
        e(f's_waitcnt lgkmcnt(0)\nbuffer_store_dwordx4 {vr(D0+12,4)}, v5, {WSr}, s{S_HT} offen offset:256 sc1')
        self.ts('HT stored'); self.ts('HT stored', 'p2')
        e(('mark', 'htst'))
        e(('wvm', 'f1b')); self.check_or_poll(94, 95)
        e(self.w2_dma(2)); e(spread(self.wsp_read(1), self.w2_dma(3)))
        e(('wvm', 'htst')); e('s_barrier')
        self.flag_write(F2)
        self.ts('F2'); self.ts('F2', 'p2')

    GA = -2*math.sqrt(2/math.pi)*math.log2(math.e); GB = GA*0.044715
    V_KA, V_KB = 14, 30
    def gelu4(self, acc, scale, scale_pair, T):
        out = []; KA, KB = self.V_KA, self.V_KB
        for h in (0, 2):
            a = vr(acc+h, 2)
            out.append(f'v_pk_mul_f32 {a}, {a}, {vr(scale+h,2)}' if scale_pair else f'v_pk_mul_f32 {a}, {a}, {vr(scale,2)} op_sel_hi:[1,0]')
        for h in (0, 2): out.append(f'v_pk_mul_f32 {vr(T+h,2)}, {vr(acc+h,2)}, {vr(acc+h,2)}')
        for h in (0, 2): out.append(f'v_pk_fma_f32 {vr(T+h,2)}, {vr(T+h,2)}, {vr(KB,2)}, {vr(KA,2)} op_sel_hi:[1,0,0]')
        for h in (0, 2): out.append(f'v_pk_mul_f32 {vr(T+h,2)}, {vr(T+h,2)}, {vr(acc+h,2)}')
        for i in range(4): out.append(f'v_exp_f32 v{T+i}, v{T+i}')
        for h in (0, 2): out.append(f'v_pk_add_f32 {vr(T+h,2)}, {vr(T+h,2)}, 1.0 op_sel_hi:[1,0]')
        for i in range(4): out.append(f'v_rcp_f32 v{T+i}, v{T+i}')
        for h in (0, 2): out.append(f'v_pk_mul_f32 {vr(acc+h,2)}, {vr(acc+h,2)}, {vr(T+h,2)}')
        return out
    @staticmethod
    def zip2(a, b):
        out = []
        for i in range(max(len(a), len(b))): out += a[i:i+1] + b[i:i+1]
        return out

    S_P4, S_TL = 52, 53
    def w2_dma(self, n):
        return [[f's_lshl_b32 s{t3}, s{S_W}, 12', f's_add_u32 m0, s{t3}, {L_W2+n*16384}', f's_add_u32 s{t3}, s{t3}, s{self.S_TL+n}',
                 f'buffer_load_dwordx4 v{V_L16}, {WSr}, s{t3} offen sc1 lds']] + \
               [[f'buffer_load_dwordx4 v{V_L16}, {WSr}, s{t3} offen offset:{1024*i} sc1 lds'] for i in range(1, 4)]

    def p4_ids(self, va, vb, vc):
        S_P4, S_TL = self.S_P4, self.S_TL
        if self.map4 == 2:
            a = lines(f's_and_b32 s{S_RB4}, s2, 7\ns_lshl_b32 s{S_RB4}, s{S_RB4}, 1\ns_bfe_u32 s{t0}, s2, 0x10003\ns_or_b32 s{S_RB4}, s{S_RB4}, s{t0}\ns_lshr_b32 s{S_J4}, s2, 4')
        else:
            a = lines(f's_and_b32 s{S_RB4}, s2, 3\ns_lshl_b32 s{S_RB4}, s{S_RB4}, 2\ns_or_b32 s{S_RB4}, s{S_RB4}, s{S_KB}\ns_bfe_u32 s{S_J4}, s2, 0x10002\ns_lshl_b32 s{S_J4}, s{S_J4}, 3\ns_lshr_b32 s{t0}, s2, 5\ns_or_b32 s{S_J4}, s{S_J4}, s{t0}')
        a += lines(f's_and_b32 s{S_TB6}, s2, 31\ns_lshr_b32 s{S_DB}, s2, 5')
        a += lines(f's_lshr_b32 s{S_M4}, s{S_J4}, 1\ns_mul_i32 s{S_M4}, s{S_M4}, 7\ns_and_b32 s{S_P4}, s{S_J4}, 1\ns_lshl_b32 s{S_P4}, s{S_P4}, 2')
        a += lines(f's_add_u32 s{t0}, s{S_P4}, 56\ns_mul_i32 s{t1}, s{S_P4}, 14\ns_sub_u32 s{t1}, 56, s{t1}\ns_sub_u32 s{t2}, s{S_P4}, 4')
        a += lines(f'v_lshrrev_b32 v{va}, 2, v{V_LANE}\nv_min_u32 v{va}, 6, v{va}\nv_mov_b32 v{vb}, s{t2}\nv_mov_b32 v{vc}, s{t1}\nv_cmp_eq_u32 vcc, 3, v{va}\nv_cndmask_b32 v{vb}, v{vb}, v{vc}, vcc')
        a += lines(f'v_mov_b32 v{vc}, s{t0}\nv_cmp_gt_u32 vcc, 3, v{va}\nv_cndmask_b32 v{vb}, v{vb}, v{vc}, vcc\nv_add3_u32 v{va}, v{va}, v{vb}, s{S_M4}\nv_lshrrev_b32 v{va}, 1, v{va}')
        a += lines(f'v_and_b32 v{vb}, 7, v{va}\nv_lshrrev_b32 v{va}, 3, v{va}\nv_lshl_add_u32 v{vb}, v{vb}, 5, v{va}\nv_and_b32 v{va}, 3, v{V_LANE}\nv_lshl_add_u32 v{vb}, v{va}, 3, v{vb}')
        a += lines(f'v_lshlrev_b32 v{vb}, 7, v{vb}\nv_add_u32 v{vb}, {F1B}, v{vb}')
        for n, o in enumerate([t0, t0, t0, t1, t2, t2, t2]):
            a += lines(f's_add_u32 s{S_TL+n}, s{S_M4}, s{o}\ns_add_u32 s{S_TL+n}, s{S_TL+n}, {n}\ns_lshl_b32 s{S_TL+n}, s{S_TL+n}, 14\ns_add_u32 s{S_TL+n}, s{S_TL+n}, {WS_W2F}')
        return a

    FI = 96
    def fdi_gen(self):
        T = 32; FI = self.FI
        g = lines(f's_lshl_b32 s{t0}, s{S_J4}, 5\nv_lshrrev_b32 v{T}, 2, v{V_J}\nv_lshlrev_b32 v{T}, 3, v{T}\nv_and_b32 v{T+1}, 3, v{V_J}\nv_add3_u32 v{T}, v{T}, v{T+1}, s{t0}')
        g += lines(f's_lshl_b32 s{t0}, s{S_W}, 6\ns_add_u32 s{t0}, s{t0}, 1\nv_lshl_add_u32 v{T+2}, v{V_Q}, 2, s{t0}\nv_cvt_f32_u32 v{T+2}, v{T+2}')
        g += lines(f'v_mov_b32 v{T+4}, 1.0\nv_mov_b32 v{T+5}, {f32(1/math.sqrt(2))}\nv_cmp_eq_u32 vcc, 0xf0, v0\nv_lshrrev_b32 v{T+6}, 4, v0\nv_cmp_eq_u32 vcc, 15, v{T+6}\nv_cndmask_b32 v{T+4}, v{T+4}, v{T+5}, vcc')
        for n in range(2):
            g += lines(f'v_add_u32 v{T+1}, {4*n}, v{T}\nv_cvt_f32_u32 v{T+1}, v{T+1}\nv_mul_f32 v{T+1}, {f32(1/512)}, v{T+1}\nv_mul_f32 v{T+3}, v{T+2}, v{T+1}\nv_fract_f32 v{T+3}, v{T+3}')
            for up in range(4):
                for r in range(4): g.append(f'v_fmamk_f32 v{T+8+r}, v{T+1}, {f32(16*up+r)}, v{T+3}')
                for r in range(4): g += [f'v_sin_f32 v{T+12+r}, v{T+8+r}', f'v_cos_f32 v{T+8+r}, v{T+8+r}']
                if up == 3: g.append(f'v_mul_f32 v{T+11}, v{T+11}, v{T+4}')
                o = FI + (up*2+n)*4
                g += [f'v_cvt_pk_bf16_f32 v{o}, v{T+8}, v{T+9}', f'v_cvt_pk_bf16_f32 v{o+1}, v{T+10}, v{T+11}',
                      f'v_cvt_pk_bf16_f32 v{o+2}, -v{T+12}, -v{T+13}', f'v_cvt_pk_bf16_f32 v{o+3}, -v{T+14}, -v{T+15}']
        return g

    def p4(self):
        e = self.e; S_P4 = self.S_P4
        AWr, AR, AB2, ADG = 20, 10, 12, 13
        S_H0 = 19
        a = lines(f's_lshl_b32 s{S_H0}, s{S_RB4}, 17\ns_lshl_b32 s{t1}, s{S_W}, 12\ns_add_u32 s{S_H0}, s{S_H0}, s{t1}\ns_add_u32 s{S_H0}, s{S_H0}, {WS_HT}\ns_mov_b32 s18, s{t1}')
        a += lines(f'v_and_b32 v16, 2, v{V_Q}\nv_lshlrev_b32 v16, 5, v16\nv_xor_b32 v{AWr}, v16, v{V_L16}')
        for i in range(1, 4): a.append(f'v_xor_b32 v{AWr+i}, {(4*(i&1) + (i>>1))*32}, v{AWr}')
        a += lines(f's_lshl_b32 s{t0}, s{S_W}, 10\ns_add_u32 s{t0}, s{t0}, {L_RING}')
        a += lines(f's_add_u32 s{t0}, s{t0}, {L_SM-L_RING}\nv_lshl_add_u32 v{ADG}, v{V_J}, 2, s{t0}\nv_lshrrev_b32 v16, 2, v{V_J}\nv_cmp_eq_u32 vcc, v16, v{V_Q}')
        a += lines(f's_add_u32 s{t0}, s{t0}, 512\nv_lshl_add_u32 v16, v{V_LANE}, 2, s{t0}\nv_cndmask_b32 v{ADG}, v16, v{ADG}, vcc')
        a += lines(f'v_bfe_u32 v16, v{V_LANE}, 2, 2\nv_and_b32 v17, 1, v{V_Q}\nv_lshl_add_u32 v17, v16, 1, v17\ns_lshl_b32 s{t0}, s{S_W}, 1\nv_xor_b32 v17, s{t0}, v17')
        a += lines(f'v_lshl_add_u32 v16, v{V_Q}, 2, v16\nv_lshlrev_b32 v16, 9, v16\nv_lshl_add_u32 v16, v17, 5, v16\nv_and_b32 v17, 3, v{V_LANE}\nv_lshl_add_u32 v16, v17, 3, v16')
        a += lines(f'v_add_u32 v{AR}, 0x10000, v16\nv_xor_b32 v{AR+1}, 32, v{AR}\nv_add_u32 v8, {L_RING-0x10000}, v{AR}\nv_add_u32 v9, {L_RING-0x10000}, v{AR+1}\nv_add_u32 v{AB2}, 0x10000, v{V_L16}')
        a += lines(f'v_mov_b32 v{self.V_KA}, {f32(self.GA)}\nv_mov_b32 v{self.V_KB}, {f32(self.GB)}')
        a += lines(f'v_lshrrev_b32 v16, 3, v{V_LANE}\nv_lshlrev_b32 v16, 5, v16\nv_and_b32 v17, 7, v{V_LANE}\ns_lshl_b32 s{t0}, s{S_W}, 3\nv_add3_u32 v16, v16, v17, s{t0}')
        a += lines(f'v_lshlrev_b32 v16, 7, v16\nv_add_u32 v15, {F2}, v16')
        a += lines(f'v_lshrrev_b32 v16, 3, v{V_J}\nv_lshlrev_b32 v16, 4, v16\nv_lshl_add_u32 v16, v{V_Q}, 2, v16\nv_bfe_u32 v17, v{V_J}, 2, 1\nv_lshl_add_u32 v16, v17, 1, v16')
        a += lines(f'v_and_b32 v17, 1, v{V_J}\nv_add_lshl_u32 v25, v16, v17, 4')
        a += lines(f'v_and_b32 v16, 31, v{V_LANE}\nv_lshlrev_b32 v16, 4, v16\nv_lshrrev_b32 v17, 5, v{V_LANE}\nv_lshl_add_u32 v24, v17, 11, v16')
        S_ST = 12
        a += lines(f's_lshl_b32 s{S_ST}, s{S_RB4}, 15\ns_lshl_b32 s{t1}, s{S_W}, 9\ns_add_u32 s{S_ST}, s{S_ST}, s{t1}\ns_add_u32 s{S_ST}, s{S_ST}, {WS_STAT}')
        a += lines(f's_lshl_b32 s{t1}, s{S_J4}, 11\ns_add_u32 s{S_ST+1}, s{t1}, s{S_ST}')
        e(spread(a[:40], self.w2_dma(0) + self.w2_dma(1)))
        setup, pc = self.wsp_issue(2, 62); e('s_waitcnt lgkmcnt(0)'); e(setup)
        e(spread(a[40:] + self.fdi_gen(), pc))
        e(f's_mul_i32 s{t0}, s2, 3584\nv_lshlrev_b32 v17, 7, v{V_LANE}\ns_cmp_eq_u32 s{S_W}, 3\ns_cselect_b32 exec_lo, 0xfffffff, 0\ns_mov_b32 exec_hi, 0')
        e(f'buffer_load_dword v18, v17, {sr(SWOUT,4)}, s{t0} offen\ns_mov_b64 exec, -1'); e.nvm -= 1
        e(f'v_lshrrev_b32 v17, 1, v{V_J}\nv_mul_u32_u24 v17, 1040, v17\nv_and_b32 v16, 1, v{V_J}\nv_lshl_add_u32 v17, v16, 9, v17\nv_lshl_add_u32 v17, v{V_Q}, 3, v17')
        e(f's_mul_i32 s{t0}, s{S_W}, 8320\nv_add_u32 v31, s{t0}, v17\nv_lshrrev_b32 v17, 5, v{V_LANE}\nv_lshlrev_b32 v17, 12, v17\nv_and_b32 v16, 31, v{V_LANE}\nv_lshl_add_u32 v5, v16, 4, v17')
        e(('wvm', 'wsp2')); e(self.wsp_read(2))
        e('s_waitcnt lgkmcnt(0)\ns_barrier')
        self.ts('pre F2 poll')
        self.poll(15)
        self.ts('F2 seen')
        for sg in range(3): e(self.h_loads(sg))
        LP = e.label_name('par1'); LJ = e.label_name('p4join')
        e(f's_cmp_lg_u32 s{S_P4}, 0\ns_cbranch_scc1 {LP}')
        nv, nt = e.nvm, self.nts
        self.p4_body(0); e(f's_branch {LJ}\n{LP}:')
        e.nvm = nv; self.nts = nt; self.names = self.names[:nt]
        self.p4_body(1); e(f'{LJ}:')

    @staticmethod
    def hbuf(sg): return [4*16384, 5*16384, 6*16384, L_RING, L_RING+16384, L_RING+32768, 6*16384, L_RING][sg]
    def wg4(self, dst, vr4, vj4, tmp):
        if self.map4 == 2:
            return lines(f'v_lshrrev_b32 v{tmp}, 1, v{vr4}\nv_and_b32 v{vr4}, 1, v{vr4}\nv_lshl_add_u32 v{vr4}, v{vr4}, 3, v{tmp}\nv_lshl_add_u32 v{dst}, v{vj4}, 4, v{vr4}')
        return lines(f'v_lshrrev_b32 v{tmp}, 2, v{vr4}\nv_and_b32 v{vr4}, 3, v{vr4}\nv_lshl_add_u32 v{vr4}, v{vr4}, 3, v{tmp}\nv_lshrrev_b32 v{tmp}, 3, v{vj4}\nv_lshl_add_u32 v{vr4}, v{tmp}, 2, v{vr4}\n'
                     f'v_and_b32 v{tmp}, 7, v{vj4}\nv_lshl_add_u32 v{dst}, v{tmp}, 5, v{vr4}')
    def h_loads(self, sg):
        out = [[f'buffer_load_dwordx4 v{20+i}, {WSr}, s{t0} offen offset:{1024*i} sc1 lds'] for i in range(4)]
        out[0] = [f's_add_u32 m0, s18, {self.hbuf(sg)}', f's_add_u32 s{t0}, s19, {sg*16384}'] + out[0]
        out[-1].append(('mark', f'h{sg}'))
        return out

    def gelu_s(self, acc, scale, T, n=4):
        KA, KB = self.V_KA, self.V_KB; R = range(n); o = []
        o += [f'v_mul_f32 v{acc+i}, v{acc+i}, v{scale}' for i in R] + [f'v_mul_f32 v{T+i}, v{acc+i}, v{acc+i}' for i in R]
        o += [f'v_fma_f32 v{T+i}, v{T+i}, v{KB}, v{KA}' for i in R] + [f'v_mul_f32 v{T+i}, v{T+i}, v{acc+i}' for i in R]
        o += [f'v_exp_f32 v{T+i}, v{T+i}' for i in R] + [f'v_add_f32 v{T+i}, 1.0, v{T+i}' for i in R]
        o += [f'v_rcp_f32 v{T+i}, v{T+i}' for i in R] + [f'v_mul_f32 v{acc+i}, v{acc+i}, v{T+i}' for i in R]
        return o

    def p4_body(self, par):
        e = self.e
        AG, AWr, AR, AB2, ADG = 8, 9, 10, 12, 13
        AW4 = 20
        AF, ZA, DG, BF, T, FI = 128, 64, 56, 32, 16, self.FI
        SQ = BF; S_ST = 12; RLt = [26, 28]; NB = 6
        nz2, nz1 = 4 - par, 3 + par
        af = lambda u, tau: AF + (u*2 + tau)*4
        za = lambda n, tau: ZA + (n*2 + tau)*4
        z1a = lambda n, tau: (DG if n == 0 else FI + 8*(n-1)) + 4*tau
        def bread(dst, slot, u):
            return (f'ds_read_b128 {vr(dst,4)}, v{V_L16} offset:{slot*16384+u*1024}' if slot < 4 else
                    f'ds_read_b128 {vr(dst,4)}, v{AB2} offset:{(slot-4)*16384+u*1024}')
        items = [(u, n) for u in range(16) for n in range(nz2)]
        LA = 5
        rdi = lambda i: [bread(BF+4*(i % NB), items[i][1], items[i][0]), ('mark', f'bf{i}')]
        def block(sg):
            out = []
            for u in (2*sg, 2*sg+1):
                for tau in range(2): out.append([f'{MF} {vr(DG+4*tau,4)}, {vr(af(u,tau),4)}, {vr(af(u,tau),4)}, {vr(DG+4*tau,4) if u else 0}'])
            out[0] = [('wlg', f'tr{sg}')] + out[0]
            for i, (u, n) in enumerate(items):
                if u >> 1 != sg: continue
                mmf = [f'{MF} {vr(za(n,tau),4)}, {vr(af(u,tau),4)}, {vr(BF+4*(i%NB),4)}, {vr(za(n,tau),4) if u else 0}' for tau in range(2)]
                out.append([('wlg', f'bf{i}'), mmf[0]])
                out.append([mmf[1]] + (rdi(i + LA) if i + LA < len(items) else []))
            return out
        z1dma = [self.w2_dma(n) for n in range(4, 7)]
        rh = pick4(T, DG, T+2) + pick4(T+1, DG+4, T+2) + [f'ds_write2_b32 v{ADG}, v{T}, v{T+1} offset0:0 offset1:16', ('mark', 'dgw')]
        rh += lines(f's_lshl_b32 s{t0}, s{S_W}, 10\ns_add_u32 s{t0}, s{t0}, {L_SM}\nv_lshl_add_u32 v{T}, v{V_Q}, 4, s{t0}\nv_lshl_add_u32 v{T+1}, v{V_J}, 2, s{t0}')
        rh += [[('wlg', 'dgw')] + [f'ds_read_b128 {vr(DG+4*tau,4)}, v{T} offset:{64*tau}' for tau in range(2)] +
               [f'ds_read_b32 v{RLt[tau]}, v{T+1} offset:{64*tau}' for tau in range(2)] + [('mark', 'dgr')]]
        rh += [f'v_mov_b32 v{T+2}, {f32(0.5)}', f'v_mov_b32 v{T+4}, {f32(256e-5)}']
        for sg in range(9):
            prev = block(sg - 1) if sg else []
            if sg < 8:
                nxt = self.h_loads(sg + 3) if sg + 3 < 8 else z1dma[sg - 5]
                ra, ro = (AR, self.hbuf(sg) - 0x10000) if self.hbuf(sg) < L_RING else (8, self.hbuf(sg) - L_RING)
                tr = [f'ds_read_b64_tr_b16 {vr(af(2*sg+v,tau)+2*c,2)}, v{ra+tau} offset:{ro+v*8192+c*256}' for v in range(2) for tau in range(2) for c in range(2)]
                k1 = self.opt.get('k1', 6) if prev else 0
                if sg == 0:
                    e(('wvm', 'h0')); e('s_barrier'); e(tr); e(('mark', 'tr0'))
                    for i in range(LA): e(rdi(i))
                    e(nxt)
                else:
                    e(prev[:k1]); e(('wvm', f'h{sg}')); e('s_barrier')
                    e(spread(prev[k1:k1+6], tr)); e(('mark', f'tr{sg}'))
                    e(spread(prev[k1+6:], nxt))
            else:
                e(prev[:8]); e(spread(prev[8:], rh))
            if sg in (0, 3, 7): self.ts(f'stage {sg}', 'p4')
        e(('mark', 'w2z1'))
        self.ts('stream done'); self.ts('stream done', 'p4')
        e(('wlg', 'dgr'))
        for i in range(0, 8, 2): e(f'v_pk_fma_f32 {vr(DG+i,2)}, {vr(DG+i,2)}, {vr(T+2,2)}, {vr(T+4,2)} op_sel_hi:[1,0,0]')
        for rg in RLt: e(f'v_fma_f32 v{rg}, v{rg}, v{T+2}, v{T+4}')
        for rg in [DG+i for i in range(8)] + RLt: e(f'v_rsq_f32 v{rg}, v{rg}')
        self.ts('rh', 'p4')
        for n in range(nz2):
            e(self.zip2(self.gelu4(za(n,0), DG, True, T), self.gelu4(za(n,1), DG+4, True, T+4)))
            for tau in range(2):
                for h in (0, 2):
                    a = vr(za(n,tau)+h, 2); sS = vr(SQ+4*tau+h, 2); sQ = vr(SQ+8+4*tau+h, 2)
                    if n == 0: e(f'v_pk_mul_f32 {sQ}, {a}, {a}')
                    elif n == 1: e(f'v_pk_add_f32 {sS}, {vr(za(0,tau)+h,2)}, {a}\nv_pk_fma_f32 {sQ}, {a}, {a}, {sQ}')
                    else: e(f'v_pk_add_f32 {sS}, {sS}, {a}\nv_pk_fma_f32 {sQ}, {a}, {a}, {sQ}')
        self.ts('z2 gelu', 'p4')
        dpp = lambda d, s_, ctl, bm: f'v_add_f32_dpp v{d}, v{s_}, v{s_} {ctl} row_mask:0xf bank_mask:{bm:#x}'
        for src, bm in ((0, 0x3), (4, 0xc)):
            for k in (0, 8):
                for r in range(4): e(dpp(SQ+k+r, SQ+k+src+r, 'row_ror:8', bm))
        e(f'v_mov_b32 v{T+1}, s{S_TAG}\nv_mov_b32 v{T+3}, s{S_TAG}')
        for src, bm in ((0, 0x5), (2, 0xa)):
            for k in (0, 8):
                for m in range(2): e(dpp(SQ+k+m, SQ+k+src+m, 'row_half_mirror', bm))
        for ctl in ('quad_perm:[1,0,3,2]', 'quad_perm:[2,3,0,1]'):
            for k in (0, 8):
                for m in range(2): e(dpp(SQ+k+m, SQ+k+m, ctl, 0xf))
        e(f'v_cndmask_b32 v{T}, v{SQ}, v{SQ+1}, {M_J1}\nv_cndmask_b32 v{T+2}, v{SQ+8}, v{SQ+9}, {M_J1}\ns_not_b64 exec, {M_J2}')
        e(f'buffer_store_dwordx4 {vr(T,4)}, v25, {WSr}, s{S_ST+1} offen sc1\ns_mov_b64 exec, -1')
        self.ts('stats out'); self.ts('stats out', 'p4')
        sA, pA = self.wsph_issue(0, 5); sB, pB = self.wsph_issue(1, 5)
        e(sA); e(('wvm', 'w2z1')); e('s_barrier')
        zit = [(n, u) for n in range(nz1) for u in range(16)]
        rdz = lambda i: [bread(BF+4*(i % NB), nz2+zit[i][0], zit[i][1]), ('mark', f'c{i}')]
        for i in range(LA): e(rdz(i))
        main = []
        for i, (n, u) in enumerate(zit):
            for tau in range(2):
                acc = vr(z1a(n, tau), 4)
                m = [f'{MF} {acc}, {vr(BF+4*(i%NB),4)}, {vr(af(u,tau),4)}, {acc if u else 0}']
                if tau == 0: m = [('wlg', f'c{i}')] + m
                elif i + LA < len(zit): m += rdz(i + LA)
                main.append(m)
        S_Z1, S_Z2, S_HF, S_MN = 14, 16, 17, 18
        f0 = [f's_lshl_b32 s{t0}, s{S_W}, 12', f's_add_u32 s{t0}, s{t0}, {L_RING}', f'v_add_u32 v{T}, s{t0}, v{V_L16}']
        f0 += [f'ds_write_b128 v{T}, {vr(FI+(up*2+n)*4,4)} offset:{n*16384+up*1024}' for up in range(4) for n in range(2)]
        f1 = [lines(f's_or_b32 s{t1}, s2, s{S_W}\ns_cmp_eq_u32 s{t1}, 0\ns_cselect_b32 exec_lo, {0 if self.opt.get("noepoch") else 1}, 0\ns_mov_b32 exec_hi, 0\nv_mov_b32 v6, s{S_TAG}\nv_mov_b32 v7, 0\n'
                    f'buffer_store_dword v6, v7, {WSr}, 0 offen offset:{WS_EPOCH} sc1\ns_mov_b64 exec, -1') + [self.uncount()]]
        f1 += lines(f's_lshl_b32 s{S_HF}, s{S_RB4}, 3\ns_lshl_b32 s{t1}, s{S_W}, 1\ns_add_u32 s{S_HF}, s{S_HF}, s{t1}\ns_mul_i32 s{S_Z1}, s{S_HF}, 56\ns_add_u32 s{S_Z1}, s{S_Z1}, s{S_M4}')
        f1 += lines(f's_add_u32 s{S_Z1}, s{S_Z1}, {3*par}\ns_lshl_b32 s{S_Z1}, s{S_Z1}, 9\ns_add_u32 s{S_Z1}, s{S_Z1}, {WS_Z1F}\ns_add_u32 s{S_Z1+1}, s{S_Z1}, {56*512}')
        f1 += lines(f's_lshl_b32 s{S_HF}, s{S_HF}, 4\ns_add_u32 s{S_HF}, s{S_HF}, s{S_J4}\ns_lshl_b32 s{S_HF}, s{S_HF}, 10\ns_add_u32 s{S_HF}, s{S_HF}, {WS_HF}')
        f1 += lines(f's_lshl_b32 s{t1}, s{S_RB4}, 2\ns_add_u32 s{t1}, s{t1}, s{S_W}\ns_add_u32 s{S_Z2}, s{S_M4}, {4*par}\ns_lshl_b32 s{S_Z2}, s{S_Z2}, 6\ns_add_u32 s{S_Z2}, s{S_Z2}, s{t1}')
        f1 += lines(f's_lshl_b32 s{S_Z2}, s{S_Z2}, 10\ns_add_u32 s{S_Z2}, s{S_Z2}, {WS_Z2F}\ns_lshl_b32 s{S_MN}, s{t1}, 2\ns_add_u32 s{S_MN}, s{S_MN}, {WS_MEAN}\ns_add_u32 s{S_MN+1}, s{S_MN}, 4096')
        f1 += lines(f'v_lshlrev_b32 v{T+1}, 8, v{V_J}\nbuffer_load_dword v10, v{T+1}, {WSr}, s{S_MN} offen sc1\nbuffer_load_dword v11, v{T+1}, {WSr}, s{S_MN+1} offen sc1')
        f1 += lines(f'v_lshlrev_b32 v{AG}, 3, v{V_LANE}\ns_lshl_b32 s{t0}, s{S_W}, 10\ns_add_u32 s{t0}, s{t0}, {L_SM}\nv_and_b32 v{T+2}, 31, v{V_LANE}\nv_lshl_add_u32 v{AWr}, v{T+2}, 2, s{t0}\nv_lshl_add_u32 v{ADG}, v{V_Q}, 4, s{t0}')
        GA_ = 0
        f0 = [f0[:3]] + self.zip2(pA, f0[3:])
        f2 = [('wvm', 'wsph0')] + self.wsph_read(0, 31) + [('mark', 'hA')]
        e(spread(main[:32], f0, 0, 28)); e(spread(main[32:52], f1)); e(spread(main[52:62], f2)); e(main[62:68])
        e(('wlg', 'hA')); e(sB); e(spread(main[68:], pB, 0, 24))
        self.ts('z1 done'); self.ts('z1 done', 'p4')
        GR = BF
        gr = lambda i: GR + 4*i if i < 6 else T + 4*(i-6)
        L = e.label_name('sp'); Dn = e.label_name('spd')
        e(f's_mov_b32 s{t0}, 0\n{L}:')
        for i in range(8):
            e(f's_add_u32 s{t1}, s{S_ST}, {i*4096}\nbuffer_load_dwordx4 {vr(gr(i),4)}, v24, {WSr}, s{t1} offen sc1')
        e(f's_add_u32 s{t0}, s{t0}, 1\ns_cmp_ge_u32 s{t0}, {SPIN_MAX}\ns_cbranch_scc1 {Dn}\ns_waitcnt vmcnt(0)')
        e(f'v_cmp_ne_u32 vcc, s{S_TAG}, v{gr(0)+1}')
        for i in range(8):
            for o in (1, 3):
                if (i, o) != (0, 1): e(f'v_cmp_ne_u32 s[62:63], s{S_TAG}, v{gr(i)+o}\ns_or_b64 vcc, vcc, s[62:63]')
        e(f's_cbranch_vccnz {L}\n{Dn}:\ns_waitcnt vmcnt(0)')
        self.ts('stats in'); self.ts('stats in', 'p4')
        for st in (4, 2, 1):
            for i in range(st): e(f'v_add_f32 v{gr(i)}, v{gr(i)}, v{gr(i+st)}\nv_add_f32 v{gr(i)+2}, v{gr(i)+2}, v{gr(i+st)+2}')
        e(f'v_mov_b32 v{GR+1}, v{GR}\nv_mov_b32 v{GR+3}, v{GR+2}')
        e(f'v_permlane32_swap_b32 v{GR}, v{GR+1}\nv_permlane32_swap_b32 v{GR+2}, v{GR+3}')
        e(f'v_add_f32 v{GR}, v{GR}, v{GR+1}\nv_add_f32 v{GR+2}, v{GR+2}, v{GR+3}')
        e(f'v_mul_f32 v{GR}, {f32(1/896)}, v{GR}\nv_mul_f32 v{GR+2}, {f32(1/896)}, v{GR+2}')
        e(f'v_fma_f32 v{GR+2}, -v{GR}, v{GR}, v{GR+2}\nv_max_f32 v{GR+2}, 0, v{GR+2}\nv_add_f32 v{GR+2}, {f32(1e-5)}, v{GR+2}\nv_rsq_f32 v{GR+2}, v{GR+2}')
        e(f'v_mul_f32 v{GR}, -v{GR}, v{GR+2}')
        e(f'ds_write2_b32 v{AWr}, v{GR}, v{GR+2} offset0:32 offset1:64\ns_waitcnt lgkmcnt(0)')
        NM = GR + 4
        for tau in range(2):
            for kind in range(2): e(f'ds_read_b128 {vr(NM+8*kind+4*tau,4)}, v{ADG} offset:{128+128*kind+64*tau}')
        e('s_waitcnt lgkmcnt(0)')
        for n in range(nz2):
            for tau in range(2):
                for h in (0, 2):
                    a = vr(za(n,tau)+h, 2)
                    e(f'v_pk_fma_f32 {a}, {a}, {vr(NM+8+4*tau+h,2)}, {vr(NM+4*tau+h,2)}')
            for tau in range(2):
                for h in (0, 2): e(f'v_cvt_pk_bf16_f32 v{za(n,0)+2*tau+h//2}, v{za(n,tau)+h}, v{za(n,tau)+h+1}')
            e(f'buffer_store_dwordx4 {vr(za(n,0),4)}, v{V_L16}, {WSr}, s{S_Z2} offen sc1')
            if n + 1 < nz2: e(f's_add_u32 s{S_Z2}, s{S_Z2}, 65536')
        e(('mark', 'z2st'))
        e(self.wsph_read(1, 31))
        self.ts('z2 stored'); self.ts('z2 stored', 'p4')
        def z1out(n):
            o = []
            for tau in range(2):
                b = z1a(n, tau)
                o += [f'v_cvt_pk_bf16_f32 v{b}, v{b}, v{b+1}', f'v_cvt_pk_bf16_f32 v{b+1}, v{b+2}, v{b+3}',
                      f'buffer_store_dwordx2 {vr(b,2)}, v{AG}, {WSr}, s{S_Z1+tau} offen offset:{512*n} sc1']
            return o
        e(f'v_lshrrev_b32 v24, 3, v{V_LANE}\nv_and_b32 v25, 7, v{V_LANE}\nv_and_b32 v5, 6, v24\nv_xor_b32 v25, v25, v5\nv_lshlrev_b32 v24, 10, v24\nv_lshl_add_u32 v5, v25, 4, v24')
        e(f's_mul_i32 s{S_DO}, s{S_W}, {224*1024}\ns_lshl_b32 s{t1}, s{S_DB}, 7\ns_add_u32 s{S_DO}, s{S_DO}, s{t1}\ns_mul_i32 m0, s{S_W}, {224*128}\nv_add_u32 v{AB2}, {L_RING}, v{V_L16}')
        for n in range(2):
            e(self.zip2(self.gelu4(z1a(n,0), RLt[0], False, T), self.gelu4(z1a(n,1), RLt[1], False, T+4))); e(z1out(n))
        e(('wvm', 'z2st')); e('s_waitcnt lgkmcnt(0)\ns_barrier')
        self.flag_write(F4)
        self.ts('F4'); self.ts('F4', 'p4')
        dma = [[f'buffer_load_dwordx4 v5, {sr(SWOUT,4)}, s{S_DO} offen lds'] + (['s_add_u32 m0, m0, 1024', f's_add_u32 s{S_DO}, s{S_DO}, 8192'] if i < 27 else []) for i in range(28)]
        NWO = self.opt.get('nwo', 14); self.wo_late = [[x.replace('v5,', 'v15,') for x in p] for p in dma[NWO:]]
        HA = ZA + 16; hit = [(u, n) for u in range(16) for n in range(2)]
        rdh = lambda i: [f'ds_read_b128 {vr(BF+4*(i%NB),4)}, v{AB2} offset:{hit[i][1]*16384+hit[i][0]*1024}', ('mark', f'hh{i}')]
        for i in range(LA): e(rdh(i))
        main = []
        for i, (u, n) in enumerate(hit):
            for tau in range(2):
                acc = vr(HA+(tau*2+n)*4, 4)
                m = [f'{MF} {acc}, {vr(BF+4*(i%NB),4)}, {vr(af(u,tau),4)}, {acc if u else 0}']
                if tau == 0: m = [('wlg', f'hh{i}')] + m + (dma[i//2] if i % 2 == 0 and i//2 < NWO else [])
                elif i + LA < 32: m += rdh(i + LA)
                main.append(m)
        fill = []
        for n in range(2, nz1):
            fill += self.zip2(self.gelu_s(z1a(n,0), RLt[0], T), self.gelu_s(z1a(n,1), RLt[1], T+4)) + z1out(n)
        e(spread(main, fill))
        e(f'v_mov_b32 v{T}, {f32(1/16)}\ns_add_u32 s{t1}, s{S_HF}, 16384\nv_mov_b32 v15, v5')
        for tau in range(2):
            for i in range(0, 8, 2): e(f'v_pk_fma_f32 {vr(HA+8*tau+i,2)}, {vr(HA+8*tau+i,2)}, {vr(T,2)}, {vr(10,2)} op_sel:[0,0,{tau}] op_sel_hi:[1,0,{tau}]')
            for i in range(4): e(f'v_cvt_pk_bf16_f32 v{HA+8*tau+i}, v{HA+8*tau+2*i}, v{HA+8*tau+2*i+1}')
            e(f'buffer_store_dwordx4 {vr(HA+8*tau,4)}, v{V_L16}, {WSr}, s{S_HF if tau == 0 else t1} offen sc1')
        self.ts('h stored'); self.ts('h stored', 'p4')

    def p5(self):
        e = self.e
        RD = 16; PRE = self.opt.get('pre5', 12)
        RING, AC, RR, Z1, PK, BI, T = 64, 32, 128, 144, 160, 8, 16
        AWr, ARd, A8 = 10, 11, 12
        S_Z, S_P = 52, 53
        e(f'v_bfe_u32 v{T}, v{V_LANE}, 1, 2\ns_lshl_b32 s{t0}, s{S_W}, 2\nv_add_u32 v{T}, s{t0}, v{T}')
        AFH, VFH = 13, 14
        e(f'v_and_b32 v{T+1}, 1, v{V_LANE}\ns_lshl_b32 s{t0}, s{S_FB}, 1\nv_add_u32 v{T+1}, s{t0}, v{T+1}\ns_lshr_b32 s{t0}, s{S_TB}, 1\nv_mov_b32 v{AFH}, s{t0}')
        e(self.wg4(T, T, T+1, T+2)); e(self.wg4(AFH, AFH, T+1, T+2))
        e(f'v_lshlrev_b32 v{T}, 7, v{T}\nv_add_u32 v{T}, {F4}, v{T}\nv_lshlrev_b32 v{AFH}, 7, v{AFH}\nv_add_u32 v{AFH}, {FH}, v{AFH}')
        e(f's_lshl_b32 s{t0}, s{S_TB}, 7\ns_lshl_b32 s{t1}, s{S_W}, 5\ns_add_u32 s{t0}, s{t0}, s{t1}\nv_lshlrev_b32 v{T+1}, 1, v{V_J}')
        e(f'buffer_load_ushort v{BI}, v{T+1}, {sr(SBSP,4)}, s{t0} offen')
        e(f's_lshl_b32 s{t0}, s{S_W}, 12\ns_add_u32 s{t0}, s{t0}, {L_RING}\nv_add_u32 v{AWr}, s{t0}, v{V_L16}')
        e(f's_lshl_b32 s{t0}, s{S_W}, 10\ns_add_u32 s{t0}, s{t0}, {L_RING}\nv_add_u32 v{ARd}, s{t0}, v{V_L16}\nv_lshlrev_b32 v{A8}, 3, v{V_LANE}')
        e(f's_mul_i32 s{S_Z}, s{S_FB}, {7*65536}\ns_lshl_b32 s{t0}, s{S_W}, 14\ns_add_u32 s{S_Z}, s{S_Z}, s{t0}\ns_add_u32 s{S_Z}, s{S_Z}, {WS_Z2F}')
        e(f's_lshl_b32 s{S_P}, s{S_TB}, 3\ns_add_u32 s{S_P}, s{S_P}, s{S_FB}\ns_lshl_b32 s{S_P}, s{S_P}, 2\ns_add_u32 s{S_P}, s{S_P}, s{S_W}\ns_mul_i32 s{S_P}, s{S_P}, 3584\ns_add_u32 s{S_P}, s{S_P}, {WS_PF}')
        e(f's_lshl_b32 s{t2}, s{S_TB}, 2\ns_add_u32 s{t2}, s{t2}, s{S_W}\ns_mul_i32 s{t2}, s{t2}, 56\ns_mul_i32 s{t1}, s{S_FB}, 7\ns_add_u32 s{t2}, s{t2}, s{t1}\ns_lshl_b32 s{t2}, s{t2}, 9\ns_add_u32 s54, s{t2}, {WS_Z1F}')
        self.poll(T)
        self.ts('F4 seen'); self.ts('F4 seen', 'p5')
        def load(i):
            n, ks = divmod(i, 16)
            out = []
            if ks % 4 == 0: out.append(f's_add_u32 s{t3}, s{S_Z}, {n*65536 + ks*1024}')
            out += [f'buffer_load_dwordx4 {vr(RING+4*(i%RD),4)}, v{V_L16}, {WSr}, s{t3} offen offset:{(ks%4)*1024} sc1', ('mark', f'z{i}')]
            return out
        for i in range(PRE): e(load(i))
        e(f'v_lshlrev_b32 v{BI}, 16, v{BI}\ns_waitcnt lgkmcnt(0)\ns_barrier')
        self.flag_write(FH)
        def red_write(m): return [f'ds_write_b128 v{AWr}, {vr(AC+16*(m&1)+4*tau,4)} offset:{(m&1)*16384+tau*1024}' for tau in range(4)]
        def red_read(m): return ['s_waitcnt lgkmcnt(0)', 's_barrier'] + [f'ds_read_b128 {vr(RR+4*w2,4)}, v{ARd} offset:{(m&1)*16384+w2*4096}' for w2 in range(4)]
        G0 = 20
        def fin_a(m):
            d = G0 if m == 0 else RR
            o = ['s_waitcnt lgkmcnt(0)']
            for i in range(4): o += [f'v_add_f32 v{RR+i}, v{RR+i}, v{RR+4+i}', f'v_add_f32 v{RR+8+i}, v{RR+8+i}, v{RR+12+i}']
            for i in range(4): o += [f'v_add_f32 v{RR+i}, v{RR+i}, v{BI}']
            for i in range(4): o += [f'v_add_f32 v{d+i}, v{RR+i}, v{RR+8+i}']
            return o
        def fin_b(m):
            d = G0 if m == 0 else RR
            o = [('wvm', 'z1')] if m == 0 else []
            for h in (0, 2): o += [f'v_lshlrev_b32 v{T+h}, 16, v{Z1+2*m+h//2}', f'v_and_b32 v{T+h+1}, 0xffff0000, v{Z1+2*m+h//2}']
            for i in range(4): o += [f'v_mul_f32 v{d+i}, v{d+i}, v{T+i}']
            pk = PK + 4*((m >> 1) & 1) + 2*(m & 1)
            o += [f'v_cvt_pk_bf16_f32 v{pk}, v{d}, v{d+1}', f'v_cvt_pk_bf16_f32 v{pk+1}, v{d+2}, v{d+3}']
            if m == 6: o.append(f'buffer_store_dwordx2 {vr(pk,2)}, v{A8}, {WSr}, s{S_P} offen offset:3072 sc1')
            elif m & 1: o.append(f'buffer_store_dwordx4 {vr(pk-2,4)}, v{V_L16}, {WSr}, s{S_P} offen offset:{(m>>1)*1024} sc1')
            return o
        fin = lambda m: fin_a(m) + fin_b(m)
        IFH = self.opt.get('ifh', 8)
        for n in range(7):
            tail = [] if n == 0 else fin_a(0) if n == 1 else fin_b(0) + fin(1) if n == 2 else fin(n-1)
            k0 = 6 if n == 2 else 8
            per = -(-len(tail) // (15 - k0))
            for ks in range(16):
                i = n*16 + ks
                e(('wvm', f'z{i}'))
                for tau in range(4):
                    acc = vr(AC+16*(n&1)+4*tau, 4)
                    e(f'{MF} {acc}, {vr(RING+4*(i%RD),4)}, {ar((tau*16+ks)*4,4)}, {acc if ks else 0}')
                    if tau == 1 and i + PRE < 112: e(load(i + PRE))
                    if i + PRE >= 112 and tau in (1, 3) and self.wo_late: e(self.wo_late.pop(0))
                    if ks >= k0:
                        lo = (ks-k0)*per; seg = tail[lo:lo+per]
                        e(seg[(len(seg)*tau)//4:(len(seg)*(tau+1))//4])
                if n:
                    if ks == 1: e(red_write(n-1))
                    if ks == 4: e(red_read(n-1))
                if i == IFH: e(f'buffer_load_dword v{VFH}, v{AFH}, {WSr}, 0 offen sc1'); e(('mark', 'fh'))
                if i == IFH + PRE:
                    e(('wvm', 'fh')); self.check_or_poll(VFH, AFH)
                    for m in range(7): e(f'buffer_load_dwordx2 {vr(Z1+2*m,2)}, v{A8}, {WSr}, s54 offen offset:{512*m} sc1')
                    e(('mark', 'z1'))
            self.ts(f'tile {n}', 'p5')
        self.ts('p5 mfma')
        e(red_write(6)); e(red_read(6)); e(fin(6))
        self.ts('p stored'); self.ts('p stored', 'p5')

    def p6(self):
        e = self.e
        TB, DB = S_TB6, S_DB
        WF, PA, HR, T = 128, 16, 240, 248
        steps = [(0, 1), (2, 3), (4, 5), (7, 8), (9, 10), (11, 12), (6, 13)]
        e(f'v_bfe_u32 v8, v{V_LANE}, 2, 2\nv_lshl_add_u32 v9, v{V_Q}, 2, v8\nv_lshrrev_b32 v10, 1, v9\nv_and_b32 v10, 3, v10\nv_lshlrev_b32 v9, 7, v9')
        e(f'v_lshl_add_u32 v9, v10, 5, v9\nv_and_b32 v10, 3, v{V_LANE}\nv_lshl_add_u32 v9, v10, 3, v9\ns_mul_i32 s{t0}, s{S_W}, 28672')
        for n in range(4): e(f'v_xor_b32 v{20+n}, {32*n}, v9\nv_add_u32 v{20+n}, s{t0}, v{20+n}')
        rds = []
        for si, (la, lb) in enumerate(steps):
            for n in range(4):
                rds += [f'ds_read_b64_tr_b16 {vr(WF+(si*4+n)*4,2)}, v{20+n} offset:{la*2048}', f'ds_read_b64_tr_b16 {vr(WF+(si*4+n)*4+2,2)}, v{20+n} offset:{lb*2048}']
        e(rds[:24])
        e('s_waitcnt vmcnt(0)\ns_barrier')
        self.flag_write(F5)
        self.ts('F5'); self.ts('F5', 'p5')
        e(rds[24:])
        e(f'v_and_b32 v8, 1, v{V_LANE}')
        if self.map5 == 'B':
            e(f's_lshl_b32 s{t0}, s{S_W}, 6\ns_add_u32 s{t0}, s{t0}, s{TB}\nv_lshl_add_u32 v9, v8, 5, s{t0}')
        else:
            e(f's_lshr_b32 s{t0}, s{S_W}, 1\ns_and_b32 s{t1}, s{S_W}, 1\ns_lshl_b32 s{t1}, s{t1}, 4\ns_add_u32 s{t0}, s{t0}, s{t1}\ns_lshr_b32 s{t1}, s{TB}, 3\ns_lshl_b32 s{t1}, s{t1}, 1\ns_add_u32 s{t0}, s{t0}, s{t1}')
            e(f's_and_b32 s{t1}, s{TB}, 7\ns_lshl_b32 s{t1}, s{t1}, 5\ns_add_u32 s{t0}, s{t0}, s{t1}\nv_lshl_add_u32 v9, v8, 3, s{t0}')
        e(f'v_lshlrev_b32 v9, 7, v9\nv_add_u32 v9, {F5}, v9\ns_lshl_b32 s{t0}, s{DB}, 1\nv_add_u32 v8, s{t0}, v8\ns_lshr_b32 s{t0}, s{TB}, 1\nv_mov_b32 v10, s{t0}')
        e(self.wg4(8, 10, 8, 11))
        e(f'v_lshlrev_b32 v8, 7, v8\nv_add_u32 v8, {FH}, v8\nv_cmp_gt_u32 vcc, 2, v{V_LANE}\nv_cndmask_b32 v9, v8, v9, vcc')
        A8, AH, ARW, ARR, AO = 8, 10, 11, 12, 13
        S_P0, S_H, S_O = 52, 54, 55
        e(f'v_lshlrev_b32 v{A8}, 3, v{V_LANE}')
        e(f'v_bfe_u32 v14, v{V_LANE}, 2, 1\nv_lshlrev_b32 v{AH}, 10, v14\nv_and_b32 v14, 3, v{V_LANE}\nv_lshl_add_u32 v{AH}, v14, 8, v{AH}\nv_lshrrev_b32 v14, 3, v{V_LANE}\nv_lshl_add_u32 v{AH}, v14, 4, v{AH}')
        e(f's_mul_i32 s{t0}, s{S_W}, 4352\nv_mul_u32_u24 v{ARW}, 272, v{V_J}\nv_lshl_add_u32 v{ARW}, v{V_Q}, 4, v{ARW}\nv_add_u32 v{ARW}, s{t0}, v{ARW}')
        e(f's_mul_i32 s{t0}, s{S_W}, 17408\nv_mul_u32_u24 v{ARR}, 272, v14\nv_and_b32 v15, 7, v{V_LANE}\nv_lshl_add_u32 v{ARR}, v15, 5, v{ARR}\nv_add_u32 v{ARR}, s{t0}, v{ARR}')
        e(f'v_lshlrev_b32 v{AO}, 10, v14\nv_lshl_add_u32 v{AO}, v15, 4, v{AO}')
        e(f's_lshl_b32 s{S_P0}, s{TB}, 3\ns_lshl_b32 s{t0}, s{S_W}, 1\ns_add_u32 s{S_P0}, s{S_P0}, s{t0}\ns_mul_i32 s{S_P0}, s{S_P0}, {4*3584}\ns_add_u32 s{S_P0}, s{S_P0}, {WS_PF}')
        e(f's_lshl_b32 s{S_H}, s{TB}, 2\ns_add_u32 s{S_H}, s{S_H}, s{S_W}\ns_lshl_b32 s{S_O}, s{S_H}, 14\ns_lshl_b32 s{t0}, s{DB}, 7\ns_add_u32 s{S_O}, s{S_O}, s{t0}')
        e(f's_lshl_b32 s{S_H}, s{S_H}, 4\ns_lshl_b32 s{t0}, s{DB}, 1\ns_add_u32 s{S_H}, s{S_H}, s{t0}\ns_lshl_b32 s{S_H}, s{S_H}, 10\ns_add_u32 s{S_H}, s{S_H}, {WS_HF}')
        e('s_waitcnt lgkmcnt(0)\ns_barrier')
        self.poll(9)
        self.ts('F5 seen'); self.ts('F5 seen', 'p5')
        def loads(tau):
            out = []
            for h in range(2):
                out.append([f's_add_u32 s{t1+h}, s{S_P0}, {(h*4+tau)*3584}', f'buffer_load_dwordx4 {vr(PA+(tau*7+h*3)*4,4)}, v{V_L16}, {WSr}, s{t1+h} offen sc1', ('mark', f'p{tau}_{h*3}')])
                for p in (1, 2): out.append([f'buffer_load_dwordx4 {vr(PA+(tau*7+h*3+p)*4,4)}, v{V_L16}, {WSr}, s{t1+h} offen offset:{1024*p} sc1', ('mark', f'p{tau}_{h*3+p}')])
            out.append([f'buffer_load_dwordx2 {vr(PA+(tau*7+6)*4+2*h,2)}, v{A8}, {WSr}, s{t1+h} offen offset:3072 sc1' for h in range(2)] + [('mark', f'p{tau}_6')])
            return out
        ld = [x for tau in range(4) for x in loads(tau)]
        ld.append([f'buffer_load_dwordx4 {vr(HR+4*h,4)}, v{AH}, {WSr}, s{S_H} offen offset:{128*h} sc1' for h in range(2)])
        P6 = self.opt.get('pre6', 12)
        for x in ld[:P6]: e(x)
        def wr(tau): return [f'ds_write_b128 v{ARW}, {ar(16*(tau&1)+4*n,4)} offset:{tau*17408+64*n}' for n in range(4)]
        for tau in range(4):
            for si in range(7):
                e(('wvm', f'p{tau}_{si}'))
                for n in range(4):
                    acc = ar(16*(tau&1)+4*n, 4)
                    e(f'{MF} {acc}, {vr(WF+(si*4+n)*4,4)}, {vr(PA+(tau*7+si)*4,4)}, {acc if si else 0}')
                    if n == 1 and tau*7 + si + P6 < len(ld): e(ld[tau*7 + si + P6])
                if si == 2 and tau: e(wr(tau-1))
        self.ts('p6 mfma'); self.ts('p6 mfma', 'p5')
        e(wr(3)); e('s_waitcnt lgkmcnt(0)\ns_barrier')
        R = 16
        for h in range(2):
            for w2 in range(4):
                for x in range(2): e(f'ds_read_b128 {vr(R+((h*4+w2)*2+x)*4,4)}, v{ARR} offset:{w2*4352+h*2176+16*x}')
            e(('mark', f'r{h}'))
        e(f's_add_u32 s{t0}, s{S_O}, 8192\ns_waitcnt vmcnt(0)')
        for h in range(2):
            b = R + h*32
            for i in range(4): e(f'v_lshlrev_b32 v{T+2*i}, 16, v{HR+4*h+i}\nv_and_b32 v{T+2*i+1}, 0xffff0000, v{HR+4*h+i}')
            e(('wlg', f'r{h}'))
            for i in range(0, 8, 2):
                e(f'v_pk_add_f32 {vr(b+i,2)}, {vr(b+i,2)}, {vr(b+8+i,2)}\nv_pk_add_f32 {vr(b+16+i,2)}, {vr(b+16+i,2)}, {vr(b+24+i,2)}')
            for i in range(0, 8, 2): e(f'v_pk_add_f32 {vr(b+i,2)}, {vr(b+i,2)}, {vr(b+16+i,2)}')
            for i in range(0, 8, 2): e(f'v_pk_add_f32 {vr(b+i,2)}, {vr(b+i,2)}, {vr(T+i,2)}')
            for i in range(4): e(f'v_cvt_pk_bf16_f32 v{b+8+i}, v{b+2*i}, v{b+2*i+1}')
            e(f'buffer_store_dwordx4 {vr(b+8,4)}, v{AO}, {sr(SOUT,4)}, s{S_O if h == 0 else t0} offen')

    def epilogue(self):
        e = self.e
        if self.prof:
            self.ts('end')
            e(f's_lshl_b32 s{t0}, s2, 2\ns_add_u32 s{t0}, s{t0}, s{S_W}\ns_lshl_b32 s{t0}, s{t0}, 7\ns_add_u32 s{t0}, s{t0}, {WS_TS}')
            e('v_mov_b32 v7, 0\ns_mov_b64 exec, 1')
            e('s_waitcnt lgkmcnt(0)')
            for i in range(self.nts):
                e(f'v_mov_b32 v6, s{S_TS+i*(2 if self.opt.get("fine") else 1)}\nbuffer_store_dword v6, v7, {WSr}, s{t0} offen offset:{4*i}')
        e('L_end:\ns_endpgm')
        e.raw('.type L_pad,@object\nL_pad:\n.fill 2048, 4, 0xbf800000\nL_padend:')

    def build(self):
        self.p1()
        for ph, fn in ((2, 'p2'), (4, 'p4'), (5, 'p5'), (6, 'p6')):
            if self.stop >= ph: getattr(self, fn)()
        self.epilogue()
        hdr = open('cdna_kernels/' + NAME + '.s.ref').read().split('; Override launch')[0]
        txt = hdr + f'; @launch grid=(256,1,1) block=(256,1,1) lds={LDS_BYTES}\n'
        txt += f'.amdgcn_target "amdgcn-amd-amdhsa--gfx950"\n.text\n.globl {KNAME}\n.p2align 8\n.type {KNAME},@function\n{KNAME}:\n'
        txt += self.e.text()
        txt += (f'.section .rodata,"a"\n.p2align 6\n.amdhsa_kernel {KNAME}\n  .amdhsa_next_free_vgpr 512\n  .amdhsa_next_free_sgpr 102\n'
                '  .amdhsa_accum_offset 256\n  .amdhsa_group_segment_fixed_size 0\n  .amdhsa_kernarg_size 88\n  .amdhsa_user_sgpr_count 2\n'
                '  .amdhsa_user_sgpr_kernarg_segment_ptr 1\n  .amdhsa_system_sgpr_workgroup_id_x 1\n  .amdhsa_float_denorm_mode_32 3\n.end_amdhsa_kernel\n')
        return txt

def main(cls):
    import argparse, json
    ap = argparse.ArgumentParser(); ap.add_argument('-o', default='k.s'); ap.add_argument('--stop', type=int, default=99)
    ap.add_argument('--prof', action='store_true'); ap.add_argument('--opt', default='{}')
    a = ap.parse_args()
    g = cls(a.stop, a.prof, json.loads(a.opt)); t = g.build(); open(a.o, 'w').write(t)
    if a.prof: open(a.o + '.names', 'w').write('\n'.join(g.names))
    print('lines', t.count('\n'), 'nops', g.e.nops, 'stamps', g.nts)

if __name__ == '__main__': main(Gen)
```

```python
import math, struct, sys
from emit import *

NAME = 'sequential_preLN__spectral_gfnet__mixer_gmlp__prompt'
KNAME = NAME + '_kernel'
MF = 'v_mfma_f32_16x16x32_bf16'

def f32(x): return '0x%08x' % struct.unpack('<I', struct.pack('<f', x))[0]

KS = 8448
WS_EPOCH = 0
WS_FLAG = 0x10000
F1, F1B, F2, F4, FH, F5 = [WS_FLAG + i * 0x8000 for i in range(6)]
WS_SIG = 0x40000
WS_MEAN = 0x48000
WS_TS = 0x50000
WS_STAT = 0x80000
WS_X1T = 0x100000
WS_WT = 0x340000
WS_HT = 0x580000
WS_W2F = 0x7C0000
WS_Z1F = 0x980000
WS_Z2F = 0xD00000
WS_HF = 0x1100000
WS_PF = 0x1300000
WS_SIZE = 0x1700000

SX, SWR, SWI, SWIN, SWSP, SBSP, SWOUT, SOUT, SWS = 8, 12, 16, 20, 24, 28, 32, 36, 40
S_W, S_TAG, S_KB, S_RB = 44, 45, 46, 47
t0, t1, t2, t3 = 48, 49, 50, 51
S_TB, S_FB, S_RB4, S_J4, S_M4, S_DO = 64, 65, 66, 67, 68, 69
S_TB6, S_DB = 3, 60
S_TS = 70
V_TID, V_LANE, V_L16, V_J, V_Q = 0, 1, 2, 3, 4
V_STG = 254

L_X, L_WIN, L_WTR, L_STAT, L_BNC, L_RS, L_STG = 0, 33280, 66048, 86016, 75776, 84992, 97280
L_X1C, L_EX, L_OB, L_STG2 = 0, 8192, 16384, 24576
L_W2, L_RING, L_SM = 0, 114688, 147456
LDS_BYTES = 163840
SPIN_MAX = 1 << 16
WSr = sr(SWS, 4)

M_J1, M_J2 = 's[4:5]', 's[6:7]'
def pick4(dst, src, tmp):
    return [f'v_cndmask_b32 v{tmp}, v{src}, v{src+1}, {M_J1}', f'v_cndmask_b32 v{dst}, v{src+2}, v{src+3}, {M_J1}', f'v_cndmask_b32 v{dst}, v{tmp}, v{dst}, {M_J2}']
def diag_mask(r): return (1 << r) | (1 << (20 + r)) | (1 << (40 + r)) | (1 << (60 + r))
def set_exec(m): return [f's_mov_b32 exec_lo, {m & 0xffffffff:#x}', f's_mov_b32 exec_hi, {m >> 32:#x}']

class Gen:
    def __init__(self, stop=99, prof=False, opt=None):
        self.e = Emitter(); self.stop = stop; self.prof = prof; self.nts = 0; self.names = []
        self.opt = opt or {}
        self.nt = ' nt' if self.opt.get('nt', 1) else ''
        self.map5 = self.opt.get('map5', 'C'); self.map4 = self.opt.get('map4', 4)
        self.ntw = ' nt' if self.opt.get('ntw', self.map5 == 'B') else ''

    def ts(self, name='', fine=None):
        if not self.prof: return
        grp = self.opt.get('fine')
        if grp:
            if fine == grp or name in self.opt.get('also', []):
                assert self.nts < 16
                self.e(f's_memtime {sr(S_TS + 2*self.nts, 2)}'); self.names.append(name); self.nts += 1
        elif fine is None:
            self.e(f's_memrealtime s[62:63]\ns_waitcnt lgkmcnt(0)\ns_mov_b32 s{S_TS + self.nts}, s62')
            self.names.append(name); self.nts += 1
    def tsl(self, name, fine):
        n0 = len(self.e.out)
        return ('call', lambda: self.ts(name, fine))

    def uncount(self):
        return ('call', lambda: setattr(self.e, 'nvm', self.e.nvm - 1))

    def flag_write(self, farr):
        e = self.e; L = e.label_name('nf')
        e(f's_cmp_eq_u32 s{S_W}, 0\ns_cbranch_scc0 {L}')
        e(f's_lshl_b32 s{t0}, s2, 7\ns_add_u32 s{t0}, s{t0}, {farr}\nv_mov_b32 v6, s{S_TAG}\nv_mov_b32 v7, 0\ns_mov_b64 exec, 1')
        e(f'buffer_store_dword v6, v7, {WSr}, s{t0} offen sc1'); e.nvm -= 1
        e(f's_mov_b64 exec, -1\n{L}:')

    def poll(self, vaddr):
        e = self.e; L = e.label_name('poll'); D = e.label_name('pdone')
        e(f's_mov_b32 s{t0}, 0\n{L}:')
        e(f'buffer_load_dword v6, v{vaddr}, {WSr}, 0 offen sc1')
        e(f's_add_u32 s{t0}, s{t0}, 1\ns_cmp_ge_u32 s{t0}, {SPIN_MAX}\ns_cbranch_scc1 {D}')
        e(f's_waitcnt vmcnt(0)\nv_cmp_ne_u32 vcc, s{S_TAG}, v6\ns_cbranch_vccnz {L}\n{D}:\ns_waitcnt vmcnt(0)')

    def wsp_issue(self, rnd, t0=t0):
        setup = lines(f's_lshl_b32 s{S_DO}, s{S_TB}, 18\ns_lshl_b32 s{t0}, s{S_W}, 10\ns_add_u32 s{S_DO}, s{S_DO}, s{t0}\ns_add_u32 s{S_DO}, s{S_DO}, {rnd << 16}\n'
                      f's_mul_i32 s{t0}, s{S_W}, 16640\ns_add_u32 m0, s{t0}, {L_STG}')
        pieces = []
        for i in range(16):
            p = [f'buffer_load_dwordx4 v{V_L16}, {sr(SWSP,4)}, s{S_DO} offen{self.ntw} lds']
            p += ['s_add_u32 m0, m0, 1040', f's_add_u32 s{S_DO}, s{S_DO}, 4096'] if i < 15 else [('mark', f'wsp{rnd}')]
            pieces.append(p)
        return setup, pieces
    def wsp_read(self, rnd):
        return [f'ds_read2_b64 {ar((rnd*16+ks)*4,4)}, v{V_STG} offset0:{8*ks} offset1:{8*ks+4}' for ks in range(16)]
    def wsph_issue(self, half, vaddr):
        setup = lines(f's_lshl_b32 s{S_DO}, s{S_TB}, 18\ns_lshl_b32 s{t0}, s{S_W}, 10\ns_add_u32 s{S_DO}, s{S_DO}, s{t0}\ns_add_u32 s{S_DO}, s{S_DO}, {(3 << 16) + 512*half}\n'
                      f's_mul_i32 m0, s{S_W}, 8320')
        pieces = []
        for i in range(8):
            p = [f'buffer_load_dwordx4 v{vaddr}, {sr(SWSP,4)}, s{S_DO} offen{self.ntw} lds']
            p += ['s_add_u32 m0, m0, 1040', f's_add_u32 s{S_DO}, s{S_DO}, 8192'] if i < 7 else [('mark', f'wsph{half}')]
            pieces.append(p)
        return setup, pieces
    def wsph_read(self, half, vaddr):
        return [f'ds_read2_b64 {ar((48+8*half+ks)*4,4)}, v{vaddr} offset0:{8*ks} offset1:{8*ks+4}' for ks in range(8)]
    def check_or_poll(self, vflag, vaddr):
        e = self.e; L = e.label_name('ok')
        e(f'v_cmp_ne_u32 vcc, s{S_TAG}, v{vflag}\ns_cbranch_vccz {L}')
        nv = e.nvm; self.poll(vaddr); e.nvm = nv
        e(f'{L}:')

    def p1(self):
        e = self.e
        FD, ACC, XF, G, WR, WI = 64, 128, 160, 192, 16, 24
        e('s_cmp_ge_u32 s2, 256\ns_cbranch_scc1 L_end')
        for base, off in ((SX, 0), (SWR, 8), (SWI, 16), (SWS, 80), (SWIN, 32), (SWSP, 40), (SBSP, 48), (SWOUT, 56), (SOUT, 64)):
            e(f's_load_dwordx2 {sr(base,2)}, s[0:1], {off}')
        if self.prof and not self.opt.get('fine'):
            e('s_memrealtime s[60:61]'); self.nts = 1; self.names = ['start']
        self.ts('start', 'p1')
        L = e.label_name('ncode')
        e('s_getpc_b64 s[6:7]'); e.raw('L_pc:')
        e(f's_bfe_u32 s{t0}, s2, 0x30003\ns_cmp_eq_u32 s{t0}, 7\ns_cselect_b32 s{t0}, 0, s{t0}\ns_lshl_b32 s{t0}, s{t0}, 13\ns_min_u32 s{t0}, s{t0}, L_padend-L_pc-8192')
        e(f's_add_u32 s6, s6, s{t0}\ns_addc_u32 s7, s7, 0\nv_lshlrev_b32 v6, 7, v0\nv_mov_b32 v7, s7\nv_add_co_u32 v6, vcc, s6, v6')
        e(f'v_lshrrev_b32 v5, 6, v0\nv_and_b32 v{V_LANE}, 63, v0\nv_addc_co_u32 v7, vcc, 0, v7, vcc\nv_cmp_gt_u32 vcc, 64, v0\nv_readfirstlane_b32 s{S_W}, v5')
        e(f's_and_saveexec_b64 s[6:7], vcc\ns_cbranch_execz {L}\nglobal_load_dword v15, v[6:7], off\n{L}:\ns_mov_b64 exec, -1'); e.nvm -= 1
        e(f'v_lshlrev_b32 v{V_L16}, 4, v{V_LANE}\nv_and_b32 v{V_J}, 15, v{V_LANE}\nv_lshrrev_b32 v{V_Q}, 4, v{V_LANE}')
        e(f's_bfe_u32 s{S_KB}, s2, 0x20003\ns_lshr_b32 s{S_RB}, s2, 5\ns_lshl_b32 s{S_RB}, s{S_RB}, 3\ns_and_b32 s{t0}, s2, 7\ns_or_b32 s{S_RB}, s{S_RB}, s{t0}')
        srd = lambda base, n: [f's_mov_b32 s{base+2}, {n}', f's_mov_b32 s{base+3}, 0x20000']
        S_XO, S_WO, S_JC, S_WI = 52, 53, 54, 55
        e(srd(SX, 2097152))
        e(f's_and_b32 s{S_XO}, s{S_RB}, 1\ns_lshl_b32 s{S_XO}, s{S_XO}, 10\ns_lshl_b32 s{t1}, s{S_W}, 8\ns_add_u32 s{S_XO}, s{S_XO}, s{t1}')
        e(f's_lshr_b32 s{t1}, s{S_RB}, 1\ns_add_u32 s{S_XO}, s{S_XO}, s{t1}\ns_lshl_b32 s{S_XO}, s{S_XO}, 10\ns_mul_i32 m0, s{S_W}, 8320')
        KF, KI, M, SG = G, G+1, G+2, G+4
        C0, S0, C1, S1 = G+8, G+16, G+24, G+32
        g = lines(f's_lshl_b32 s{t0}, s{S_KB}, 6\ns_lshl_b32 s{t1}, s{S_W}, 4\ns_add_u32 s{t0}, s{t0}, s{t1}\ns_add_u32 s{t0}, s{t0}, 1\nv_add_u32 v{KI}, s{t0}, v{V_J}')
        g += lines(f'v_cvt_f32_u32 v{KF}, v{KI}\nv_lshlrev_b32 v{C0}, 3, v{V_Q}\nv_mul_f32 v{KF}, {f32(1/512)}, v{KF}\nv_cvt_f32_u32 v{C0}, v{C0}')
        g += lines(f'v_mul_f32 v{M}, {f32(32.0)}, v{KF}\nv_mul_f32 v{C0}, v{C0}, v{KF}\nv_add_f32 v{C1}, v{C0}, v{M}\nv_cos_f32 v{M}, v{M}')
        for i in range(1, 8): g += lines(f'v_add_f32 v{C0+i}, v{C0+i-1}, v{KF}\nv_add_f32 v{C1+i}, v{C1+i-1}, v{KF}')
        g.append(f'v_add_f32 v{M}, v{M}, v{M}')
        n_early = len(g) + self.opt.get('early', 12)
        for b, sn in ((C0, S0), (C1, S1)):
            for i in range(8): g += [f'v_sin_f32 v{sn+i}, v{b+i}', f'v_cos_f32 v{b+i}, v{b+i}']
        prev, cur = (C0, S0), (C1, S1)
        cvt = lambda u, src: [f'v_cvt_pk_bf16_f32 v{FD+8*u+4*c+i}, {"-" if c else ""}v{src[c]+2*i}, {"-" if c else ""}v{src[c]+2*i+1}' for c in range(2) for i in range(4)]
        g += cvt(0, prev) + cvt(1, cur)
        for u in range(2, 8):
            for c in range(2):
                for i in range(0, 8, 2):
                    g.append(f'v_pk_fma_f32 {vr(prev[c]+i,2)}, {vr(cur[c]+i,2)}, {vr(M,2)}, {vr(prev[c]+i,2)} op_sel_hi:[1,0,1] neg_lo:[0,0,1] neg_hi:[0,0,1]')
            prev, cur = cur, prev
            g += cvt(u, cur)
        e(g[:n_early])
        self.ts('pre kernarg', 'p1')
        e('s_waitcnt lgkmcnt(0)')
        xs = []
        for i in range(8):
            xs.append([f'buffer_load_dwordx4 v{V_L16}, {sr(SX,4)}, s{S_XO} offen{self.nt} lds'] +
                      (['s_add_u32 m0, m0, 1040', f's_add_u32 s{S_XO}, s{S_XO}, 32768'] if i < 7 else [('mark', 'x'), f's_load_dword s{S_TAG}, {sr(SWS,2)}, {WS_EPOCH}']))
        wpre = srd(SWR, 2048*514) + srd(SWI, 2048*514)
        wpre += lines(f'v_bfe_u32 v8, v{V_LANE}, 3, 2\nv_lshlrev_b32 v8, 6, v8\nv_lshrrev_b32 v9, 5, v{V_LANE}\nv_add_u32 v8, v8, v9\nv_mul_u32_u24 v8, 514, v8\nv_and_b32 v5, 7, v{V_LANE}\nv_lshlrev_b32 v5, 4, v5\nv_add_u32 v8, v8, v5')
        wpre += lines(f's_and_b32 s{S_WO}, s{S_RB}, 7\ns_lshl_b32 s{S_JC}, s{S_WO}, 3\ns_lshr_b32 s{t1}, s{S_RB}, 3\ns_lshl_b32 s{S_WO}, s{t1}, 8\ns_add_u32 s{S_WO}, s{S_WO}, s{S_JC}\ns_add_u32 s{S_JC}, s{S_JC}, s{t1}')
        wpre += lines(f's_lshl_b32 s{t1}, s{S_W}, 1\ns_add_u32 s{S_WO}, s{S_WO}, s{t1}\ns_mul_i32 s{S_WO}, s{S_WO}, 514\ns_lshl_b32 s{t1}, s{S_KB}, 7\ns_add_u32 s{S_WO}, s{S_WO}, s{t1}\ns_add_u32 s{S_WO}, s{S_WO}, 2')
        ws = [[f'buffer_load_dwordx4 {vr(WI,4)}, v8, {sr(SWR,4)}, s{S_WO} offen{self.nt}'], [f'buffer_load_dwordx4 {vr(WI+4,4)}, v8, {sr(SWI,4)}, s{S_WO} offen{self.nt}', ('mark', 'xw')]]
        tlb = srd(SWS, WS_SIZE)
        if self.opt.get('tlb', 1):
            tlb += [f'v_lshlrev_b32 v9, 21, v{V_J}', f's_lshl_b32 s{t1}, s2, 7', f's_cmp_eq_u32 s{S_W}, 0', 's_cselect_b32 exec_lo, 0xfff, 0', 's_mov_b32 exec_hi, 0',
                    f'buffer_load_dword v14, v9, {WSr}, s{t1} offen nt', 's_mov_b64 exec, -1', ('call', lambda: setattr(e, 'nvm', e.nvm - 1))]
        for p in xs[:5]: e(p)
        e(spread(g[n_early:], xs[5:] + [wpre] + ws + [tlb], 0, 60))
        self.ts('fd done', 'p1')
        AX, ONES, SUM, SQ = G+8, G+12, G+16, G+20
        AW, AWR, AST, ASR, ARW, ARR, AB, AB2, AG, FS = G+24, G+25, G+27, G+28, G+29, G+30, G+32, G+34, G+35, G+36
        S_WT, S_X1, S_SG, S_MN = 56, 57, 58, 59
        a = lines(f'v_mul_u32_u24 v12, 1040, v{V_J}\ns_and_b32 s{t0}, s{S_W}, 1\ns_lshr_b32 s{t1}, s{S_W}, 1\nv_lshl_add_u32 v12, v{V_Q}, 4, v12')
        a += lines(f's_mul_i32 s{t2}, s{t0}, 16640\ns_lshl_b32 s{t3}, s{t1}, 9\ns_add_u32 s{t2}, s{t2}, s{t3}\nv_add_u32 v{AX}, s{t2}, v12')
        a += lines(f's_xor_b32 s{t2}, s{t0}, 1\ns_mul_i32 s{t2}, s{t2}, 16640\ns_add_u32 s{t2}, s{t2}, s{t3}\nv_add_u32 v{AX+2}, s{t2}, v12')
        a += lines(f's_xor_b32 s{t2}, s{t3}, 0x200\ns_sub_u32 s{t2}, s{t2}, s{t3}\nv_add_u32 v{AX+1}, s{t2}, v{AX}\nv_add_u32 v{AX+3}, s{t2}, v{AX+2}')
        a += [f'v_mov_b32 v{ONES+i}, 0x3f803f80' for i in range(4)]
        a += srd(SWIN, 512*3584)
        a += lines(f'v_lshrrev_b32 v9, 2, v{V_LANE}\nv_mul_u32_u24 v9, 3584, v9\nv_and_b32 v10, 3, v{V_LANE}\nv_and_b32 v11, 2, v{V_Q}\nv_xor_b32 v10, v10, v11\nv_lshl_add_u32 v9, v10, 4, v9')
        a += lines(f's_lshl_b32 s{t2}, s{S_JC}, 6\ns_mul_i32 s{t3}, s{S_W}, {128*3584}\ns_add_u32 s{S_WI}, s{t2}, s{t3}\ns_cmp_lt_u32 s{S_JC}, 56\ns_cselect_b32 s{S_WI}, s{S_WI}, 0x200000')
        a += lines(f's_lshl_b32 s{t3}, s{S_W}, 13\ns_add_u32 m0, s{t3}, {L_WIN}')
        e(a)
        b = lines(f's_mov_b32 s4, 0xaaaaaaaa\ns_mov_b32 s5, 0xaaaaaaaa\ns_mov_b32 s6, 0xcccccccc\ns_mov_b32 s7, 0xcccccccc')
        b += lines(f'v_mul_u32_u24 v{AW}, 65, v5\nv_lshrrev_b32 v13, 3, v{V_LANE}\nv_lshl_add_u32 v{AW}, v13, 2, v{AW}\ns_lshl_b32 s{t2}, s{S_W}, 5\ns_add_u32 s{t2}, s{t2}, {L_WTR}\nv_add_u32 v{AW}, s{t2}, v{AW}')
        b += lines(f's_mul_i32 s{t2}, s{S_W}, 1040\ns_add_u32 s{t2}, s{t2}, {L_WTR}\nv_add_u32 v{AWR}, s{t2}, v{V_L16}\ns_mov_b32 s8, 0x05040100\ns_mov_b32 s9, 0x07060302')
        b += lines(f's_lshl_b32 s{t2}, s{t0}, 8\ns_lshl_b32 s{t3}, s{t1}, 7\ns_add_u32 s{t2}, s{t2}, s{t3}\ns_add_u32 s{t2}, s{t2}, {L_STAT}\nv_lshl_add_u32 v{AST}, v{V_J}, 3, s{t2}')
        b += lines(f'v_lshrrev_b32 v13, 2, v{V_J}\nv_cmp_eq_u32 vcc, v13, v{V_Q}\nv_lshlrev_b32 v13, 3, v0\nv_add_u32 v13, {L_STAT+512}, v13\nv_cndmask_b32 v{AST}, v13, v{AST}, vcc')
        b += lines(f'v_and_b32 v13, 1, v{V_Q}\nv_lshlrev_b32 v{ASR}, 8, v13\nv_lshl_add_u32 v{ASR}, v{V_J}, 3, v{ASR}\nv_add_u32 v{ASR}, {L_STAT}, v{ASR}')
        b += lines(f's_mul_i32 s{t2}, s{S_W}, 2304\ns_add_u32 s{t2}, s{t2}, {L_BNC}\nv_lshrrev_b32 v13, 3, v{V_LANE}')
        b += lines(f'v_mul_u32_u24 v{AB2}, 144, v13\nv_add3_u32 v{AB2}, v{AB2}, v5, s{t2}\nv_mul_u32_u24 v{AG}, {KS}, v13\nv_add_u32 v{AG}, v{AG}, v5')
        b += lines(f'v_mul_u32_u24 v13, 144, v{V_J}\nv_lshl_add_u32 v13, v{V_Q}, 4, v13\ns_lshl_b32 s{t3}, s{t0}, 6\ns_add_u32 s{t2}, s{t2}, s{t3}\nv_add_u32 v{AB}, s{t2}, v13')
        b += lines(f's_xor_b32 s{S_WT}, s{t3}, 64\ns_sub_u32 s{S_WT}, s{S_WT}, s{t3}\nv_add_u32 v{AB+1}, s{S_WT}, v{AB}')
        b += lines(f's_lshl_b32 s{t2}, s{S_W}, 7\ns_add_u32 s{t2}, s{t2}, {L_RS}\nv_and_b32 v13, 31, v{V_LANE}\nv_lshl_add_u32 v{ARW}, v13, 2, s{t2}')
        b += lines(f's_add_u32 s{t2}, s{t2}, s{t3}\nv_lshl_add_u32 v{ARR}, v{V_Q}, 4, s{t2}\nv_xor_b32 v{ARR+1}, 64, v{ARR}')
        b += lines(f's_bfe_u32 s{S_WT}, s{S_RB}, 0x20001\ns_lshl_b32 s{S_WT}, s{S_WT}, 11\ns_lshr_b32 s{t2}, s{S_RB}, 5\ns_lshl_b32 s{t2}, s{t2}, 10\ns_add_u32 s{S_WT}, s{S_WT}, s{t2}')
        b += lines(f's_bfe_u32 s{t2}, s{S_RB}, 0x20003\ns_lshl_b32 s{t2}, s{t2}, 8\ns_add_u32 s{S_WT}, s{S_WT}, s{t2}\ns_and_b32 s{t2}, s{S_RB}, 1\ns_lshl_b32 s{t2}, s{t2}, 7\ns_add_u32 s{S_WT}, s{S_WT}, s{t2}')
        b += lines(f's_mul_i32 s{t3}, s{S_KB}, {64*KS}\ns_mul_i32 s{t2}, s{S_W}, {8*KS}\ns_add_u32 s{S_WT}, s{S_WT}, s{t3}\ns_add_u32 s{S_WT}, s{S_WT}, s{t2}\ns_add_u32 s{S_WT}, s{S_WT}, {WS_WT}')
        b += lines(f's_add_u32 s{S_X1}, s{t3}, s{t2}\ns_add_u32 s{S_X1}, s{S_X1}, s{t2}\ns_lshl_b32 s{t3}, s{S_RB}, 7\ns_add_u32 s{S_X1}, s{S_X1}, s{t3}\ns_add_u32 s{S_X1}, s{S_X1}, {WS_X1T}')
        b += [lines(f's_lshl_b32 s{t2}, s{S_KB}, 13\ns_add_u32 s{t2}, s{t2}, {WS_SIG}\ns_cmp_eq_u32 s{S_W}, 0\ns_cselect_b32 s{S_SG}, s{t2}, {WS_MEAN}\ns_cselect_b32 s{S_MN}, -1, 0\ns_add_u32 s{S_SG}, s{S_SG}, s{t3}')]
        b += [lines(f's_lshl_b32 s{t2}, s{S_KB}, 2\ns_add_u32 s{t2}, s{t2}, s{S_W}\ns_cmp_eq_u32 s{t2}, 1\ns_cselect_b32 s{S_MN}, -1, s{S_MN}')]
        b += srd(SWSP, 2048*4096)
        if self.map5 == 'B': b += lines(f's_and_b32 s{S_TB}, s2, 31\ns_lshr_b32 s{S_FB}, s2, 5')
        else: b += lines(f's_and_b32 s{S_FB}, s2, 1\ns_lshl_b32 s{S_FB}, s{S_FB}, 2\ns_or_b32 s{S_FB}, s{S_FB}, s{S_KB}\ns_bfe_u32 s{S_TB}, s2, 0x20001\ns_lshl_b32 s{S_TB}, s{S_TB}, 3\ns_lshr_b32 s{t2}, s2, 5\ns_or_b32 s{S_TB}, s{S_TB}, s{t2}')
        b += lines(f'v_and_b32 v{SG}, 1, v{KI}\nv_lshlrev_b32 v{SG}, 31, v{SG}\nv_mov_b32 v{FS}, {f32(1/16)}\nv_mov_b32 v13, {f32(1/math.sqrt(512))}\nv_cmp_eq_u32 vcc, 0x100, v{KI}')
        b += lines(f's_lshl_b32 s{t2}, s{t1}, 31\nv_and_b32 v12, s{t2}, v{SG}\nv_cndmask_b32 v{FS}, v{FS}, v13, vcc\nv_or_b32 v{SG}, 1.0, v{SG}\nv_xor_b32 v{FS}, v{FS}, v12')
        win = [[f'buffer_load_dwordx4 v9, {sr(SWIN,4)}, s{S_WI} offen{self.nt} lds'] + ([f's_add_u32 m0, m0, 1024', f's_add_u32 s{S_WI}, s{S_WI}, {16*3584}'] if i < 7 else []) for i in range(8)]
        self.ts('gen done'); self.ts('gen done', 'p1')
        e(('wvm', 'x')); e('s_barrier')
        self.ts('x landed'); self.ts('x landed', 'p1')
        order = [(u, 0) for u in range(8)] + [(u, 1) for u in range(8)] + [(u, tp) for u in range(8, 16) for tp in range(2)]
        LA = 6
        def rd(n):
            u, tp = order[n]
            return [f'ds_read_b128 {vr(XF+4*(n%8),4)}, v{AX+tp*2+(u>>3)} offset:{(u&7)*64}', ('mark', f'x{n}')]
        acc = lambda tp, c, hp: ACC + ((tp*2 + c)*2 + hp)*4
        for n in range(LA): e(rd(n))
        R0, RS = 40, 32
        mm = []
        for n, (u, tp) in enumerate(order):
            xf = vr(XF+4*(n%8), 4)
            grp = [f'{MF} {vr(acc(tp,c,u>>3),4)}, {xf}, {vr(FD+8*(u&7)+4*c,4)}, {vr(acc(tp,c,u>>3),4) if u & 7 else 0}' for c in range(2)]
            if n < 8: grp += [f'{MF} {vr(SQ,4)}, {xf}, {xf}, {vr(SQ,4) if n else 0}', f'{MF} {vr(SUM,4)}, {xf}, {vr(ONES,4)}, {vr(SUM,4) if n else 0}']
            grp = [[x] for x in grp]
            grp[0] = [('wlg', f'x{n}')] + grp[0]
            if n + LA < 32: grp[-1] += rd(n + LA)
            if n < 8: grp[1] += win[n]
            mm += grp
        e(spread(mm[:34], b))
        f1 = [('wvm', 'xw')]
        for i in range(8): f1 += [f'v_perm_b32 v{WR+i}, v{WI+4+i//2}, v{WI+i//2}, s{8+(i&1)}', f'ds_write_b32 v{AW}, v{WR+i} offset:{128*i}']
        f1 += pick4(R0, SUM, R0+2) + pick4(R0+1, SQ, R0+2) + [f'ds_write_b64 v{AST}, {vr(R0,2)}', ('mark', 'stw')]
        self.ts('step 8', 'p1')
        e(spread(mm[34:44], f1))
        self.ts('step 13', 'p1')
        e(mm[44:48])
        e([('wlg', 'stw'), 's_barrier', f'ds_read_b64 {vr(R0,2)}, v{ASR}', f'ds_read_b64 {vr(R0+2,2)}, v{ASR} offset:128', ('mark', 'str'),
           f'ds_read_b128 {vr(WR,4)}, v{AWR}', f'ds_read_b128 {vr(WR+4,4)}, v{AWR} offset:{4*1040}', ('mark', 'wtr')])
        self.ts('bar', 'p1')
        e(mm[48:54])
        f2 = [('wlg', 'str')] + lines(f'v_add_f32 v{R0}, v{R0}, v{R0+2}\nv_add_f32 v{R0+2}, v{R0+1}, v{R0+3}\nv_mul_f32 v{R0}, {f32(1/512)}, v{R0}\nv_mul_f32 v{R0+2}, {f32(1/512)}, v{R0+2}')
        f2 += lines(f'v_fma_f32 v{R0+2}, -v{R0}, v{R0}, v{R0+2}\nv_max_f32 v{R0+2}, 0, v{R0+2}\nv_add_f32 v{R0+2}, {f32(1e-5)}, v{R0+2}\nv_rsq_f32 v{R0+1}, v{R0+2}\nv_sqrt_f32 v{R0+3}, v{R0+2}')
        f2 += [f'ds_write_b32 v{ARW}, v{R0+1}', ('mark', 'rsw'), [f's_cmp_eq_u32 s{S_W}, 0', 's_cselect_b64 vcc, -1, 0'], f's_add_u32 s{t2}, s{S_WT}, {32*KS}', ('wlg', 'wtr'),
               f'buffer_store_dwordx4 {vr(WR,4)}, v{AG}, {WSr}, s{S_WT} offen sc1', f'v_cndmask_b32 v{R0}, v{R0}, v{R0+3}, vcc', f'v_lshlrev_b32 v{R0+4}, 2, v{V_LANE}',
               f'buffer_store_dwordx4 {vr(WR+4,4)}, v{AG}, {WSr}, s{t2} offen sc1',
               [('wlg', 'rsw'), f'ds_read_b128 {vr(RS,4)}, v{ARR}', f'ds_read_b128 {vr(RS+4,4)}, v{ARR+1}', ('mark', 'rsr')],
               [f's_mov_b32 exec_lo, s{S_MN}', 's_mov_b32 exec_hi, 0', f'buffer_store_dword v{R0}, v{R0+4}, {WSr}, s{S_SG} offen sc1', 's_mov_b64 exec, -1', self.uncount()]]
        e(spread(mm[54:70], f2))
        f3 = [f's_add_u32 s{t1}, s{S_X1}, {8*KS}', ('wlg', 'rsr')] + [f'v_mul_f32 v{RS+i}, v{RS+i}, v{FS}' for i in range(8)]
        self.ts('step 26', 'p1')
        e(mm[70:74]); e(spread(mm[74:], f3))
        self.ts('mfma', 'p1')
        for tp in range(2):
            for c in range(2):
                for h in (0, 2):
                    lo, hi = vr(acc(tp,c,0)+h, 2), vr(acc(tp,c,1)+h, 2)
                    e(f'v_pk_fma_f32 {lo}, {hi}, {vr(SG,2)}, {lo} op_sel_hi:[1,0,1]')
            for c in range(2):
                for h in (0, 2):
                    lo = vr(acc(tp,c,0)+h, 2)
                    e(f'v_pk_mul_f32 {lo}, {lo}, {vr(RS+4*tp+h,2)}')
            for r in range(4): e(f'v_cvt_pk_bf16_f32 v{XF+tp*4+r}, v{acc(tp,0,0)+r}, v{acc(tp,1,0)+r}')
            e(f'ds_write_b128 v{AB+tp}, {vr(XF+tp*4,4)}')
        e('s_waitcnt lgkmcnt(0)')
        e(f'ds_read_b128 {vr(XF+8,4)}, v{AB2}\nds_read_b128 {vr(XF+12,4)}, v{AB2} offset:{8*144}')
        e(f's_waitcnt lgkmcnt(1)\nbuffer_store_dwordx4 {vr(XF+8,4)}, v{AG}, {WSr}, s{S_X1} offen sc1')
        e(f's_waitcnt lgkmcnt(0)\nbuffer_store_dwordx4 {vr(XF+12,4)}, v{AG}, {WSr}, s{t1} offen sc1')
        e(('mark', 'x1st'))
        self.ts('X1 stored'); self.ts('X1 stored', 'p1')
        setup, pieces = self.wsp_issue(0); e(setup)
        nr0 = self.opt.get('nr0', 10)
        e(pieces[:4])
        A0, S_W2, NYF = 184, 56, 186
        e(f's_mul_i32 s{S_TAG}, s{S_TAG}, 0x9e3779b1\ns_add_u32 s{S_TAG}, s{S_TAG}, 0x7f4a7c15')
        if self.prof and not self.opt.get('fine'): e(f's_mov_b32 s{S_TS}, s60')
        e(srd(SBSP, 4096) + srd(SWOUT, 896*1024) + srd(SOUT, 2097152))
        e(f'v_bfe_u32 v8, v{V_LANE}, 2, 2\nv_lshl_add_u32 v8, v{V_Q}, 3, v8\nv_lshlrev_b32 v8, 6, v8')
        e(f'v_and_b32 v9, 1, v{V_Q}\nv_lshl_add_u32 v8, v9, 5, v8\nv_and_b32 v9, 3, v{V_LANE}\nv_lshl_add_u32 v8, v9, 3, v8')
        e(f'v_add_u32 v{A0}, {L_WIN}, v8\nv_xor_b32 v{A0+1}, 32, v8\nv_add_u32 v{A0+1}, {L_WIN}, v{A0+1}')
        e(f's_mul_i32 s{t0}, s{S_W}, 16640\ns_add_u32 s{t0}, s{t0}, {L_STG}\nv_mul_u32_u24 v{V_STG}, 1040, v{V_J}\nv_lshl_add_u32 v{V_STG}, v{V_Q}, 3, v{V_STG}\nv_add_u32 v{V_STG}, s{t0}, v{V_STG}')
        e(f's_lshl_b32 s{t1}, s{S_KB}, 2\ns_add_u32 s{t1}, s{t1}, s{S_W}\ns_cmp_eq_u32 s{t1}, 15\ns_cselect_b32 s{t2}, 3, 4\nv_mov_b32 v{NYF}, 1.0\nv_mov_b32 v9, {f32(1/math.sqrt(2))}\nv_cmp_eq_u32 vcc, s{t2}, v{V_Q}')
        e(f's_lshl_b32 s{S_W2}, s{S_JC}, 15\ns_lshl_b32 s{t1}, s{t1}, 10\ns_add_u32 s{S_W2}, s{S_W2}, s{t1}\nv_cndmask_b32 v{NYF}, v{NYF}, v9, vcc')
        e(f's_add_u32 s{S_W2}, s{S_W2}, {WS_W2F}\ns_add_u32 s{S_W2+1}, s{S_W2}, 16384\ns_cmp_lt_u32 s{S_JC}, 56\ns_cselect_b64 s[58:59], -1, 0')
        consts = self.p2_consts()
        npre = self.opt.get('cpre', 120)
        e(spread(consts[:npre], pieces[4:nr0], 0, 80))
        pieces = pieces[nr0:] + [[]]*16
        self.ts('pre drain', 'p1')
        e(('wvm', 'x1st'))
        self.ts('drained'); self.ts('drained', 'p1')
        e('s_barrier')
        self.flag_write(F1)
        order = [(u, n) for u in range(16) for n in range(2)]
        def rdb(i):
            u, n = order[i]
            return [f'ds_read_b64_tr_b16 {vr(XF+4*(i%6),2)}, v{A0+n} offset:{u*2048}',
                    f'ds_read_b64_tr_b16 {vr(XF+4*(i%6)+2,2)}, v{A0+n} offset:{u*2048+256}', ('mark', f'b{i}')]
        accb = lambda c, n, half: ACC + ((c*2 + n)*2 + half)*4
        for i in range(4): e(rdb(i))
        main = []
        for i, (u, n) in enumerate(order):
            nx = rdb(i + 4) if i + 4 < 32 else [[], []]
            for c in range(2):
                A = vr(accb(c, n, u >> 3), 4)
                m = [f'{MF} {A}, {vr(FD+8*(u&7)+4*c,4)}, {vr(XF+4*(i%6),4)}, {A if u & 7 else 0}']
                if c == 0: m = [('wlg', f'b{i}')] + m + (pieces[i // 2] if i % 2 == 0 else [])
                else: m += nx
                main.append(m)
        e(spread(main, consts[npre:]))
        for n in range(2):
            for c in range(2):
                for h in (0, 2):
                    lo, hi = vr(accb(c,n,0)+h, 2), vr(accb(c,n,1)+h, 2)
                    e(f'v_pk_add_f32 {lo}, {lo}, {hi} neg_lo:[0,1]')
            e(f'v_mul_f32 v{accb(0,n,0)+3}, v{accb(0,n,0)+3}, v{NYF}')
            for c in range(2):
                for h in range(2): e(f'v_cvt_pk_bf16_f32 v{XF+n*4+c*2+h}, v{accb(c,n,0)+2*h}, v{accb(c,n,0)+2*h+1}')
            e(f's_mov_b64 exec, s[58:59]\nbuffer_store_dwordx4 {vr(XF+n*4,4)}, v{V_L16}, {WSr}, s{S_W2+n} offen sc1\ns_mov_b64 exec, -1'); e.nvm -= 1
        e(('mark', 'w2st'))
        self.ts('W2 stored'); self.ts('W2 stored', 'p1')

    BRE, BIM, GC, GS, GN = 8, 24, 40, 48, 56
    TC1, TS1, TC2, TS2, IDR, IDI = 188, 196, 204, 212, 220, 224
    P2A = 248
    def p2_consts(self):
        BRE, BIM, GC, GS, GN, TC1, TS1, TC2, TS2, IDR, IDI = (self.BRE, self.BIM, self.GC, self.GS, self.GN, self.TC1, self.TS1, self.TC2, self.TS2, self.IDR, self.IDI)
        T = 228; S_16W = 61
        AWr, AR = self.P2A, self.P2A + 2
        g = lines(f's_lshl_b32 s{S_16W}, s{S_W}, 4\nv_add_u32 v{T}, s{S_16W}, v{V_J}\nv_cvt_f32_u32 v{T}, v{T}')
        g += lines(f'v_lshlrev_b32 v{T+1}, 2, v{V_Q}\nv_cvt_f32_u32 v{T+1}, v{T+1}\nv_mul_f32 v{T+2}, {f32(1/2048)}, v{T}\nv_mul_f32 v{T+3}, v{T+2}, v{T+1}')
        for i in range(8): g.append(f'v_fmamk_f32 v{TC1+i}, v{T+2}, {f32(16*(i>>2)+(i&3))}, v{T+3}')
        for i in range(8): g += [f'v_sin_f32 v{TS1+i}, v{TC1+i}', f'v_cos_f32 v{TC1+i}, v{TC1+i}']
        g += lines(f'v_cvt_f32_u32 v{T+4}, v{V_J}\nv_cvt_f32_u32 v{T+5}, s{S_16W}\nv_add_f32 v{T+5}, v{T+5}, v{T+1}')
        for t in range(2):
            g += lines(f'v_add_f32 v{T+2}, {f32(16.0*t)}, v{T+4}\nv_mul_f32 v{T+2}, {f32(1/2048)}, v{T+2}\nv_mul_f32 v{T+3}, v{T+2}, v{T+5}')
            for r in range(4): g.append(f'v_fmamk_f32 v{TC2+4*t+r}, v{T+2}, {f32(r)}, v{T+3}')
        for i in range(8): g += [f'v_sin_f32 v{TS2+i}, v{TC2+i}', f'v_cos_f32 v{TC2+i}, v{TC2+i}']
        g.append(f'v_mov_b32 v{T+2}, {f32(1/2048)}')
        for i in range(0, 16, 2): g.append(f'v_pk_mul_f32 {vr(TC2+i,2)}, {vr(TC2+i,2)}, {vr(T+2,2)} op_sel_hi:[1,0]')
        g += lines(f'v_lshlrev_b32 v{T+6}, 2, v{V_Q}\nv_sub_u32 v{T+6}, v{V_J}, v{T+6}\nv_mov_b32 v{T+7}, 0x3f80')
        for i in range(4):
            g += [f'v_cmp_eq_u32 vcc, {i}, v{T+6}', f'v_or_b32 v{T+8}, {4*i}, v{V_Q}', f'v_xor_b32 v{T+8}, v{T+8}, v{V_J}', f'v_cndmask_b32 v{IDR+i}, 0, v{T+7}, vcc',
                  f'v_lshlrev_b32 v{T+8}, 4, v{T+8}', f'v_lshlrev_b32 v{IDI+i}, 16, v{IDR+i}', f'v_lshl_add_u32 v{AR+i}, v{V_J}, 8, v{T+8}']
        for h in range(2):
            g += lines(f'v_lshl_add_u32 v{T+8}, s{S_W}, 3, v{V_Q}\nv_add_u32 v{T+8}, {4*h}, v{T+8}\nv_xor_b32 v{T+9}, v{T+8}, v{V_J}\nv_and_b32 v{T+9}, 15, v{T+9}')
            g += lines(f'v_lshlrev_b32 v{T+9}, 4, v{T+9}\nv_lshl_add_u32 v{AWr+h}, v{T+8}, 8, v{T+9}')
        g += lines(f'v_mul_f32 v{T+2}, {f32(1/64)}, v{T}\nv_mul_f32 v{T+3}, v{T+2}, v{T+1}')
        for u in range(4):
            for i in range(4): g.append(f'v_fmamk_f32 v{T+8+i}, v{T+2}, {f32(16*u+i)}, v{T+3}')
            for i in range(4): g += [f'v_sin_f32 v{T+12+i}, v{T+8+i}', f'v_cos_f32 v{T+8+i}, v{T+8+i}']
            for i in range(4):
                g += [f'v_cvt_pk_bf16_f32 v{BRE+4*u+i}, v{T+8+i}, v{T+12+i}', f'v_cvt_pk_bf16_f32 v{BIM+4*u+i}, -v{T+12+i}, v{T+8+i}']
        for m in range(2):
            g += lines(f'v_add_f32 v{T+2}, {f32(16.0*m)}, v{T+4}\nv_mul_f32 v{T+2}, {f32(1/32)}, v{T+2}\nv_mul_f32 v{T+3}, v{T+2}, v{T+1}')
            for hh in range(2):
                for i in range(4): g.append(f'v_fmamk_f32 v{T+8+i}, v{T+2}, {f32(16*hh+i)}, v{T+3}')
                for i in range(4): g += [f'v_sin_f32 v{T+12+i}, v{T+8+i}', f'v_cos_f32 v{T+8+i}, v{T+8+i}']
                for i in range(2):
                    o = 4*m + 2*hh + i
                    g += [f'v_cvt_pk_bf16_f32 v{GC+o}, v{T+8+2*i}, v{T+9+2*i}', f'v_cvt_pk_bf16_f32 v{GS+o}, v{T+12+2*i}, v{T+13+2*i}',
                          f'v_cvt_pk_bf16_f32 v{GN+o}, -v{T+12+2*i}, -v{T+13+2*i}']
        return g

    def p2(self):
        e = self.e
        BRE, BIM, GC, GS, GN, TC1, TS1, TC2, TS2, IDR, IDI = (self.BRE, self.BIM, self.GC, self.GS, self.GN, self.TC1, self.TS1, self.TC2, self.TS2, self.IDR, self.IDI)
        XR, WT, SG, AF, AO, D0, D1, XD = 64, 72, 80, 96, 128, 136, 152, 168
        AWr, AR = self.P2A, self.P2A + 2
        AP, AOa, ASg, AEX, AOB = 88, 89, 90, 91, 92
        S_X, S_WT, S_SG, S_HT, S_NY = 12, 13, 14, 15, 16
        a = lines(f's_lshr_b32 s{t1}, s2, 6\ns_lshl_b32 s{t2}, s{t1}, 3')
        a += lines(f'v_and_b32 v{AP}, 7, v{V_LANE}\nv_lshrrev_b32 v93, 3, v{V_LANE}\nv_lshl_add_u32 v{AP}, v93, 5, v{AP}\nv_add_u32 v{AP}, s{t2}, v{AP}')
        a += lines(f'v_lshlrev_b32 v{AP}, 7, v{AP}\nv_add_u32 v{AP}, {F1}, v{AP}')
        a += lines(f's_lshl_b32 s{t2}, s{S_W}, 2\nv_or_b32 v93, s{t2}, v{V_Q}\nv_xor_b32 v93, v93, v{V_J}\nv_lshlrev_b32 v93, 4, v93\nv_lshl_add_u32 v{AOa}, v{V_J}, 8, v93')
        a += lines(f's_mul_i32 s{S_HT}, s2, {KS}\ns_lshl_b32 s{t2}, s{S_W}, 11\ns_add_u32 s{S_X}, s{S_HT}, s{t2}\ns_add_u32 s{S_WT}, s{S_X}, {WS_WT}\ns_add_u32 s{S_X}, s{S_X}, {WS_X1T}')
        a += lines(f's_lshl_b32 s{S_SG}, s{t1}, 13\ns_lshl_b32 s{t1}, s{S_W}, 6\ns_add_u32 s{S_SG}, s{S_SG}, s{t1}\ns_add_u32 s{S_SG}, s{S_SG}, {WS_SIG}\ns_add_u32 s{S_SG+3}, s{S_SG}, 4096')
        a += lines(f's_lshl_b32 s{S_HT}, s2, 9\ns_lshl_b32 s{t1}, s{S_W}, 19\ns_add_u32 s{S_HT}, s{S_HT}, s{t1}\ns_add_u32 s{S_HT}, s{S_HT}, {WS_HT}\ns_lshl_b32 s{t1}, s{S_W}, 10')
        a += lines(f'v_lshlrev_b32 v5, 17, v{V_Q}\nv_lshl_add_u32 v5, v{V_J}, 4, v5')
        a += [lines(f's_cmp_eq_u32 s2, 255\ns_cselect_b32 s{S_NY}, 0, -1')]
        a += lines(f'v_lshlrev_b32 v{ASg}, 10, v{V_Q}\nv_lshl_add_u32 v{ASg}, v{V_J}, 2, v{ASg}\nv_add_u32 v{AEX}, s{t1}, v{V_L16}')
        a += lines(f'v_lshlrev_b32 v{AOB}, 6, v{V_J}\nv_lshl_add_u32 v{AOB}, v{V_Q}, 3, v{AOB}\nv_add_u32 v{AOB}, s{t1}, v{AOB}')
        a += self.p4_ids(94, 95, 93)
        e(a)
        e(('wvm', 'wsp0')); e(self.wsp_read(0))
        setup, pc = self.wsp_issue(1)
        L = e.label_name('np')
        e(f's_cmp_eq_u32 s{S_W}, 0\ns_cbranch_scc0 {L}')
        nv = e.nvm; self.poll(AP); e.nvm = nv
        e(f'{L}:'); e(('wvm', 'w2st')); e('s_barrier')
        self.ts('F1 seen'); self.ts('F1 seen', 'p2')
        e(f'buffer_load_dwordx4 {vr(XR,4)}, v{V_L16}, {WSr}, s{S_X} offen sc1')
        e(f'buffer_load_dwordx4 {vr(XR+4,4)}, v{V_L16}, {WSr}, s{S_X} offen offset:1024 sc1')
        e(('mark', 'x1'))
        e(f'buffer_load_dwordx4 {vr(WT,4)}, v{V_L16}, {WSr}, s{S_WT} offen sc1')
        e(f'buffer_load_dwordx4 {vr(WT+4,4)}, v{V_L16}, {WSr}, s{S_WT} offen offset:1024 sc1')
        e(('mark', 'wt'))
        for t in range(2):
            for r in range(4):
                e(f'buffer_load_dword v{SG+4*t+r}, v{ASg}, {WSr}, s{S_SG+3*t} offen offset:{256*r} sc1')
        e(('mark', 'sg'))
        self.flag_write(F1B)
        e(setup)
        self.ts('pre x1', 'p2')
        e(('wvm', 'x1'))
        self.ts('X1 landed'); self.ts('X1 landed', 'p2')
        e(f'ds_write_b128 v{AWr}, {vr(XR,4)} offset:{L_X1C}\nds_write_b128 v{AWr+1}, {vr(XR+4,4)} offset:{L_X1C}')
        e('s_waitcnt lgkmcnt(0)\ns_barrier')
        for u in range(4):
            for t in range(2):
                e(f'ds_read_b128 {vr(AF+(t*4+u)*4,4)}, v{AR+u} offset:{L_X1C+4096*t}'); e(('mark', f'a{t}{u}'))
        for t in range(2): e(f'ds_read_b128 {vr(AO+4*t,4)}, v{AOa} offset:{L_X1C+4096*t}')
        self.ts('bar1', 'p2')
        pc = [pc[0] + pc[1], pc[2] + pc[3]] + pc[4:14] + [pc[14] + pc[15] + [f'buffer_load_dword v94, v95, {WSr}, 0 offen sc1', ('mark', 'f1b')]] + [[]]*8
        e(pc[0]); e(pc[1])
        dre = lambda base, t: base + 8*t
        dim = lambda base, t: base + 8*t + 4
        for u in range(4):
            for t in range(2):
                e(('wlg', f'a{t}{u}'))
                e(f'{MF} {vr(dre(D0,t),4)}, {vr(AF+(t*4+u)*4,4)}, {vr(BRE+4*u,4)}, {vr(dre(D0,t),4) if u else 0}')
                e(f'{MF} {vr(dim(D0,t),4)}, {vr(AF+(t*4+u)*4,4)}, {vr(BIM+4*u,4)}, {vr(dim(D0,t),4) if u else 0}')
            e(pc[2+u])
        e('s_waitcnt lgkmcnt(0)')
        for t in range(2):
            e(f'{MF} {vr(dre(XD,t),4)}, {vr(AO+4*t,4)}, {vr(IDR,4)}, 0\n{MF} {vr(dim(XD,t),4)}, {vr(AO+4*t,4)}, {vr(IDI,4)}, 0')
        e(pc[6])
        self.ts('s1', 'p2')
        def cmul(src, dst, c, s, conj):
            n1 = 'neg_lo:[1,0,0] neg_hi:[1,0,0]'
            for t in range(2):
                for h in range(0, 4, 2):
                    re, im, o_re, o_im = dre(src,t)+h, dim(src,t)+h, dre(dst,t)+h, dim(dst,t)+h
                    cc, ss = vr(c+4*t+h,2), vr(s+4*t+h,2)
                    e(f'v_pk_mul_f32 {vr(o_re,2)}, {vr(re,2)}, {cc}\nv_pk_mul_f32 {vr(o_im,2)}, {vr(im,2)}, {cc}')
                    e(f'v_pk_fma_f32 {vr(o_re,2)}, {vr(im,2)}, {ss}, {vr(o_re,2)} {n1 if conj else ""}')
                    e(f'v_pk_fma_f32 {vr(o_im,2)}, {vr(re,2)}, {ss}, {vr(o_im,2)} {"" if conj else n1}')
        FR, FI = AF, AF+4
        def pack_rows(src):
            for t in range(2):
                for h in range(2):
                    e(f'v_cvt_pk_bf16_f32 v{FR+2*t+h}, v{dre(src,t)+2*h}, v{dre(src,t)+2*h+1}')
                    e(f'v_cvt_pk_bf16_f32 v{FI+2*t+h}, v{dim(src,t)+2*h}, v{dim(src,t)+2*h+1}')
        cmul(D0, D1, TC1, TS1, False); pack_rows(D1)
        self.ts('tw1', 'p2')
        e(pc[7])
        for m in range(2):
            e(f'{MF} {vr(dre(D0,m),4)}, {vr(GC+4*m,4)}, {vr(FR,4)}, 0\n{MF} {vr(dim(D0,m),4)}, {vr(GC+4*m,4)}, {vr(FI,4)}, 0')
        e(pc[8])
        for m in range(2):
            e(f'{MF} {vr(dre(D0,m),4)}, {vr(GS+4*m,4)}, {vr(FI,4)}, {vr(dre(D0,m),4)}\n{MF} {vr(dim(D0,m),4)}, {vr(GN+4*m,4)}, {vr(FR,4)}, {vr(dim(D0,m),4)}')
        self.ts('s2', 'p2')
        e(('wvm', 'wt'))
        for i in range(8): e(f'v_lshlrev_b32 v{XR+i}, 16, v{WT+i}\nv_and_b32 v{WT+i}, 0xffff0000, v{WT+i}')
        cmul(D0, D1, XR, WT, True); pack_rows(D1)
        self.ts('filt', 'p2')
        e(pc[9])
        for t in range(2):
            e(f'{MF} {vr(dre(D0,t),4)}, {vr(FR,4)}, {vr(GC+4*t,4)}, 0\n{MF} {vr(dim(D0,t),4)}, {vr(FI,4)}, {vr(GC+4*t,4)}, 0')
        e(pc[10])
        for t in range(2):
            e(f'{MF} {vr(dre(D0,t),4)}, {vr(FI,4)}, {vr(GN+4*t,4)}, {vr(dre(D0,t),4)}\n{MF} {vr(dim(D0,t),4)}, {vr(FR,4)}, {vr(GS+4*t,4)}, {vr(dim(D0,t),4)}')
        self.ts('s3', 'p2')
        e(('wvm', 'sg'))
        for t in range(2):
            for h in range(0, 4, 2):
                e(f'v_pk_mul_f32 {vr(dre(XD,t)+h,2)}, {vr(dre(XD,t)+h,2)}, {vr(SG+4*t+h,2)}')
                e(f'v_pk_mul_f32 {vr(dim(XD,t)+h,2)}, {vr(dim(XD,t)+h,2)}, {vr(SG+4*t+h,2)} neg_lo:[1,0] neg_hi:[1,0]')
        cmul(D0, D1, TC2, TS2, True)
        for t in range(2):
            for r in range(4): e(f'v_cvt_pk_bf16_f32 v{AO+4*t+r}, v{dre(D1,t)+r}, -v{dim(D1,t)+r}')
            e(f'ds_write_b128 v{AEX}, {vr(AO+4*t,4)} offset:{L_EX+4096*t}')
        self.ts('tw2', 'p2')
        e(pc[11])
        e('s_waitcnt lgkmcnt(0)\ns_barrier')
        for u in range(4):
            for t in range(2):
                e(f'ds_read_b128 {vr(AF+(t*4+u)*4,4)}, v{V_L16} offset:{L_EX+4096*t+1024*u}'); e(('mark', f'a{t}{u}'))
        self.ts('bar2', 'p2')
        e(pc[12])
        for u in range(4):
            for t in range(2):
                e(('wlg', f'a{t}{u}'))
                e(f'{MF} {vr(dre(XD,t),4)}, {vr(AF+(t*4+u)*4,4)}, {vr(BRE+4*u,4)}, {vr(dre(XD,t),4)}')
                e(f'{MF} {vr(dim(XD,t),4)}, {vr(AF+(t*4+u)*4,4)}, {vr(BIM+4*u,4)}, {vr(dim(XD,t),4)}')
            if u < 3: e(pc[13+u])
        self.ts('s4', 'p2')
        for t in range(2):
            for c in range(2):
                src = XD + 8*t + 4*c; o = D0 + (t*2+c)*2; ng = '-' if c else ''
                e(f'v_cvt_pk_bf16_f32 v{o}, {ng}v{src}, {ng}v{src+1}\nv_cvt_pk_bf16_f32 v{o+1}, {ng}v{src+2}, {ng}v{src+3}')
                if c: e(f'v_and_b32 v{o}, s{S_NY}, v{o}\nv_and_b32 v{o+1}, s{S_NY}, v{o+1}')
                e(f'ds_write_b64 v{AOB}, {vr(o,2)} offset:{L_OB+4096*c+32*t}')
        e('s_waitcnt lgkmcnt(0)')
        e(f'ds_read_b128 {vr(D0+8,4)}, v{AEX} offset:{L_OB}\nds_read_b128 {vr(D0+12,4)}, v{AEX} offset:{L_OB+4096}')
        e(f's_waitcnt lgkmcnt(1)\nbuffer_store_dwordx4 {vr(D0+8,4)}, v5, {WSr}, s{S_HT} offen sc1')
        e(f's_waitcnt lgkmcnt(0)\nbuffer_store_dwordx4 {vr(D0+12,4)}, v5, {WSr}, s{S_HT} offen offset:256 sc1')
        self.ts('HT stored'); self.ts('HT stored', 'p2')
        e(('mark', 'htst'))
        e(('wvm', 'f1b')); self.check_or_poll(94, 95)
        e(self.w2_dma(2)); e(spread(self.wsp_read(1), self.w2_dma(3)))
        e(('wvm', 'htst')); e('s_barrier')
        self.flag_write(F2)
        self.ts('F2'); self.ts('F2', 'p2')

    GA = -2*math.sqrt(2/math.pi)*math.log2(math.e); GB = GA*0.044715
    V_KA, V_KB = 14, 30
    def gelu4(self, acc, scale, scale_pair, T):
        out = []; KA, KB = self.V_KA, self.V_KB
        for h in (0, 2):
            a = vr(acc+h, 2)
            out.append(f'v_pk_mul_f32 {a}, {a}, {vr(scale+h,2)}' if scale_pair else f'v_pk_mul_f32 {a}, {a}, {vr(scale,2)} op_sel_hi:[1,0]')
        for h in (0, 2): out.append(f'v_pk_mul_f32 {vr(T+h,2)}, {vr(acc+h,2)}, {vr(acc+h,2)}')
        for h in (0, 2): out.append(f'v_pk_fma_f32 {vr(T+h,2)}, {vr(T+h,2)}, {vr(KB,2)}, {vr(KA,2)} op_sel_hi:[1,0,0]')
        for h in (0, 2): out.append(f'v_pk_mul_f32 {vr(T+h,2)}, {vr(T+h,2)}, {vr(acc+h,2)}')
        for i in range(4): out.append(f'v_exp_f32 v{T+i}, v{T+i}')
        for h in (0, 2): out.append(f'v_pk_add_f32 {vr(T+h,2)}, {vr(T+h,2)}, 1.0 op_sel_hi:[1,0]')
        for i in range(4): out.append(f'v_rcp_f32 v{T+i}, v{T+i}')
        for h in (0, 2): out.append(f'v_pk_mul_f32 {vr(acc+h,2)}, {vr(acc+h,2)}, {vr(T+h,2)}')
        return out
    @staticmethod
    def zip2(a, b):
        out = []
        for i in range(max(len(a), len(b))): out += a[i:i+1] + b[i:i+1]
        return out

    S_P4, S_TL = 52, 53
    def w2_dma(self, n):
        return [[f's_lshl_b32 s{t3}, s{S_W}, 12', f's_add_u32 m0, s{t3}, {L_W2+n*16384}', f's_add_u32 s{t3}, s{t3}, s{self.S_TL+n}',
                 f'buffer_load_dwordx4 v{V_L16}, {WSr}, s{t3} offen sc1 lds']] + \
               [[f'buffer_load_dwordx4 v{V_L16}, {WSr}, s{t3} offen offset:{1024*i} sc1 lds'] for i in range(1, 4)]

    def p4_ids(self, va, vb, vc):
        S_P4, S_TL = self.S_P4, self.S_TL
        if self.map4 == 2:
            a = lines(f's_and_b32 s{S_RB4}, s2, 7\ns_lshl_b32 s{S_RB4}, s{S_RB4}, 1\ns_bfe_u32 s{t0}, s2, 0x10003\ns_or_b32 s{S_RB4}, s{S_RB4}, s{t0}\ns_lshr_b32 s{S_J4}, s2, 4')
        else:
            a = lines(f's_and_b32 s{S_RB4}, s2, 3\ns_lshl_b32 s{S_RB4}, s{S_RB4}, 2\ns_or_b32 s{S_RB4}, s{S_RB4}, s{S_KB}\ns_bfe_u32 s{S_J4}, s2, 0x10002\ns_lshl_b32 s{S_J4}, s{S_J4}, 3\ns_lshr_b32 s{t0}, s2, 5\ns_or_b32 s{S_J4}, s{S_J4}, s{t0}')
        a += lines(f's_and_b32 s{S_TB6}, s2, 31\ns_lshr_b32 s{S_DB}, s2, 5')
        a += lines(f's_lshr_b32 s{S_M4}, s{S_J4}, 1\ns_mul_i32 s{S_M4}, s{S_M4}, 7\ns_and_b32 s{S_P4}, s{S_J4}, 1\ns_lshl_b32 s{S_P4}, s{S_P4}, 2')
        a += lines(f's_add_u32 s{t0}, s{S_P4}, 56\ns_mul_i32 s{t1}, s{S_P4}, 14\ns_sub_u32 s{t1}, 56, s{t1}\ns_sub_u32 s{t2}, s{S_P4}, 4')
        a += lines(f'v_lshrrev_b32 v{va}, 2, v{V_LANE}\nv_min_u32 v{va}, 6, v{va}\nv_mov_b32 v{vb}, s{t2}\nv_mov_b32 v{vc}, s{t1}\nv_cmp_eq_u32 vcc, 3, v{va}\nv_cndmask_b32 v{vb}, v{vb}, v{vc}, vcc')
        a += lines(f'v_mov_b32 v{vc}, s{t0}\nv_cmp_gt_u32 vcc, 3, v{va}\nv_cndmask_b32 v{vb}, v{vb}, v{vc}, vcc\nv_add3_u32 v{va}, v{va}, v{vb}, s{S_M4}\nv_lshrrev_b32 v{va}, 1, v{va}')
        a += lines(f'v_and_b32 v{vb}, 7, v{va}\nv_lshrrev_b32 v{va}, 3, v{va}\nv_lshl_add_u32 v{vb}, v{vb}, 5, v{va}\nv_and_b32 v{va}, 3, v{V_LANE}\nv_lshl_add_u32 v{vb}, v{va}, 3, v{vb}')
        a += lines(f'v_lshlrev_b32 v{vb}, 7, v{vb}\nv_add_u32 v{vb}, {F1B}, v{vb}')
        for n, o in enumerate([t0, t0, t0, t1, t2, t2, t2]):
            a += lines(f's_add_u32 s{S_TL+n}, s{S_M4}, s{o}\ns_add_u32 s{S_TL+n}, s{S_TL+n}, {n}\ns_lshl_b32 s{S_TL+n}, s{S_TL+n}, 14\ns_add_u32 s{S_TL+n}, s{S_TL+n}, {WS_W2F}')
        return a

    FI = 96
    def fdi_gen(self):
        T = 32; FI = self.FI
        g = lines(f's_lshl_b32 s{t0}, s{S_J4}, 5\nv_lshrrev_b32 v{T}, 2, v{V_J}\nv_lshlrev_b32 v{T}, 3, v{T}\nv_and_b32 v{T+1}, 3, v{V_J}\nv_add3_u32 v{T}, v{T}, v{T+1}, s{t0}')
        g += lines(f's_lshl_b32 s{t0}, s{S_W}, 6\ns_add_u32 s{t0}, s{t0}, 1\nv_lshl_add_u32 v{T+2}, v{V_Q}, 2, s{t0}\nv_cvt_f32_u32 v{T+2}, v{T+2}')
        g += lines(f'v_mov_b32 v{T+4}, 1.0\nv_mov_b32 v{T+5}, {f32(1/math.sqrt(2))}\nv_cmp_eq_u32 vcc, 0xf0, v0\nv_lshrrev_b32 v{T+6}, 4, v0\nv_cmp_eq_u32 vcc, 15, v{T+6}\nv_cndmask_b32 v{T+4}, v{T+4}, v{T+5}, vcc')
        for n in range(2):
            g += lines(f'v_add_u32 v{T+1}, {4*n}, v{T}\nv_cvt_f32_u32 v{T+1}, v{T+1}\nv_mul_f32 v{T+1}, {f32(1/512)}, v{T+1}\nv_mul_f32 v{T+3}, v{T+2}, v{T+1}\nv_fract_f32 v{T+3}, v{T+3}')
            for up in range(4):
                for r in range(4): g.append(f'v_fmamk_f32 v{T+8+r}, v{T+1}, {f32(16*up+r)}, v{T+3}')
                for r in range(4): g += [f'v_sin_f32 v{T+12+r}, v{T+8+r}', f'v_cos_f32 v{T+8+r}, v{T+8+r}']
                if up == 3: g.append(f'v_mul_f32 v{T+11}, v{T+11}, v{T+4}')
                o = FI + (up*2+n)*4
                g += [f'v_cvt_pk_bf16_f32 v{o}, v{T+8}, v{T+9}', f'v_cvt_pk_bf16_f32 v{o+1}, v{T+10}, v{T+11}',
                      f'v_cvt_pk_bf16_f32 v{o+2}, -v{T+12}, -v{T+13}', f'v_cvt_pk_bf16_f32 v{o+3}, -v{T+14}, -v{T+15}']
        return g

    def p4(self):
        e = self.e; S_P4 = self.S_P4
        AWr, AR, AB2, ADG = 20, 10, 12, 13
        S_H0 = 19
        a = lines(f's_lshl_b32 s{S_H0}, s{S_RB4}, 17\ns_lshl_b32 s{t1}, s{S_W}, 12\ns_add_u32 s{S_H0}, s{S_H0}, s{t1}\ns_add_u32 s{S_H0}, s{S_H0}, {WS_HT}\ns_mov_b32 s18, s{t1}')
        a += lines(f'v_and_b32 v16, 2, v{V_Q}\nv_lshlrev_b32 v16, 5, v16\nv_xor_b32 v{AWr}, v16, v{V_L16}')
        for i in range(1, 4): a.append(f'v_xor_b32 v{AWr+i}, {(4*(i&1) + (i>>1))*32}, v{AWr}')
        a += lines(f's_lshl_b32 s{t0}, s{S_W}, 10\ns_add_u32 s{t0}, s{t0}, {L_RING}')
        a += lines(f's_add_u32 s{t0}, s{t0}, {L_SM-L_RING}\nv_lshl_add_u32 v{ADG}, v{V_J}, 2, s{t0}\nv_lshrrev_b32 v16, 2, v{V_J}\nv_cmp_eq_u32 vcc, v16, v{V_Q}')
        a += lines(f's_add_u32 s{t0}, s{t0}, 512\nv_lshl_add_u32 v16, v{V_LANE}, 2, s{t0}\nv_cndmask_b32 v{ADG}, v16, v{ADG}, vcc')
        a += lines(f'v_bfe_u32 v16, v{V_LANE}, 2, 2\nv_and_b32 v17, 1, v{V_Q}\nv_lshl_add_u32 v17, v16, 1, v17\ns_lshl_b32 s{t0}, s{S_W}, 1\nv_xor_b32 v17, s{t0}, v17')
        a += lines(f'v_lshl_add_u32 v16, v{V_Q}, 2, v16\nv_lshlrev_b32 v16, 9, v16\nv_lshl_add_u32 v16, v17, 5, v16\nv_and_b32 v17, 3, v{V_LANE}\nv_lshl_add_u32 v16, v17, 3, v16')
        a += lines(f'v_add_u32 v{AR}, 0x10000, v16\nv_xor_b32 v{AR+1}, 32, v{AR}\nv_add_u32 v8, {L_RING-0x10000}, v{AR}\nv_add_u32 v9, {L_RING-0x10000}, v{AR+1}\nv_add_u32 v{AB2}, 0x10000, v{V_L16}')
        a += lines(f'v_mov_b32 v{self.V_KA}, {f32(self.GA)}\nv_mov_b32 v{self.V_KB}, {f32(self.GB)}')
        a += lines(f'v_lshrrev_b32 v16, 3, v{V_LANE}\nv_lshlrev_b32 v16, 5, v16\nv_and_b32 v17, 7, v{V_LANE}\ns_lshl_b32 s{t0}, s{S_W}, 3\nv_add3_u32 v16, v16, v17, s{t0}')
        a += lines(f'v_lshlrev_b32 v16, 7, v16\nv_add_u32 v15, {F2}, v16')
        a += lines(f'v_lshrrev_b32 v16, 3, v{V_J}\nv_lshlrev_b32 v16, 4, v16\nv_lshl_add_u32 v16, v{V_Q}, 2, v16\nv_bfe_u32 v17, v{V_J}, 2, 1\nv_lshl_add_u32 v16, v17, 1, v16')
        a += lines(f'v_and_b32 v17, 1, v{V_J}\nv_add_lshl_u32 v25, v16, v17, 4')
        a += lines(f'v_and_b32 v16, 31, v{V_LANE}\nv_lshlrev_b32 v16, 4, v16\nv_lshrrev_b32 v17, 5, v{V_LANE}\nv_lshl_add_u32 v24, v17, 11, v16')
        S_ST = 12
        a += lines(f's_lshl_b32 s{S_ST}, s{S_RB4}, 15\ns_lshl_b32 s{t1}, s{S_W}, 9\ns_add_u32 s{S_ST}, s{S_ST}, s{t1}\ns_add_u32 s{S_ST}, s{S_ST}, {WS_STAT}')
        a += lines(f's_lshl_b32 s{t1}, s{S_J4}, 11\ns_add_u32 s{S_ST+1}, s{t1}, s{S_ST}')
        e(spread(a[:40], self.w2_dma(0) + self.w2_dma(1)))
        setup, pc = self.wsp_issue(2, 62); e('s_waitcnt lgkmcnt(0)'); e(setup)
        e(spread(a[40:] + self.fdi_gen(), pc))
        e(f's_mul_i32 s{t0}, s2, 3584\nv_lshlrev_b32 v17, 7, v{V_LANE}\ns_cmp_eq_u32 s{S_W}, 3\ns_cselect_b32 exec_lo, 0xfffffff, 0\ns_mov_b32 exec_hi, 0')
        e(f'buffer_load_dword v18, v17, {sr(SWOUT,4)}, s{t0} offen\ns_mov_b64 exec, -1'); e.nvm -= 1
        e(f'v_lshrrev_b32 v17, 1, v{V_J}\nv_mul_u32_u24 v17, 1040, v17\nv_and_b32 v16, 1, v{V_J}\nv_lshl_add_u32 v17, v16, 9, v17\nv_lshl_add_u32 v17, v{V_Q}, 3, v17')
        e(f's_mul_i32 s{t0}, s{S_W}, 8320\nv_add_u32 v31, s{t0}, v17\nv_lshrrev_b32 v17, 5, v{V_LANE}\nv_lshlrev_b32 v17, 12, v17\nv_and_b32 v16, 31, v{V_LANE}\nv_lshl_add_u32 v5, v16, 4, v17')
        e(('wvm', 'wsp2')); e(self.wsp_read(2))
        e('s_waitcnt lgkmcnt(0)\ns_barrier')
        self.ts('pre F2 poll')
        self.poll(15)
        self.ts('F2 seen')
        for sg in range(3): e(self.h_loads(sg))
        LP = e.label_name('par1'); LJ = e.label_name('p4join')
        e(f's_cmp_lg_u32 s{S_P4}, 0\ns_cbranch_scc1 {LP}')
        nv, nt = e.nvm, self.nts
        self.p4_body(0); e(f's_branch {LJ}\n{LP}:')
        e.nvm = nv; self.nts = nt; self.names = self.names[:nt]
        self.p4_body(1); e(f'{LJ}:')

    @staticmethod
    def hbuf(sg): return [4*16384, 5*16384, 6*16384, L_RING, L_RING+16384, L_RING+32768, 6*16384, L_RING][sg]
    def wg4(self, dst, vr4, vj4, tmp):
        if self.map4 == 2:
            return lines(f'v_lshrrev_b32 v{tmp}, 1, v{vr4}\nv_and_b32 v{vr4}, 1, v{vr4}\nv_lshl_add_u32 v{vr4}, v{vr4}, 3, v{tmp}\nv_lshl_add_u32 v{dst}, v{vj4}, 4, v{vr4}')
        return lines(f'v_lshrrev_b32 v{tmp}, 2, v{vr4}\nv_and_b32 v{vr4}, 3, v{vr4}\nv_lshl_add_u32 v{vr4}, v{vr4}, 3, v{tmp}\nv_lshrrev_b32 v{tmp}, 3, v{vj4}\nv_lshl_add_u32 v{vr4}, v{tmp}, 2, v{vr4}\n'
                     f'v_and_b32 v{tmp}, 7, v{vj4}\nv_lshl_add_u32 v{dst}, v{tmp}, 5, v{vr4}')
    def h_loads(self, sg):
        out = [[f'buffer_load_dwordx4 v{20+i}, {WSr}, s{t0} offen offset:{1024*i} sc1 lds'] for i in range(4)]
        out[0] = [f's_add_u32 m0, s18, {self.hbuf(sg)}', f's_add_u32 s{t0}, s19, {sg*16384}'] + out[0]
        out[-1].append(('mark', f'h{sg}'))
        return out

    def gelu_s(self, acc, scale, T, n=4):
        KA, KB = self.V_KA, self.V_KB; R = range(n); o = []
        o += [f'v_mul_f32 v{acc+i}, v{acc+i}, v{scale}' for i in R] + [f'v_mul_f32 v{T+i}, v{acc+i}, v{acc+i}' for i in R]
        o += [f'v_fma_f32 v{T+i}, v{T+i}, v{KB}, v{KA}' for i in R] + [f'v_mul_f32 v{T+i}, v{T+i}, v{acc+i}' for i in R]
        o += [f'v_exp_f32 v{T+i}, v{T+i}' for i in R] + [f'v_add_f32 v{T+i}, 1.0, v{T+i}' for i in R]
        o += [f'v_rcp_f32 v{T+i}, v{T+i}' for i in R] + [f'v_mul_f32 v{acc+i}, v{acc+i}, v{T+i}' for i in R]
        return o

    def p4_body(self, par):
        e = self.e
        AG, AWr, AR, AB2, ADG = 8, 9, 10, 12, 13
        AW4 = 20
        AF, ZA, DG, BF, T, FI = 128, 64, 56, 32, 16, self.FI
        SQ = BF; S_ST = 12; RLt = [26, 28]; NB = 6
        nz2, nz1 = 4 - par, 3 + par
        af = lambda u, tau: AF + (u*2 + tau)*4
        za = lambda n, tau: ZA + (n*2 + tau)*4
        z1a = lambda n, tau: (DG if n == 0 else FI + 8*(n-1)) + 4*tau
        def bread(dst, slot, u):
            return (f'ds_read_b128 {vr(dst,4)}, v{V_L16} offset:{slot*16384+u*1024}' if slot < 4 else
                    f'ds_read_b128 {vr(dst,4)}, v{AB2} offset:{(slot-4)*16384+u*1024}')
        items = [(u, n) for u in range(16) for n in range(nz2)]
        LA = 5
        rdi = lambda i: [bread(BF+4*(i % NB), items[i][1], items[i][0]), ('mark', f'bf{i}')]
        def block(sg):
            out = []
            for u in (2*sg, 2*sg+1):
                for tau in range(2): out.append([f'{MF} {vr(DG+4*tau,4)}, {vr(af(u,tau),4)}, {vr(af(u,tau),4)}, {vr(DG+4*tau,4) if u else 0}'])
            out[0] = [('wlg', f'tr{sg}')] + out[0]
            for i, (u, n) in enumerate(items):
                if u >> 1 != sg: continue
                mmf = [f'{MF} {vr(za(n,tau),4)}, {vr(af(u,tau),4)}, {vr(BF+4*(i%NB),4)}, {vr(za(n,tau),4) if u else 0}' for tau in range(2)]
                out.append([('wlg', f'bf{i}'), mmf[0]])
                out.append([mmf[1]] + (rdi(i + LA) if i + LA < len(items) else []))
            return out
        z1dma = [self.w2_dma(n) for n in range(4, 7)]
        rh = pick4(T, DG, T+2) + pick4(T+1, DG+4, T+2) + [f'ds_write2_b32 v{ADG}, v{T}, v{T+1} offset0:0 offset1:16', ('mark', 'dgw')]
        rh += lines(f's_lshl_b32 s{t0}, s{S_W}, 10\ns_add_u32 s{t0}, s{t0}, {L_SM}\nv_lshl_add_u32 v{T}, v{V_Q}, 4, s{t0}\nv_lshl_add_u32 v{T+1}, v{V_J}, 2, s{t0}')
        rh += [[('wlg', 'dgw')] + [f'ds_read_b128 {vr(DG+4*tau,4)}, v{T} offset:{64*tau}' for tau in range(2)] +
               [f'ds_read_b32 v{RLt[tau]}, v{T+1} offset:{64*tau}' for tau in range(2)] + [('mark', 'dgr')]]
        rh += [f'v_mov_b32 v{T+2}, {f32(0.5)}', f'v_mov_b32 v{T+4}, {f32(256e-5)}']
        for sg in range(9):
            prev = block(sg - 1) if sg else []
            if sg < 8:
                nxt = self.h_loads(sg + 3) if sg + 3 < 8 else z1dma[sg - 5]
                ra, ro = (AR, self.hbuf(sg) - 0x10000) if self.hbuf(sg) < L_RING else (8, self.hbuf(sg) - L_RING)
                tr = [f'ds_read_b64_tr_b16 {vr(af(2*sg+v,tau)+2*c,2)}, v{ra+tau} offset:{ro+v*8192+c*256}' for v in range(2) for tau in range(2) for c in range(2)]
                k1 = self.opt.get('k1', 6) if prev else 0
                if sg == 0:
                    e(('wvm', 'h0')); e('s_barrier'); e(tr); e(('mark', 'tr0'))
                    for i in range(LA): e(rdi(i))
                    e(nxt)
                else:
                    e(prev[:k1]); e(('wvm', f'h{sg}')); e('s_barrier')
                    e(spread(prev[k1:k1+6], tr)); e(('mark', f'tr{sg}'))
                    e(spread(prev[k1+6:], nxt))
            else:
                e(prev[:8]); e(spread(prev[8:], rh))
            if sg in (0, 3, 7): self.ts(f'stage {sg}', 'p4')
        e(('mark', 'w2z1'))
        self.ts('stream done'); self.ts('stream done', 'p4')
        e(('wlg', 'dgr'))
        for i in range(0, 8, 2): e(f'v_pk_fma_f32 {vr(DG+i,2)}, {vr(DG+i,2)}, {vr(T+2,2)}, {vr(T+4,2)} op_sel_hi:[1,0,0]')
        for rg in RLt: e(f'v_fma_f32 v{rg}, v{rg}, v{T+2}, v{T+4}')
        for rg in [DG+i for i in range(8)] + RLt: e(f'v_rsq_f32 v{rg}, v{rg}')
        self.ts('rh', 'p4')
        for n in range(nz2):
            e(self.zip2(self.gelu4(za(n,0), DG, True, T), self.gelu4(za(n,1), DG+4, True, T+4)))
            for tau in range(2):
                for h in (0, 2):
                    a = vr(za(n,tau)+h, 2); sS = vr(SQ+4*tau+h, 2); sQ = vr(SQ+8+4*tau+h, 2)
                    if n == 0: e(f'v_pk_mul_f32 {sQ}, {a}, {a}')
                    elif n == 1: e(f'v_pk_add_f32 {sS}, {vr(za(0,tau)+h,2)}, {a}\nv_pk_fma_f32 {sQ}, {a}, {a}, {sQ}')
                    else: e(f'v_pk_add_f32 {sS}, {sS}, {a}\nv_pk_fma_f32 {sQ}, {a}, {a}, {sQ}')
        self.ts('z2 gelu', 'p4')
        dpp = lambda d, s_, ctl, bm: f'v_add_f32_dpp v{d}, v{s_}, v{s_} {ctl} row_mask:0xf bank_mask:{bm:#x}'
        for src, bm in ((0, 0x3), (4, 0xc)):
            for k in (0, 8):
                for r in range(4): e(dpp(SQ+k+r, SQ+k+src+r, 'row_ror:8', bm))
        e(f'v_mov_b32 v{T+1}, s{S_TAG}\nv_mov_b32 v{T+3}, s{S_TAG}')
        for src, bm in ((0, 0x5), (2, 0xa)):
            for k in (0, 8):
                for m in range(2): e(dpp(SQ+k+m, SQ+k+src+m, 'row_half_mirror', bm))
        for ctl in ('quad_perm:[1,0,3,2]', 'quad_perm:[2,3,0,1]'):
            for k in (0, 8):
                for m in range(2): e(dpp(SQ+k+m, SQ+k+m, ctl, 0xf))
        e(f'v_cndmask_b32 v{T}, v{SQ}, v{SQ+1}, {M_J1}\nv_cndmask_b32 v{T+2}, v{SQ+8}, v{SQ+9}, {M_J1}\ns_not_b64 exec, {M_J2}')
        e(f'buffer_store_dwordx4 {vr(T,4)}, v25, {WSr}, s{S_ST+1} offen sc1\ns_mov_b64 exec, -1')
        self.ts('stats out'); self.ts('stats out', 'p4')
        sA, pA = self.wsph_issue(0, 5); sB, pB = self.wsph_issue(1, 5)
        e(sA); e(('wvm', 'w2z1')); e('s_barrier')
        zit = [(n, u) for n in range(nz1) for u in range(16)]
        rdz = lambda i: [bread(BF+4*(i % NB), nz2+zit[i][0], zit[i][1]), ('mark', f'c{i}')]
        for i in range(LA): e(rdz(i))
        main = []
        for i, (n, u) in enumerate(zit):
            for tau in range(2):
                acc = vr(z1a(n, tau), 4)
                m = [f'{MF} {acc}, {vr(BF+4*(i%NB),4)}, {vr(af(u,tau),4)}, {acc if u else 0}']
                if tau == 0: m = [('wlg', f'c{i}')] + m
                elif i + LA < len(zit): m += rdz(i + LA)
                main.append(m)
        S_Z1, S_Z2, S_HF, S_MN = 14, 16, 17, 18
        f0 = [f's_lshl_b32 s{t0}, s{S_W}, 12', f's_add_u32 s{t0}, s{t0}, {L_RING}', f'v_add_u32 v{T}, s{t0}, v{V_L16}']
        f0 += [f'ds_write_b128 v{T}, {vr(FI+(up*2+n)*4,4)} offset:{n*16384+up*1024}' for up in range(4) for n in range(2)]
        f1 = [lines(f's_or_b32 s{t1}, s2, s{S_W}\ns_cmp_eq_u32 s{t1}, 0\ns_cselect_b32 exec_lo, {0 if self.opt.get("noepoch") else 1}, 0\ns_mov_b32 exec_hi, 0\nv_mov_b32 v6, s{S_TAG}\nv_mov_b32 v7, 0\n'
                    f'buffer_store_dword v6, v7, {WSr}, 0 offen offset:{WS_EPOCH} sc1\ns_mov_b64 exec, -1') + [self.uncount()]]
        f1 += lines(f's_lshl_b32 s{S_HF}, s{S_RB4}, 3\ns_lshl_b32 s{t1}, s{S_W}, 1\ns_add_u32 s{S_HF}, s{S_HF}, s{t1}\ns_mul_i32 s{S_Z1}, s{S_HF}, 56\ns_add_u32 s{S_Z1}, s{S_Z1}, s{S_M4}')
        f1 += lines(f's_add_u32 s{S_Z1}, s{S_Z1}, {3*par}\ns_lshl_b32 s{S_Z1}, s{S_Z1}, 9\ns_add_u32 s{S_Z1}, s{S_Z1}, {WS_Z1F}\ns_add_u32 s{S_Z1+1}, s{S_Z1}, {56*512}')
        f1 += lines(f's_lshl_b32 s{S_HF}, s{S_HF}, 4\ns_add_u32 s{S_HF}, s{S_HF}, s{S_J4}\ns_lshl_b32 s{S_HF}, s{S_HF}, 10\ns_add_u32 s{S_HF}, s{S_HF}, {WS_HF}')
        f1 += lines(f's_lshl_b32 s{t1}, s{S_RB4}, 2\ns_add_u32 s{t1}, s{t1}, s{S_W}\ns_add_u32 s{S_Z2}, s{S_M4}, {4*par}\ns_lshl_b32 s{S_Z2}, s{S_Z2}, 6\ns_add_u32 s{S_Z2}, s{S_Z2}, s{t1}')
        f1 += lines(f's_lshl_b32 s{S_Z2}, s{S_Z2}, 10\ns_add_u32 s{S_Z2}, s{S_Z2}, {WS_Z2F}\ns_lshl_b32 s{S_MN}, s{t1}, 2\ns_add_u32 s{S_MN}, s{S_MN}, {WS_MEAN}\ns_add_u32 s{S_MN+1}, s{S_MN}, 4096')
        f1 += lines(f'v_lshlrev_b32 v{T+1}, 8, v{V_J}\nbuffer_load_dword v10, v{T+1}, {WSr}, s{S_MN} offen sc1\nbuffer_load_dword v11, v{T+1}, {WSr}, s{S_MN+1} offen sc1')
        f1 += lines(f'v_lshlrev_b32 v{AG}, 3, v{V_LANE}\ns_lshl_b32 s{t0}, s{S_W}, 10\ns_add_u32 s{t0}, s{t0}, {L_SM}\nv_and_b32 v{T+2}, 31, v{V_LANE}\nv_lshl_add_u32 v{AWr}, v{T+2}, 2, s{t0}\nv_lshl_add_u32 v{ADG}, v{V_Q}, 4, s{t0}')
        GA_ = 0
        f0 = [f0[:3]] + self.zip2(pA, f0[3:])
        f2 = [('wvm', 'wsph0')] + self.wsph_read(0, 31) + [('mark', 'hA')]
        e(spread(main[:32], f0, 0, 28)); e(spread(main[32:52], f1)); e(spread(main[52:62], f2)); e(main[62:68])
        e(('wlg', 'hA')); e(sB); e(spread(main[68:], pB, 0, 24))
        self.ts('z1 done'); self.ts('z1 done', 'p4')
        GR = BF
        gr = lambda i: GR + 4*i if i < 6 else T + 4*(i-6)
        L = e.label_name('sp'); Dn = e.label_name('spd')
        e(f's_mov_b32 s{t0}, 0\n{L}:')
        for i in range(8):
            e(f's_add_u32 s{t1}, s{S_ST}, {i*4096}\nbuffer_load_dwordx4 {vr(gr(i),4)}, v24, {WSr}, s{t1} offen sc1')
        e(f's_add_u32 s{t0}, s{t0}, 1\ns_cmp_ge_u32 s{t0}, {SPIN_MAX}\ns_cbranch_scc1 {Dn}\ns_waitcnt vmcnt(0)')
        e(f'v_cmp_ne_u32 vcc, s{S_TAG}, v{gr(0)+1}')
        for i in range(8):
            for o in (1, 3):
                if (i, o) != (0, 1): e(f'v_cmp_ne_u32 s[62:63], s{S_TAG}, v{gr(i)+o}\ns_or_b64 vcc, vcc, s[62:63]')
        e(f's_cbranch_vccnz {L}\n{Dn}:\ns_waitcnt vmcnt(0)')
        self.ts('stats in'); self.ts('stats in', 'p4')
        for st in (4, 2, 1):
            for i in range(st): e(f'v_add_f32 v{gr(i)}, v{gr(i)}, v{gr(i+st)}\nv_add_f32 v{gr(i)+2}, v{gr(i)+2}, v{gr(i+st)+2}')
        e(f'v_mov_b32 v{GR+1}, v{GR}\nv_mov_b32 v{GR+3}, v{GR+2}')
        e(f'v_permlane32_swap_b32 v{GR}, v{GR+1}\nv_permlane32_swap_b32 v{GR+2}, v{GR+3}')
        e(f'v_add_f32 v{GR}, v{GR}, v{GR+1}\nv_add_f32 v{GR+2}, v{GR+2}, v{GR+3}')
        e(f'v_mul_f32 v{GR}, {f32(1/896)}, v{GR}\nv_mul_f32 v{GR+2}, {f32(1/896)}, v{GR+2}')
        e(f'v_fma_f32 v{GR+2}, -v{GR}, v{GR}, v{GR+2}\nv_max_f32 v{GR+2}, 0, v{GR+2}\nv_add_f32 v{GR+2}, {f32(1e-5)}, v{GR+2}\nv_rsq_f32 v{GR+2}, v{GR+2}')
        e(f'v_mul_f32 v{GR}, -v{GR}, v{GR+2}')
        e(f'ds_write2_b32 v{AWr}, v{GR}, v{GR+2} offset0:32 offset1:64\ns_waitcnt lgkmcnt(0)')
        NM = GR + 4
        for tau in range(2):
            for kind in range(2): e(f'ds_read_b128 {vr(NM+8*kind+4*tau,4)}, v{ADG} offset:{128+128*kind+64*tau}')
        e('s_waitcnt lgkmcnt(0)')
        for n in range(nz2):
            for tau in range(2):
                for h in (0, 2):
                    a = vr(za(n,tau)+h, 2)
                    e(f'v_pk_fma_f32 {a}, {a}, {vr(NM+8+4*tau+h,2)}, {vr(NM+4*tau+h,2)}')
            for tau in range(2):
                for h in (0, 2): e(f'v_cvt_pk_bf16_f32 v{za(n,0)+2*tau+h//2}, v{za(n,tau)+h}, v{za(n,tau)+h+1}')
            e(f'buffer_store_dwordx4 {vr(za(n,0),4)}, v{V_L16}, {WSr}, s{S_Z2} offen sc1')
            if n + 1 < nz2: e(f's_add_u32 s{S_Z2}, s{S_Z2}, 65536')
        e(('mark', 'z2st'))
        e(self.wsph_read(1, 31))
        self.ts('z2 stored'); self.ts('z2 stored', 'p4')
        def z1out(n):
            o = []
            for tau in range(2):
                b = z1a(n, tau)
                o += [f'v_cvt_pk_bf16_f32 v{b}, v{b}, v{b+1}', f'v_cvt_pk_bf16_f32 v{b+1}, v{b+2}, v{b+3}',
                      f'buffer_store_dwordx2 {vr(b,2)}, v{AG}, {WSr}, s{S_Z1+tau} offen offset:{512*n} sc1']
            return o
        e(f'v_lshrrev_b32 v24, 3, v{V_LANE}\nv_and_b32 v25, 7, v{V_LANE}\nv_and_b32 v5, 6, v24\nv_xor_b32 v25, v25, v5\nv_lshlrev_b32 v24, 10, v24\nv_lshl_add_u32 v5, v25, 4, v24')
        e(f's_mul_i32 s{S_DO}, s{S_W}, {224*1024}\ns_lshl_b32 s{t1}, s{S_DB}, 7\ns_add_u32 s{S_DO}, s{S_DO}, s{t1}\ns_mul_i32 m0, s{S_W}, {224*128}\nv_add_u32 v{AB2}, {L_RING}, v{V_L16}')
        for n in range(2):
            e(self.zip2(self.gelu4(z1a(n,0), RLt[0], False, T), self.gelu4(z1a(n,1), RLt[1], False, T+4))); e(z1out(n))
        e(('wvm', 'z2st')); e('s_waitcnt lgkmcnt(0)\ns_barrier')
        self.flag_write(F4)
        self.ts('F4'); self.ts('F4', 'p4')
        dma = [[f'buffer_load_dwordx4 v5, {sr(SWOUT,4)}, s{S_DO} offen lds'] + (['s_add_u32 m0, m0, 1024', f's_add_u32 s{S_DO}, s{S_DO}, 8192'] if i < 27 else []) for i in range(28)]
        NWO = self.opt.get('nwo', 14); self.wo_late = [[x.replace('v5,', 'v15,') for x in p] for p in dma[NWO:]]
        HA = ZA + 16; hit = [(u, n) for u in range(16) for n in range(2)]
        rdh = lambda i: [f'ds_read_b128 {vr(BF+4*(i%NB),4)}, v{AB2} offset:{hit[i][1]*16384+hit[i][0]*1024}', ('mark', f'hh{i}')]
        for i in range(LA): e(rdh(i))
        main = []
        for i, (u, n) in enumerate(hit):
            for tau in range(2):
                acc = vr(HA+(tau*2+n)*4, 4)
                m = [f'{MF} {acc}, {vr(BF+4*(i%NB),4)}, {vr(af(u,tau),4)}, {acc if u else 0}']
                if tau == 0: m = [('wlg', f'hh{i}')] + m + (dma[i//2] if i % 2 == 0 and i//2 < NWO else [])
                elif i + LA < 32: m += rdh(i + LA)
                main.append(m)
        fill = []
        for n in range(2, nz1):
            fill += self.zip2(self.gelu_s(z1a(n,0), RLt[0], T), self.gelu_s(z1a(n,1), RLt[1], T+4)) + z1out(n)
        e(spread(main, fill))
        e(f'v_mov_b32 v{T}, {f32(1/16)}\ns_add_u32 s{t1}, s{S_HF}, 16384\nv_mov_b32 v15, v5')
        for tau in range(2):
            for i in range(0, 8, 2): e(f'v_pk_fma_f32 {vr(HA+8*tau+i,2)}, {vr(HA+8*tau+i,2)}, {vr(T,2)}, {vr(10,2)} op_sel:[0,0,{tau}] op_sel_hi:[1,0,{tau}]')
            for i in range(4): e(f'v_cvt_pk_bf16_f32 v{HA+8*tau+i}, v{HA+8*tau+2*i}, v{HA+8*tau+2*i+1}')
            e(f'buffer_store_dwordx4 {vr(HA+8*tau,4)}, v{V_L16}, {WSr}, s{S_HF if tau == 0 else t1} offen sc1')
        self.ts('h stored'); self.ts('h stored', 'p4')

    def p5(self):
        e = self.e
        RD = 16; PRE = self.opt.get('pre5', 12)
        RING, AC, RR, Z1, PK, BI, T = 64, 32, 128, 144, 160, 8, 16
        AWr, ARd, A8 = 10, 11, 12
        S_Z, S_P = 52, 53
        e(f'v_bfe_u32 v{T}, v{V_LANE}, 1, 2\ns_lshl_b32 s{t0}, s{S_W}, 2\nv_add_u32 v{T}, s{t0}, v{T}')
        AFH, VFH = 13, 14
        e(f'v_and_b32 v{T+1}, 1, v{V_LANE}\ns_lshl_b32 s{t0}, s{S_FB}, 1\nv_add_u32 v{T+1}, s{t0}, v{T+1}\ns_lshr_b32 s{t0}, s{S_TB}, 1\nv_mov_b32 v{AFH}, s{t0}')
        e(self.wg4(T, T, T+1, T+2)); e(self.wg4(AFH, AFH, T+1, T+2))
        e(f'v_lshlrev_b32 v{T}, 7, v{T}\nv_add_u32 v{T}, {F4}, v{T}\nv_lshlrev_b32 v{AFH}, 7, v{AFH}\nv_add_u32 v{AFH}, {FH}, v{AFH}')
        e(f's_lshl_b32 s{t0}, s{S_TB}, 7\ns_lshl_b32 s{t1}, s{S_W}, 5\ns_add_u32 s{t0}, s{t0}, s{t1}\nv_lshlrev_b32 v{T+1}, 1, v{V_J}')
        e(f'buffer_load_ushort v{BI}, v{T+1}, {sr(SBSP,4)}, s{t0} offen')
        e(f's_lshl_b32 s{t0}, s{S_W}, 12\ns_add_u32 s{t0}, s{t0}, {L_RING}\nv_add_u32 v{AWr}, s{t0}, v{V_L16}')
        e(f's_lshl_b32 s{t0}, s{S_W}, 10\ns_add_u32 s{t0}, s{t0}, {L_RING}\nv_add_u32 v{ARd}, s{t0}, v{V_L16}\nv_lshlrev_b32 v{A8}, 3, v{V_LANE}')
        e(f's_mul_i32 s{S_Z}, s{S_FB}, {7*65536}\ns_lshl_b32 s{t0}, s{S_W}, 14\ns_add_u32 s{S_Z}, s{S_Z}, s{t0}\ns_add_u32 s{S_Z}, s{S_Z}, {WS_Z2F}')
        e(f's_lshl_b32 s{S_P}, s{S_TB}, 3\ns_add_u32 s{S_P}, s{S_P}, s{S_FB}\ns_lshl_b32 s{S_P}, s{S_P}, 2\ns_add_u32 s{S_P}, s{S_P}, s{S_W}\ns_mul_i32 s{S_P}, s{S_P}, 3584\ns_add_u32 s{S_P}, s{S_P}, {WS_PF}')
        e(f's_lshl_b32 s{t2}, s{S_TB}, 2\ns_add_u32 s{t2}, s{t2}, s{S_W}\ns_mul_i32 s{t2}, s{t2}, 56\ns_mul_i32 s{t1}, s{S_FB}, 7\ns_add_u32 s{t2}, s{t2}, s{t1}\ns_lshl_b32 s{t2}, s{t2}, 9\ns_add_u32 s54, s{t2}, {WS_Z1F}')
        self.poll(T)
        self.ts('F4 seen'); self.ts('F4 seen', 'p5')
        def load(i):
            n, ks = divmod(i, 16)
            out = []
            if ks % 4 == 0: out.append(f's_add_u32 s{t3}, s{S_Z}, {n*65536 + ks*1024}')
            out += [f'buffer_load_dwordx4 {vr(RING+4*(i%RD),4)}, v{V_L16}, {WSr}, s{t3} offen offset:{(ks%4)*1024} sc1', ('mark', f'z{i}')]
            return out
        for i in range(PRE): e(load(i))
        e(f'v_lshlrev_b32 v{BI}, 16, v{BI}\ns_waitcnt lgkmcnt(0)\ns_barrier')
        self.flag_write(FH)
        def red_write(m): return [f'ds_write_b128 v{AWr}, {vr(AC+16*(m&1)+4*tau,4)} offset:{(m&1)*16384+tau*1024}' for tau in range(4)]
        def red_read(m): return ['s_waitcnt lgkmcnt(0)', 's_barrier'] + [f'ds_read_b128 {vr(RR+4*w2,4)}, v{ARd} offset:{(m&1)*16384+w2*4096}' for w2 in range(4)]
        G0 = 20
        def fin_a(m):
            d = G0 if m == 0 else RR
            o = ['s_waitcnt lgkmcnt(0)']
            for i in range(4): o += [f'v_add_f32 v{RR+i}, v{RR+i}, v{RR+4+i}', f'v_add_f32 v{RR+8+i}, v{RR+8+i}, v{RR+12+i}']
            for i in range(4): o += [f'v_add_f32 v{RR+i}, v{RR+i}, v{BI}']
            for i in range(4): o += [f'v_add_f32 v{d+i}, v{RR+i}, v{RR+8+i}']
            return o
        def fin_b(m):
            d = G0 if m == 0 else RR
            o = [('wvm', 'z1')] if m == 0 else []
            for h in (0, 2): o += [f'v_lshlrev_b32 v{T+h}, 16, v{Z1+2*m+h//2}', f'v_and_b32 v{T+h+1}, 0xffff0000, v{Z1+2*m+h//2}']
            for i in range(4): o += [f'v_mul_f32 v{d+i}, v{d+i}, v{T+i}']
            pk = PK + 4*((m >> 1) & 1) + 2*(m & 1)
            o += [f'v_cvt_pk_bf16_f32 v{pk}, v{d}, v{d+1}', f'v_cvt_pk_bf16_f32 v{pk+1}, v{d+2}, v{d+3}']
            if m == 6: o.append(f'buffer_store_dwordx2 {vr(pk,2)}, v{A8}, {WSr}, s{S_P} offen offset:3072 sc1')
            elif m & 1: o.append(f'buffer_store_dwordx4 {vr(pk-2,4)}, v{V_L16}, {WSr}, s{S_P} offen offset:{(m>>1)*1024} sc1')
            return o
        fin = lambda m: fin_a(m) + fin_b(m)
        IFH = self.opt.get('ifh', 8)
        for n in range(7):
            tail = [] if n == 0 else fin_a(0) if n == 1 else fin_b(0) + fin(1) if n == 2 else fin(n-1)
            k0 = 6 if n == 2 else 8
            per = -(-len(tail) // (15 - k0))
            for ks in range(16):
                i = n*16 + ks
                e(('wvm', f'z{i}'))
                for tau in range(4):
                    acc = vr(AC+16*(n&1)+4*tau, 4)
                    e(f'{MF} {acc}, {vr(RING+4*(i%RD),4)}, {ar((tau*16+ks)*4,4)}, {acc if ks else 0}')
                    if tau == 1 and i + PRE < 112: e(load(i + PRE))
                    if i + PRE >= 112 and tau in (1, 3) and self.wo_late: e(self.wo_late.pop(0))
                    if ks >= k0:
                        lo = (ks-k0)*per; seg = tail[lo:lo+per]
                        e(seg[(len(seg)*tau)//4:(len(seg)*(tau+1))//4])
                if n:
                    if ks == 1: e(red_write(n-1))
                    if ks == 4: e(red_read(n-1))
                if i == IFH: e(f'buffer_load_dword v{VFH}, v{AFH}, {WSr}, 0 offen sc1'); e(('mark', 'fh'))
                if i == IFH + PRE:
                    e(('wvm', 'fh')); self.check_or_poll(VFH, AFH)
                    for m in range(7): e(f'buffer_load_dwordx2 {vr(Z1+2*m,2)}, v{A8}, {WSr}, s54 offen offset:{512*m} sc1')
                    e(('mark', 'z1'))
            self.ts(f'tile {n}', 'p5')
        self.ts('p5 mfma')
        e(red_write(6)); e(red_read(6)); e(fin(6))
        self.ts('p stored'); self.ts('p stored', 'p5')

    def p6(self):
        e = self.e
        TB, DB = S_TB6, S_DB
        WF, PA, HR, T = 128, 16, 240, 248
        steps = [(0, 1), (2, 3), (4, 5), (7, 8), (9, 10), (11, 12), (6, 13)]
        e(f'v_bfe_u32 v8, v{V_LANE}, 2, 2\nv_lshl_add_u32 v9, v{V_Q}, 2, v8\nv_lshrrev_b32 v10, 1, v9\nv_and_b32 v10, 3, v10\nv_lshlrev_b32 v9, 7, v9')
        e(f'v_lshl_add_u32 v9, v10, 5, v9\nv_and_b32 v10, 3, v{V_LANE}\nv_lshl_add_u32 v9, v10, 3, v9\ns_mul_i32 s{t0}, s{S_W}, 28672')
        for n in range(4): e(f'v_xor_b32 v{20+n}, {32*n}, v9\nv_add_u32 v{20+n}, s{t0}, v{20+n}')
        rds = []
        for si, (la, lb) in enumerate(steps):
            for n in range(4):
                rds += [f'ds_read_b64_tr_b16 {vr(WF+(si*4+n)*4,2)}, v{20+n} offset:{la*2048}', f'ds_read_b64_tr_b16 {vr(WF+(si*4+n)*4+2,2)}, v{20+n} offset:{lb*2048}']
        e(rds[:24])
        e('s_waitcnt vmcnt(0)\ns_barrier')
        self.flag_write(F5)
        self.ts('F5'); self.ts('F5', 'p5')
        e(rds[24:])
        e(f'v_and_b32 v8, 1, v{V_LANE}')
        if self.map5 == 'B':
            e(f's_lshl_b32 s{t0}, s{S_W}, 6\ns_add_u32 s{t0}, s{t0}, s{TB}\nv_lshl_add_u32 v9, v8, 5, s{t0}')
        else:
            e(f's_lshr_b32 s{t0}, s{S_W}, 1\ns_and_b32 s{t1}, s{S_W}, 1\ns_lshl_b32 s{t1}, s{t1}, 4\ns_add_u32 s{t0}, s{t0}, s{t1}\ns_lshr_b32 s{t1}, s{TB}, 3\ns_lshl_b32 s{t1}, s{t1}, 1\ns_add_u32 s{t0}, s{t0}, s{t1}')
            e(f's_and_b32 s{t1}, s{TB}, 7\ns_lshl_b32 s{t1}, s{t1}, 5\ns_add_u32 s{t0}, s{t0}, s{t1}\nv_lshl_add_u32 v9, v8, 3, s{t0}')
        e(f'v_lshlrev_b32 v9, 7, v9\nv_add_u32 v9, {F5}, v9\ns_lshl_b32 s{t0}, s{DB}, 1\nv_add_u32 v8, s{t0}, v8\ns_lshr_b32 s{t0}, s{TB}, 1\nv_mov_b32 v10, s{t0}')
        e(self.wg4(8, 10, 8, 11))
        e(f'v_lshlrev_b32 v8, 7, v8\nv_add_u32 v8, {FH}, v8\nv_cmp_gt_u32 vcc, 2, v{V_LANE}\nv_cndmask_b32 v9, v8, v9, vcc')
        A8, AH, ARW, ARR, AO = 8, 10, 11, 12, 13
        S_P0, S_H, S_O = 52, 54, 55
        e(f'v_lshlrev_b32 v{A8}, 3, v{V_LANE}')
        e(f'v_bfe_u32 v14, v{V_LANE}, 2, 1\nv_lshlrev_b32 v{AH}, 10, v14\nv_and_b32 v14, 3, v{V_LANE}\nv_lshl_add_u32 v{AH}, v14, 8, v{AH}\nv_lshrrev_b32 v14, 3, v{V_LANE}\nv_lshl_add_u32 v{AH}, v14, 4, v{AH}')
        e(f's_mul_i32 s{t0}, s{S_W}, 4352\nv_mul_u32_u24 v{ARW}, 272, v{V_J}\nv_lshl_add_u32 v{ARW}, v{V_Q}, 4, v{ARW}\nv_add_u32 v{ARW}, s{t0}, v{ARW}')
        e(f's_mul_i32 s{t0}, s{S_W}, 17408\nv_mul_u32_u24 v{ARR}, 272, v14\nv_and_b32 v15, 7, v{V_LANE}\nv_lshl_add_u32 v{ARR}, v15, 5, v{ARR}\nv_add_u32 v{ARR}, s{t0}, v{ARR}')
        e(f'v_lshlrev_b32 v{AO}, 10, v14\nv_lshl_add_u32 v{AO}, v15, 4, v{AO}')
        e(f's_lshl_b32 s{S_P0}, s{TB}, 3\ns_lshl_b32 s{t0}, s{S_W}, 1\ns_add_u32 s{S_P0}, s{S_P0}, s{t0}\ns_mul_i32 s{S_P0}, s{S_P0}, {4*3584}\ns_add_u32 s{S_P0}, s{S_P0}, {WS_PF}')
        e(f's_lshl_b32 s{S_H}, s{TB}, 2\ns_add_u32 s{S_H}, s{S_H}, s{S_W}\ns_lshl_b32 s{S_O}, s{S_H}, 14\ns_lshl_b32 s{t0}, s{DB}, 7\ns_add_u32 s{S_O}, s{S_O}, s{t0}')
        e(f's_lshl_b32 s{S_H}, s{S_H}, 4\ns_lshl_b32 s{t0}, s{DB}, 1\ns_add_u32 s{S_H}, s{S_H}, s{t0}\ns_lshl_b32 s{S_H}, s{S_H}, 10\ns_add_u32 s{S_H}, s{S_H}, {WS_HF}')
        e('s_waitcnt lgkmcnt(0)\ns_barrier')
        self.poll(9)
        self.ts('F5 seen'); self.ts('F5 seen', 'p5')
        def loads(tau):
            out = []
            for h in range(2):
                out.append([f's_add_u32 s{t1+h}, s{S_P0}, {(h*4+tau)*3584}', f'buffer_load_dwordx4 {vr(PA+(tau*7+h*3)*4,4)}, v{V_L16}, {WSr}, s{t1+h} offen sc1', ('mark', f'p{tau}_{h*3}')])
                for p in (1, 2): out.append([f'buffer_load_dwordx4 {vr(PA+(tau*7+h*3+p)*4,4)}, v{V_L16}, {WSr}, s{t1+h} offen offset:{1024*p} sc1', ('mark', f'p{tau}_{h*3+p}')])
            out.append([f'buffer_load_dwordx2 {vr(PA+(tau*7+6)*4+2*h,2)}, v{A8}, {WSr}, s{t1+h} offen offset:3072 sc1' for h in range(2)] + [('mark', f'p{tau}_6')])
            return out
        ld = [x for tau in range(4) for x in loads(tau)]
        ld.append([f'buffer_load_dwordx4 {vr(HR+4*h,4)}, v{AH}, {WSr}, s{S_H} offen offset:{128*h} sc1' for h in range(2)])
        P6 = self.opt.get('pre6', 12)
        for x in ld[:P6]: e(x)
        def wr(tau): return [f'ds_write_b128 v{ARW}, {ar(16*(tau&1)+4*n,4)} offset:{tau*17408+64*n}' for n in range(4)]
        for tau in range(4):
            for si in range(7):
                e(('wvm', f'p{tau}_{si}'))
                for n in range(4):
                    acc = ar(16*(tau&1)+4*n, 4)
                    e(f'{MF} {acc}, {vr(WF+(si*4+n)*4,4)}, {vr(PA+(tau*7+si)*4,4)}, {acc if si else 0}')
                    if n == 1 and tau*7 + si + P6 < len(ld): e(ld[tau*7 + si + P6])
                if si == 2 and tau: e(wr(tau-1))
        self.ts('p6 mfma'); self.ts('p6 mfma', 'p5')
        e(wr(3)); e('s_waitcnt lgkmcnt(0)\ns_barrier')
        R = 16
        for h in range(2):
            for w2 in range(4):
                for x in range(2): e(f'ds_read_b128 {vr(R+((h*4+w2)*2+x)*4,4)}, v{ARR} offset:{w2*4352+h*2176+16*x}')
            e(('mark', f'r{h}'))
        e(f's_add_u32 s{t0}, s{S_O}, 8192\ns_waitcnt vmcnt(0)')
        for h in range(2):
            b = R + h*32
            for i in range(4): e(f'v_lshlrev_b32 v{T+2*i}, 16, v{HR+4*h+i}\nv_and_b32 v{T+2*i+1}, 0xffff0000, v{HR+4*h+i}')
            e(('wlg', f'r{h}'))
            for i in range(0, 8, 2):
                e(f'v_pk_add_f32 {vr(b+i,2)}, {vr(b+i,2)}, {vr(b+8+i,2)}\nv_pk_add_f32 {vr(b+16+i,2)}, {vr(b+16+i,2)}, {vr(b+24+i,2)}')
            for i in range(0, 8, 2): e(f'v_pk_add_f32 {vr(b+i,2)}, {vr(b+i,2)}, {vr(b+16+i,2)}')
            for i in range(0, 8, 2): e(f'v_pk_add_f32 {vr(b+i,2)}, {vr(b+i,2)}, {vr(T+i,2)}')
            for i in range(4): e(f'v_cvt_pk_bf16_f32 v{b+8+i}, v{b+2*i}, v{b+2*i+1}')
            e(f'buffer_store_dwordx4 {vr(b+8,4)}, v{AO}, {sr(SOUT,4)}, s{S_O if h == 0 else t0} offen')

    def epilogue(self):
        e = self.e
        if self.prof:
            self.ts('end')
            e(f's_lshl_b32 s{t0}, s2, 2\ns_add_u32 s{t0}, s{t0}, s{S_W}\ns_lshl_b32 s{t0}, s{t0}, 7\ns_add_u32 s{t0}, s{t0}, {WS_TS}')
            e('v_mov_b32 v7, 0\ns_mov_b64 exec, 1')
            e('s_waitcnt lgkmcnt(0)')
            for i in range(self.nts):
                e(f'v_mov_b32 v6, s{S_TS+i*(2 if self.opt.get("fine") else 1)}\nbuffer_store_dword v6, v7, {WSr}, s{t0} offen offset:{4*i}')
        if self.prof and self.opt.get('dbg') is not None:
            L = e.label_name('nd')
            e(f's_lshl_b32 s{t0}, s{S_W}, 8\ns_add_u32 s{t0}, s{t0}, s2\ns_cmp_eq_u32 s{t0}, {self.opt["dbg"]}\ns_cbranch_scc0 {L}')
            e('s_load_dwordx2 s[8:9], s[0:1], 72\ns_mov_b32 s10, 256\ns_mov_b32 s11, 0x20000\ns_waitcnt lgkmcnt(0)')
            pick = [i for i, n in enumerate(self.names) if n in self.opt['pick']]
            for o, i in enumerate(pick):
                e(f's_sub_u32 s{t1}, s{S_TS+i}, s{S_TS}\nv_mov_b32 v6, s{t1}\nbuffer_store_dword v6, v7, s[8:11], 0 offen offset:{4*o}')
            e(f'{L}:')
        e('L_end:\ns_endpgm')
        e.raw('.type L_pad,@object\nL_pad:\n.fill 2048, 4, 0xbf800000\nL_padend:')

    def build(self):
        self.p1()
        for ph, fn in ((2, 'p2'), (4, 'p4'), (5, 'p5'), (6, 'p6')):
            if self.stop >= ph: getattr(self, fn)()
        self.epilogue()
        hdr = open('cdna_kernels/' + NAME + '.s.ref').read().split('; Override launch')[0]
        txt = hdr + f'; @launch grid=(256,1,1) block=(256,1,1) lds={LDS_BYTES}\n'
        txt += f'.amdgcn_target "amdgcn-amd-amdhsa--gfx950"\n.text\n.globl {KNAME}\n.p2align 8\n.type {KNAME},@function\n{KNAME}:\n'
        txt += self.e.text()
        txt += (f'.section .rodata,"a"\n.p2align 6\n.amdhsa_kernel {KNAME}\n  .amdhsa_next_free_vgpr 512\n  .amdhsa_next_free_sgpr 102\n'
                '  .amdhsa_accum_offset 256\n  .amdhsa_group_segment_fixed_size 0\n  .amdhsa_kernarg_size 88\n  .amdhsa_user_sgpr_count 2\n'
                '  .amdhsa_user_sgpr_kernarg_segment_ptr 1\n  .amdhsa_system_sgpr_workgroup_id_x 1\n  .amdhsa_float_denorm_mode_32 3\n.end_amdhsa_kernel\n')
        return txt

def main(cls):
    import argparse, json
    ap = argparse.ArgumentParser(); ap.add_argument('-o', default='k.s'); ap.add_argument('--stop', type=int, default=99)
    ap.add_argument('--prof', action='store_true'); ap.add_argument('--opt', default='{}')
    a = ap.parse_args()
    g = cls(a.stop, a.prof, json.loads(a.opt)); t = g.build(); open(a.o, 'w').write(t)
    if a.prof: open(a.o + '.names', 'w').write('\n'.join(g.names))
    print('lines', t.count('\n'), 'nops', g.e.nops, 'stamps', g.nts)

if __name__ == '__main__': main(Gen)
```

```python
import math, struct, sys
from emit import *

NAME = 'sequential_preLN__spectral_gfnet__mixer_gmlp__prompt'
KNAME = NAME + '_kernel'
MF = 'v_mfma_f32_16x16x32_bf16'

def f32(x): return '0x%08x' % struct.unpack('<I', struct.pack('<f', x))[0]

KS = 8448
WS_EPOCH = 0
WS_FLAG = 0x10000
F1, F1B, F2, F4, FH, F5 = [WS_FLAG + i * 0x8000 for i in range(6)]
WS_SIG = 0x40000
WS_MEAN = 0x48000
WS_TS = 0x50000
WS_STAT = 0x80000
WS_X1T = 0x100000
WS_WT = 0x340000
WS_HT = 0x580000
WS_W2F = 0x7C0000
WS_Z1F = 0x980000
WS_Z2F = 0xD00000
WS_HF = 0x1100000
WS_PF = 0x1300000
WS_SIZE = 0x1700000

SX, SWR, SWI, SWIN, SWSP, SBSP, SWOUT, SOUT, SWS = 8, 12, 16, 20, 24, 28, 32, 36, 40
S_W, S_TAG, S_KB, S_RB = 44, 45, 46, 47
t0, t1, t2, t3 = 48, 49, 50, 51
S_TB, S_FB, S_RB4, S_J4, S_M4, S_DO = 64, 65, 66, 67, 68, 69
S_TB6, S_DB = 3, 60
S_TS = 70
V_TID, V_LANE, V_L16, V_J, V_Q = 0, 1, 2, 3, 4
V_STG = 254

L_X, L_WIN, L_WTR, L_STAT, L_BNC, L_RS, L_STG = 0, 33280, 66048, 86016, 75776, 84992, 97280
L_X1C, L_EX, L_OB, L_STG2 = 0, 8192, 16384, 24576
L_W2, L_RING, L_SM = 0, 114688, 147456
LDS_BYTES = 163840
SPIN_MAX = 1 << 16
WSr = sr(SWS, 4)

M_J1, M_J2 = 's[4:5]', 's[6:7]'
def pick4(dst, src, tmp):
    return [f'v_cndmask_b32 v{tmp}, v{src}, v{src+1}, {M_J1}', f'v_cndmask_b32 v{dst}, v{src+2}, v{src+3}, {M_J1}', f'v_cndmask_b32 v{dst}, v{tmp}, v{dst}, {M_J2}']
def diag_mask(r): return (1 << r) | (1 << (20 + r)) | (1 << (40 + r)) | (1 << (60 + r))
def set_exec(m): return [f's_mov_b32 exec_lo, {m & 0xffffffff:#x}', f's_mov_b32 exec_hi, {m >> 32:#x}']

def setup0_free(setup):
    return [x.replace(f's{t0}', 's62') for x in setup]

class Gen:
    def __init__(self, stop=99, prof=False, opt=None):
        self.e = Emitter(); self.stop = stop; self.prof = prof; self.nts = 0; self.names = []
        self.opt = opt or {}
        self.nt = ' nt' if self.opt.get('nt', 1) else ''
        self.map5 = self.opt.get('map5', 'C'); self.map4 = self.opt.get('map4', 4)
        self.ntw = ' nt' if self.opt.get('ntw', self.map5 == 'B') else ''

    def ts(self, name='', fine=None):
        if not self.prof: return
        grp = self.opt.get('fine')
        if grp:
            if fine == grp or name in self.opt.get('also', []):
                assert self.nts < 16
                self.e(f's_memtime {sr(S_TS + 2*self.nts, 2)}'); self.names.append(name); self.nts += 1
        elif fine is None:
            self.e(f's_memrealtime s[62:63]\ns_waitcnt lgkmcnt(0)\ns_mov_b32 s{S_TS + self.nts}, s62')
            self.names.append(name); self.nts += 1
    def tsl(self, name, fine):
        n0 = len(self.e.out)
        return ('call', lambda: self.ts(name, fine))

    def uncount(self):
        return ('call', lambda: setattr(self.e, 'nvm', self.e.nvm - 1))

    def flag_write(self, farr):
        e = self.e; L = e.label_name('nf')
        e(f's_cmp_eq_u32 s{S_W}, 0\ns_cbranch_scc0 {L}')
        e(f's_lshl_b32 s{t0}, s2, 7\ns_add_u32 s{t0}, s{t0}, {farr}\nv_mov_b32 v6, s{S_TAG}\nv_mov_b32 v7, 0\ns_mov_b64 exec, 1')
        e(f'buffer_store_dword v6, v7, {WSr}, s{t0} offen sc1'); e.nvm -= 1
        e(f's_mov_b64 exec, -1\n{L}:')

    def poll(self, vaddr):
        e = self.e; L = e.label_name('poll'); D = e.label_name('pdone')
        e(f's_mov_b32 s{t0}, 0\n{L}:')
        e(f'buffer_load_dword v6, v{vaddr}, {WSr}, 0 offen sc1')
        e(f's_add_u32 s{t0}, s{t0}, 1\ns_cmp_ge_u32 s{t0}, {SPIN_MAX}\ns_cbranch_scc1 {D}')
        e(f's_waitcnt vmcnt(0)\nv_cmp_ne_u32 vcc, s{S_TAG}, v6\ns_cbranch_vccnz {L}\n{D}:\ns_waitcnt vmcnt(0)')

    def wsp_issue(self, rnd, t0=t0):
        setup = lines(f's_lshl_b32 s{S_DO}, s{S_TB}, 18\ns_lshl_b32 s{t0}, s{S_W}, 10\ns_add_u32 s{S_DO}, s{S_DO}, s{t0}\ns_add_u32 s{S_DO}, s{S_DO}, {rnd << 16}\n'
                      f's_mul_i32 s{t0}, s{S_W}, 16640\ns_add_u32 m0, s{t0}, {L_STG}')
        pieces = []
        for i in range(16):
            p = [f'buffer_load_dwordx4 v{V_L16}, {sr(SWSP,4)}, s{S_DO} offen{self.ntw} lds']
            p += ['s_add_u32 m0, m0, 1040', f's_add_u32 s{S_DO}, s{S_DO}, 4096'] if i < 15 else [('mark', f'wsp{rnd}')]
            pieces.append(p)
        return setup, pieces
    def wsp_read(self, rnd):
        return [f'ds_read_b128 {ar((rnd*16+ks)*4,4)}, v{V_STG} offset:{64*ks}' for ks in range(16)]
    def wsph_issue(self, half, vaddr):
        setup = lines(f's_lshl_b32 s{S_DO}, s{S_TB}, 18\ns_lshl_b32 s{t0}, s{S_W}, 10\ns_add_u32 s{S_DO}, s{S_DO}, s{t0}\ns_add_u32 s{S_DO}, s{S_DO}, {(3 << 16) + 512*half}\n'
                      f's_mul_i32 s{t0}, s{S_W}, 8320\ns_add_u32 m0, s{t0}, {0 if half else L_RING}')
        pieces = []
        for i in range(8):
            p = [f'buffer_load_dwordx4 v{vaddr}, {sr(SWSP,4)}, s{S_DO} offen{self.ntw} lds']
            p += ['s_add_u32 m0, m0, 1040', f's_add_u32 s{S_DO}, s{S_DO}, 4096'] if i < 7 else [('mark', f'wsph{half}')]
            pieces.append(p)
        return setup, pieces
    def wsph_read(self, half, vaddr):
        return [f'ds_read_b128 {ar((48+8*half+ks)*4,4)}, v{vaddr} offset:{64*ks}' for ks in range(8)]
    def check_or_poll(self, vflag, vaddr):
        e = self.e; L = e.label_name('ok')
        e(f'v_cmp_ne_u32 vcc, s{S_TAG}, v{vflag}\ns_cbranch_vccz {L}')
        nv = e.nvm; self.poll(vaddr); e.nvm = nv
        e(f'{L}:')

    def p1(self):
        e = self.e
        FD, ACC, XF, G, WR, WI = 64, 128, 160, 192, 16, 24
        e('s_cmp_ge_u32 s2, 256\ns_cbranch_scc1 L_end')
        for base, off in ((SX, 0), (SWR, 8), (SWI, 16), (SWS, 80), (SWIN, 32), (SWSP, 40), (SBSP, 48), (SWOUT, 56), (SOUT, 64)):
            e(f's_load_dwordx2 {sr(base,2)}, s[0:1], {off}')
        if self.prof and not self.opt.get('fine'):
            e('s_memrealtime s[60:61]'); self.nts = 1; self.names = ['start']
        self.ts('start', 'p1')
        L = e.label_name('ncode')
        e('s_getpc_b64 s[6:7]'); e.raw('L_pc:')
        e(f's_bfe_u32 s{t0}, s2, 0x30003\ns_cmp_eq_u32 s{t0}, 7\ns_cselect_b32 s{t0}, 0, s{t0}\ns_lshl_b32 s{t0}, s{t0}, 13\ns_min_u32 s{t0}, s{t0}, L_padend-L_pc-8192')
        e(f's_add_u32 s6, s6, s{t0}\ns_addc_u32 s7, s7, 0\nv_lshlrev_b32 v6, 7, v0\nv_mov_b32 v7, s7\nv_add_co_u32 v6, vcc, s6, v6')
        e(f'v_lshrrev_b32 v5, 6, v0\nv_and_b32 v{V_LANE}, 63, v0\nv_addc_co_u32 v7, vcc, 0, v7, vcc\nv_cmp_gt_u32 vcc, 64, v0\nv_readfirstlane_b32 s{S_W}, v5')
        e(f's_and_saveexec_b64 s[6:7], vcc\ns_cbranch_execz {L}\nglobal_load_dword v15, v[6:7], off\n{L}:\ns_mov_b64 exec, -1'); e.nvm -= 1
        e(f'v_lshlrev_b32 v{V_L16}, 4, v{V_LANE}\nv_and_b32 v{V_J}, 15, v{V_LANE}\nv_lshrrev_b32 v{V_Q}, 4, v{V_LANE}')
        e(f's_bfe_u32 s{S_KB}, s2, 0x20003\ns_lshr_b32 s{S_RB}, s2, 5\ns_lshl_b32 s{S_RB}, s{S_RB}, 3\ns_and_b32 s{t0}, s2, 7\ns_or_b32 s{S_RB}, s{S_RB}, s{t0}')
        srd = lambda base, n: [f's_mov_b32 s{base+2}, {n}', f's_mov_b32 s{base+3}, 0x20000']
        S_XO, S_WO, S_JC, S_WI = 52, 53, 54, 55
        e(srd(SX, 2097152))
        e(f's_and_b32 s{S_XO}, s{S_RB}, 1\ns_lshl_b32 s{S_XO}, s{S_XO}, 10\ns_lshl_b32 s{t1}, s{S_W}, 8\ns_add_u32 s{S_XO}, s{S_XO}, s{t1}')
        e(f's_lshr_b32 s{t1}, s{S_RB}, 1\ns_add_u32 s{S_XO}, s{S_XO}, s{t1}\ns_lshl_b32 s{S_XO}, s{S_XO}, 10\ns_mul_i32 m0, s{S_W}, 8320')
        KF, KI, M, SG = G, G+1, G+2, G+4
        C0, S0, C1, S1 = G+8, G+16, G+24, G+32
        g = lines(f's_lshl_b32 s{t0}, s{S_KB}, 6\ns_lshl_b32 s{t1}, s{S_W}, 4\ns_add_u32 s{t0}, s{t0}, s{t1}\ns_add_u32 s{t0}, s{t0}, 1\nv_add_u32 v{KI}, s{t0}, v{V_J}')
        g += lines(f'v_cvt_f32_u32 v{KF}, v{KI}\nv_lshlrev_b32 v{C0}, 3, v{V_Q}\nv_mul_f32 v{KF}, {f32(1/512)}, v{KF}\nv_cvt_f32_u32 v{C0}, v{C0}')
        g += lines(f'v_mul_f32 v{M}, {f32(32.0)}, v{KF}\nv_mul_f32 v{C0}, v{C0}, v{KF}\nv_add_f32 v{C1}, v{C0}, v{M}\nv_cos_f32 v{M}, v{M}')
        for i in range(1, 8): g += lines(f'v_add_f32 v{C0+i}, v{C0+i-1}, v{KF}\nv_add_f32 v{C1+i}, v{C1+i-1}, v{KF}')
        g.append(f'v_add_f32 v{M}, v{M}, v{M}')
        n_early = len(g) + self.opt.get('early', 12)
        for b, sn in ((C0, S0), (C1, S1)):
            for i in range(8): g += [f'v_sin_f32 v{sn+i}, v{b+i}', f'v_cos_f32 v{b+i}, v{b+i}']
        prev, cur = (C0, S0), (C1, S1)
        cvt = lambda u, src: [f'v_cvt_pk_bf16_f32 v{FD+8*u+4*c+i}, {"-" if c else ""}v{src[c]+2*i}, {"-" if c else ""}v{src[c]+2*i+1}' for c in range(2) for i in range(4)]
        g += cvt(0, prev) + cvt(1, cur)
        for u in range(2, 8):
            for c in range(2):
                for i in range(0, 8, 2):
                    g.append(f'v_pk_fma_f32 {vr(prev[c]+i,2)}, {vr(cur[c]+i,2)}, {vr(M,2)}, {vr(prev[c]+i,2)} op_sel_hi:[1,0,1] neg_lo:[0,0,1] neg_hi:[0,0,1]')
            prev, cur = cur, prev
            g += cvt(u, cur)
        e(g[:n_early])
        self.ts('pre kernarg', 'p1')
        e('s_waitcnt lgkmcnt(0)')
        xs = []
        for i in range(8):
            xs.append([f'buffer_load_dwordx4 v{V_L16}, {sr(SX,4)}, s{S_XO} offen{self.nt} lds'] +
                      (['s_add_u32 m0, m0, 1040', f's_add_u32 s{S_XO}, s{S_XO}, 32768'] if i < 7 else [('mark', 'x'), f's_load_dword s{S_TAG}, {sr(SWS,2)}, {WS_EPOCH}']))
        wpre = srd(SWR, 2048*514) + srd(SWI, 2048*514)
        wpre += lines(f'v_bfe_u32 v8, v{V_LANE}, 3, 2\nv_lshlrev_b32 v8, 6, v8\nv_lshrrev_b32 v9, 5, v{V_LANE}\nv_add_u32 v8, v8, v9\nv_mul_u32_u24 v8, 514, v8\nv_and_b32 v5, 7, v{V_LANE}\nv_lshlrev_b32 v5, 4, v5\nv_add_u32 v8, v8, v5')
        wpre += lines(f's_and_b32 s{S_WO}, s{S_RB}, 7\ns_lshl_b32 s{S_JC}, s{S_WO}, 3\ns_lshr_b32 s{t1}, s{S_RB}, 3\ns_lshl_b32 s{S_WO}, s{t1}, 8\ns_add_u32 s{S_WO}, s{S_WO}, s{S_JC}\ns_add_u32 s{S_JC}, s{S_JC}, s{t1}')
        wpre += lines(f's_lshl_b32 s{t1}, s{S_W}, 1\ns_add_u32 s{S_WO}, s{S_WO}, s{t1}\ns_mul_i32 s{S_WO}, s{S_WO}, 514\ns_lshl_b32 s{t1}, s{S_KB}, 7\ns_add_u32 s{S_WO}, s{S_WO}, s{t1}\ns_add_u32 s{S_WO}, s{S_WO}, 2')
        ws = [[f'buffer_load_dwordx4 {vr(WI,4)}, v8, {sr(SWR,4)}, s{S_WO} offen{self.nt}'], [f'buffer_load_dwordx4 {vr(WI+4,4)}, v8, {sr(SWI,4)}, s{S_WO} offen{self.nt}', ('mark', 'xw')]]
        tlb = srd(SWS, WS_SIZE)
        if self.opt.get('tlb', 1):
            tlb += [f'v_lshlrev_b32 v9, 21, v{V_J}', f's_lshl_b32 s{t1}, s2, 7', f's_cmp_eq_u32 s{S_W}, 0', 's_cselect_b32 exec_lo, 0xfff, 0', 's_mov_b32 exec_hi, 0',
                    f'buffer_load_dword v14, v9, {WSr}, s{t1} offen nt', 's_mov_b64 exec, -1', ('call', lambda: setattr(e, 'nvm', e.nvm - 1))]
        for p in xs[:5]: e(p)
        e(spread(g[n_early:], xs[5:] + [wpre] + ws + [tlb], 0, 60))
        self.ts('fd done', 'p1')
        AX, ONES, SUM, SQ = G+8, G+12, G+16, G+20
        AW, AWR, AST, ASR, ARW, ARR, AB, AB2, AG, FS = G+24, G+25, G+27, G+28, G+29, G+30, G+32, G+34, G+35, G+36
        S_WT, S_X1, S_SG, S_MN = 56, 57, 58, 59
        a = lines(f'v_mul_u32_u24 v12, 1040, v{V_J}\ns_and_b32 s{t0}, s{S_W}, 1\ns_lshr_b32 s{t1}, s{S_W}, 1\nv_lshl_add_u32 v12, v{V_Q}, 4, v12')
        a += lines(f's_mul_i32 s{t2}, s{t0}, 16640\ns_lshl_b32 s{t3}, s{t1}, 9\ns_add_u32 s{t2}, s{t2}, s{t3}\nv_add_u32 v{AX}, s{t2}, v12')
        a += lines(f's_xor_b32 s{t2}, s{t0}, 1\ns_mul_i32 s{t2}, s{t2}, 16640\ns_add_u32 s{t2}, s{t2}, s{t3}\nv_add_u32 v{AX+2}, s{t2}, v12')
        a += lines(f's_xor_b32 s{t2}, s{t3}, 0x200\ns_sub_u32 s{t2}, s{t2}, s{t3}\nv_add_u32 v{AX+1}, s{t2}, v{AX}\nv_add_u32 v{AX+3}, s{t2}, v{AX+2}')
        a += [f'v_mov_b32 v{ONES+i}, 0x3f803f80' for i in range(4)]
        a += srd(SWIN, 512*3584)
        a += lines(f'v_lshrrev_b32 v9, 2, v{V_LANE}\nv_mul_u32_u24 v9, 3584, v9\nv_and_b32 v10, 3, v{V_LANE}\nv_and_b32 v11, 2, v{V_Q}\nv_xor_b32 v10, v10, v11\nv_lshl_add_u32 v9, v10, 4, v9')
        a += lines(f's_lshl_b32 s{t2}, s{S_JC}, 6\ns_mul_i32 s{t3}, s{S_W}, {128*3584}\ns_add_u32 s{S_WI}, s{t2}, s{t3}\ns_cmp_lt_u32 s{S_JC}, 56\ns_cselect_b32 s{S_WI}, s{S_WI}, 0x200000')
        a += lines(f's_lshl_b32 s{t3}, s{S_W}, 13\ns_add_u32 m0, s{t3}, {L_WIN}')
        e(a)
        setup0, r0 = self.wsp_issue(0, 62)
        b = lines(f's_mov_b32 s4, 0xaaaaaaaa\ns_mov_b32 s5, 0xaaaaaaaa\ns_mov_b32 s6, 0xcccccccc\ns_mov_b32 s7, 0xcccccccc')
        b += lines(f'v_mul_u32_u24 v{AW}, 65, v5\nv_lshrrev_b32 v13, 3, v{V_LANE}\nv_lshl_add_u32 v{AW}, v13, 2, v{AW}\ns_lshl_b32 s{t2}, s{S_W}, 5\ns_add_u32 s{t2}, s{t2}, {L_WTR}\nv_add_u32 v{AW}, s{t2}, v{AW}')
        b += lines(f's_mul_i32 s{t2}, s{S_W}, 1040\ns_add_u32 s{t2}, s{t2}, {L_WTR}\nv_add_u32 v{AWR}, s{t2}, v{V_L16}\ns_mov_b32 s8, 0x05040100\ns_mov_b32 s9, 0x07060302')
        b += lines(f's_lshl_b32 s{t2}, s{t0}, 8\ns_lshl_b32 s{t3}, s{t1}, 7\ns_add_u32 s{t2}, s{t2}, s{t3}\ns_add_u32 s{t2}, s{t2}, {L_STAT}\nv_lshl_add_u32 v{AST}, v{V_J}, 3, s{t2}')
        b += lines(f'v_lshrrev_b32 v13, 2, v{V_J}\nv_cmp_eq_u32 vcc, v13, v{V_Q}\nv_lshlrev_b32 v13, 3, v0\nv_add_u32 v13, {L_STAT+512}, v13\nv_cndmask_b32 v{AST}, v13, v{AST}, vcc')
        b += lines(f'v_and_b32 v13, 1, v{V_Q}\nv_lshlrev_b32 v{ASR}, 8, v13\nv_lshl_add_u32 v{ASR}, v{V_J}, 3, v{ASR}\nv_add_u32 v{ASR}, {L_STAT}, v{ASR}')
        b += lines(f's_mul_i32 s{t2}, s{S_W}, 2304\ns_add_u32 s{t2}, s{t2}, {L_BNC}\nv_lshrrev_b32 v13, 3, v{V_LANE}')
        b += lines(f'v_mul_u32_u24 v{AB2}, 144, v13\nv_add3_u32 v{AB2}, v{AB2}, v5, s{t2}\nv_mul_u32_u24 v{AG}, {KS}, v13\nv_add_u32 v{AG}, v{AG}, v5')
        b += lines(f'v_mul_u32_u24 v13, 144, v{V_J}\nv_lshl_add_u32 v13, v{V_Q}, 4, v13\ns_lshl_b32 s{t3}, s{t0}, 6\ns_add_u32 s{t2}, s{t2}, s{t3}\nv_add_u32 v{AB}, s{t2}, v13')
        b += lines(f's_xor_b32 s{S_WT}, s{t3}, 64\ns_sub_u32 s{S_WT}, s{S_WT}, s{t3}\nv_add_u32 v{AB+1}, s{S_WT}, v{AB}')
        b += lines(f's_lshl_b32 s{t2}, s{S_W}, 7\ns_add_u32 s{t2}, s{t2}, {L_RS}\nv_and_b32 v13, 31, v{V_LANE}\nv_lshl_add_u32 v{ARW}, v13, 2, s{t2}')
        b += lines(f's_add_u32 s{t2}, s{t2}, s{t3}\nv_lshl_add_u32 v{ARR}, v{V_Q}, 4, s{t2}\nv_xor_b32 v{ARR+1}, 64, v{ARR}')
        b += lines(f's_bfe_u32 s{S_WT}, s{S_RB}, 0x20001\ns_lshl_b32 s{S_WT}, s{S_WT}, 11\ns_lshr_b32 s{t2}, s{S_RB}, 5\ns_lshl_b32 s{t2}, s{t2}, 10\ns_add_u32 s{S_WT}, s{S_WT}, s{t2}')
        b += lines(f's_bfe_u32 s{t2}, s{S_RB}, 0x20003\ns_lshl_b32 s{t2}, s{t2}, 8\ns_add_u32 s{S_WT}, s{S_WT}, s{t2}\ns_and_b32 s{t2}, s{S_RB}, 1\ns_lshl_b32 s{t2}, s{t2}, 7\ns_add_u32 s{S_WT}, s{S_WT}, s{t2}')
        b += lines(f's_mul_i32 s{t3}, s{S_KB}, {64*KS}\ns_mul_i32 s{t2}, s{S_W}, {8*KS}\ns_add_u32 s{S_WT}, s{S_WT}, s{t3}\ns_add_u32 s{S_WT}, s{S_WT}, s{t2}\ns_add_u32 s{S_WT}, s{S_WT}, {WS_WT}')
        b += lines(f's_add_u32 s{S_X1}, s{t3}, s{t2}\ns_add_u32 s{S_X1}, s{S_X1}, s{t2}\ns_lshl_b32 s{t3}, s{S_RB}, 7\ns_add_u32 s{S_X1}, s{S_X1}, s{t3}\ns_add_u32 s{S_X1}, s{S_X1}, {WS_X1T}')
        b += [lines(f's_lshl_b32 s{t2}, s{S_KB}, 13\ns_add_u32 s{t2}, s{t2}, {WS_SIG}\ns_cmp_eq_u32 s{S_W}, 0\ns_cselect_b32 s{S_SG}, s{t2}, {WS_MEAN}\ns_cselect_b32 s{S_MN}, -1, 0\ns_add_u32 s{S_SG}, s{S_SG}, s{t3}')]
        b += [lines(f's_lshl_b32 s{t2}, s{S_KB}, 2\ns_add_u32 s{t2}, s{t2}, s{S_W}\ns_cmp_eq_u32 s{t2}, 1\ns_cselect_b32 s{S_MN}, -1, s{S_MN}')]
        b += srd(SWSP, 2048*4096)
        if self.map5 == 'B': b += lines(f's_and_b32 s{S_TB}, s2, 31\ns_lshr_b32 s{S_FB}, s2, 5')
        else: b += lines(f's_and_b32 s{S_FB}, s2, 1\ns_lshl_b32 s{S_FB}, s{S_FB}, 2\ns_or_b32 s{S_FB}, s{S_FB}, s{S_KB}\ns_bfe_u32 s{S_TB}, s2, 0x20001\ns_lshl_b32 s{S_TB}, s{S_TB}, 3\ns_lshr_b32 s{t2}, s2, 5\ns_or_b32 s{S_TB}, s{S_TB}, s{t2}')
        b += lines(f'v_and_b32 v{SG}, 1, v{KI}\nv_lshlrev_b32 v{SG}, 31, v{SG}\nv_mov_b32 v{FS}, {f32(1/16)}\nv_mov_b32 v13, {f32(1/math.sqrt(512))}\nv_cmp_eq_u32 vcc, 0x100, v{KI}')
        b += lines(f's_lshl_b32 s{t2}, s{t1}, 31\nv_and_b32 v12, s{t2}, v{SG}\nv_cndmask_b32 v{FS}, v{FS}, v13, vcc\nv_or_b32 v{SG}, 1.0, v{SG}\nv_xor_b32 v{FS}, v{FS}, v12')
        win = [[f'buffer_load_dwordx4 v9, {sr(SWIN,4)}, s{S_WI} offen{self.nt} lds'] + ([f's_add_u32 m0, m0, 1024', f's_add_u32 s{S_WI}, s{S_WI}, {16*3584}'] if i < 7 else []) for i in range(8)]
        self.ts('gen done'); self.ts('gen done', 'p1')
        NW = self.opt.get('nw', 4)
        e(win[:NW])
        e(('wvm', 'x')); e('s_barrier')
        self.ts('x landed'); self.ts('x landed', 'p1')
        order = [(u, 0) for u in range(8)] + [(u, 1) for u in range(8)] + [(u, tp) for u in range(8, 16) for tp in range(2)]
        LA = 6
        def rd(n):
            u, tp = order[n]
            return [f'ds_read_b128 {vr(XF+4*(n%8),4)}, v{AX+tp*2+(u>>3)} offset:{(u&7)*64}', ('mark', f'x{n}')]
        acc = lambda tp, c, hp: ACC + ((tp*2 + c)*2 + hp)*4
        for n in range(LA): e(rd(n))
        R0, RS = 40, 32
        R0S = self.opt.get('r0s', [9, 11, 13, 15, 17, 19, 21, 23])
        mm = []
        for n, (u, tp) in enumerate(order):
            xf = vr(XF+4*(n%8), 4)
            grp = [f'{MF} {vr(acc(tp,c,u>>3),4)}, {xf}, {vr(FD+8*(u&7)+4*c,4)}, {vr(acc(tp,c,u>>3),4) if u & 7 else 0}' for c in range(2)]
            if n < 8: grp += [f'{MF} {vr(SQ,4)}, {xf}, {xf}, {vr(SQ,4) if n else 0}', f'{MF} {vr(SUM,4)}, {xf}, {vr(ONES,4)}, {vr(SUM,4) if n else 0}']
            grp = [[x] for x in grp]
            grp[0] = [('wlg', f'x{n}')] + grp[0]
            if n + LA < 32: grp[-1] += rd(n + LA)
            if n < 8 - NW: grp[1] += win[NW + n]
            if n in R0S: grp[0] += (setup0 if n == R0S[0] else []) + r0[R0S.index(n)]
            mm += grp
        e(spread(mm[:34], b))
        f1 = [('wvm', 'xw')]
        for i in range(8): f1 += [f'v_perm_b32 v{WR+i}, v{WI+4+i//2}, v{WI+i//2}, s{8+(i&1)}', f'ds_write_b32 v{AW}, v{WR+i} offset:{128*i}']
        f1 += pick4(R0, SUM, R0+2) + pick4(R0+1, SQ, R0+2) + [f'ds_write_b64 v{AST}, {vr(R0,2)}', ('mark', 'stw')]
        self.ts('step 8', 'p1')
        e(spread(mm[34:44], f1))
        self.ts('step 13', 'p1')
        e(mm[44:48])
        e([('wlg', 'stw'), 's_barrier', f'ds_read_b64 {vr(R0,2)}, v{ASR}', f'ds_read_b64 {vr(R0+2,2)}, v{ASR} offset:128', ('mark', 'str'),
           f'ds_read_b128 {vr(WR,4)}, v{AWR}', f'ds_read_b128 {vr(WR+4,4)}, v{AWR} offset:{4*1040}', ('mark', 'wtr')])
        self.ts('bar', 'p1')
        e(mm[48:54])
        f2 = [('wlg', 'str')] + lines(f'v_add_f32 v{R0}, v{R0}, v{R0+2}\nv_add_f32 v{R0+2}, v{R0+1}, v{R0+3}\nv_mul_f32 v{R0}, {f32(1/512)}, v{R0}\nv_mul_f32 v{R0+2}, {f32(1/512)}, v{R0+2}')
        f2 += lines(f'v_fma_f32 v{R0+2}, -v{R0}, v{R0}, v{R0+2}\nv_max_f32 v{R0+2}, 0, v{R0+2}\nv_add_f32 v{R0+2}, {f32(1e-5)}, v{R0+2}\nv_rsq_f32 v{R0+1}, v{R0+2}\nv_sqrt_f32 v{R0+3}, v{R0+2}')
        f2 += [f'ds_write_b32 v{ARW}, v{R0+1}', ('mark', 'rsw'), [f's_cmp_eq_u32 s{S_W}, 0', 's_cselect_b64 vcc, -1, 0'], f's_add_u32 s{t2}, s{S_WT}, {32*KS}', ('wlg', 'wtr'),
               f'buffer_store_dwordx4 {vr(WR,4)}, v{AG}, {WSr}, s{S_WT} offen sc1', f'v_cndmask_b32 v{R0}, v{R0}, v{R0+3}, vcc', f'v_lshlrev_b32 v{R0+4}, 2, v{V_LANE}',
               f'buffer_store_dwordx4 {vr(WR+4,4)}, v{AG}, {WSr}, s{t2} offen sc1',
               [('wlg', 'rsw'), f'ds_read_b128 {vr(RS,4)}, v{ARR}', f'ds_read_b128 {vr(RS+4,4)}, v{ARR+1}', ('mark', 'rsr')],
               [f's_mov_b32 exec_lo, s{S_MN}', 's_mov_b32 exec_hi, 0', f'buffer_store_dword v{R0}, v{R0+4}, {WSr}, s{S_SG} offen sc1', 's_mov_b64 exec, -1', self.uncount()]]
        e(spread(mm[54:70], f2))
        f3 = [f's_add_u32 s{t1}, s{S_X1}, {8*KS}', ('wlg', 'rsr')] + [f'v_mul_f32 v{RS+i}, v{RS+i}, v{FS}' for i in range(8)]
        self.ts('step 26', 'p1')
        e(mm[70:74]); e(spread(mm[74:], f3))
        self.ts('mfma', 'p1')
        for tp in range(2):
            for c in range(2):
                for h in (0, 2):
                    lo, hi = vr(acc(tp,c,0)+h, 2), vr(acc(tp,c,1)+h, 2)
                    e(f'v_pk_fma_f32 {lo}, {hi}, {vr(SG,2)}, {lo} op_sel_hi:[1,0,1]')
            for c in range(2):
                for h in (0, 2):
                    lo = vr(acc(tp,c,0)+h, 2)
                    e(f'v_pk_mul_f32 {lo}, {lo}, {vr(RS+4*tp+h,2)}')
            for r in range(4): e(f'v_cvt_pk_bf16_f32 v{XF+tp*4+r}, v{acc(tp,0,0)+r}, v{acc(tp,1,0)+r}')
            e(f'ds_write_b128 v{AB+tp}, {vr(XF+tp*4,4)}')
        e('s_waitcnt lgkmcnt(0)')
        e(f'ds_read_b128 {vr(XF+8,4)}, v{AB2}\nds_read_b128 {vr(XF+12,4)}, v{AB2} offset:{8*144}')
        e(f's_waitcnt lgkmcnt(1)\nbuffer_store_dwordx4 {vr(XF+8,4)}, v{AG}, {WSr}, s{S_X1} offen sc1')
        e(f's_waitcnt lgkmcnt(0)\nbuffer_store_dwordx4 {vr(XF+12,4)}, v{AG}, {WSr}, s{t1} offen sc1')
        e(('mark', 'x1st'))
        self.ts('X1 stored'); self.ts('X1 stored', 'p1')
        r0 = r0[len(R0S):]
        e(r0[:4])
        A0, S_W2, NYF = 184, 56, 186
        e(f's_mul_i32 s{S_TAG}, s{S_TAG}, 0x9e3779b1\ns_add_u32 s{S_TAG}, s{S_TAG}, 0x7f4a7c15')
        if self.prof and not self.opt.get('fine'): e(f's_mov_b32 s{S_TS}, s60')
        e(srd(SBSP, 4096) + srd(SWOUT, 896*1024) + srd(SOUT, 2097152))
        e(f'v_bfe_u32 v8, v{V_LANE}, 2, 2\nv_lshl_add_u32 v8, v{V_Q}, 3, v8\nv_lshlrev_b32 v8, 6, v8')
        e(f'v_and_b32 v9, 1, v{V_Q}\nv_lshl_add_u32 v8, v9, 5, v8\nv_and_b32 v9, 3, v{V_LANE}\nv_lshl_add_u32 v8, v9, 3, v8')
        e(f'v_add_u32 v{A0}, {L_WIN}, v8\nv_xor_b32 v{A0+1}, 32, v8\nv_add_u32 v{A0+1}, {L_WIN}, v{A0+1}')
        e(f's_mul_i32 s{t0}, s{S_W}, 16640\ns_add_u32 s{t0}, s{t0}, {L_STG}\nv_mul_u32_u24 v{V_STG}, 1040, v{V_J}\nv_lshl_add_u32 v{V_STG}, v{V_Q}, 4, v{V_STG}\nv_add_u32 v{V_STG}, s{t0}, v{V_STG}')
        e(f's_lshl_b32 s{t1}, s{S_KB}, 2\ns_add_u32 s{t1}, s{t1}, s{S_W}\ns_cmp_eq_u32 s{t1}, 15\ns_cselect_b32 s{t2}, 3, 4\nv_mov_b32 v{NYF}, 1.0\nv_mov_b32 v9, {f32(1/math.sqrt(2))}\nv_cmp_eq_u32 vcc, s{t2}, v{V_Q}')
        e(f's_lshl_b32 s{S_W2}, s{S_JC}, 15\ns_lshl_b32 s{t1}, s{t1}, 10\ns_add_u32 s{S_W2}, s{S_W2}, s{t1}\nv_cndmask_b32 v{NYF}, v{NYF}, v9, vcc')
        e(f's_add_u32 s{S_W2}, s{S_W2}, {WS_W2F}\ns_cmp_lt_u32 s{S_JC}, 56\ns_cselect_b32 s{S_W2}, s{S_W2}, {WS_SIZE}\ns_add_u32 s{S_W2+1}, s{S_W2}, 16384')
        consts = self.p2_consts()
        npre = self.opt.get('cpre', 110)
        e(spread(consts[:npre], r0[4:], 0, 60))
        self.ts('pre drain', 'p1')
        e(('wvm', 'x1st'))
        self.ts('drained'); self.ts('drained', 'p1'); self.ts('drained', 'w')
        e('s_barrier')
        self.flag_write(F1)
        setup, pieces = self.wsp_issue(1)
        rd0 = self.wsp_read(0)
        order = [(u, n) for u in range(16) for n in range(2)]
        def rdb(i):
            u, n = order[i]
            return [f'ds_read_b64_tr_b16 {vr(XF+4*(i%6),2)}, v{A0+n} offset:{u*2048}',
                    f'ds_read_b64_tr_b16 {vr(XF+4*(i%6)+2,2)}, v{A0+n} offset:{u*2048+256}', ('mark', f'b{i}')]
        accb = lambda c, n, half: ACC + ((c*2 + n)*2 + half)*4
        for i in range(4): e(rdb(i))
        main = []
        for i, (u, n) in enumerate(order):
            nx = rdb(i + 4) if i + 4 < 32 else [[], []]
            for c in range(2):
                A = vr(accb(c, n, u >> 3), 4)
                m = [f'{MF} {A}, {vr(FD+8*(u&7)+4*c,4)}, {vr(XF+4*(i%6),4)}, {A if u & 7 else 0}']
                if c == 0: m = [('wlg', f'b{i}')] + m
                else: m += nx
                main.append(m)
        k0 = self.opt.get('k0', 8)
        rest = consts[npre:]
        e(spread(main[:k0], rest[:2*k0])); e(('wvm', 'wsp0')); e(spread(main[k0:k0+16], rd0)); e(('mark', 'rd0'))
        e(spread(main[k0+16:k0+22], rest[2*k0:2*k0+12])); e(('wlg', 'rd0')); e(setup0_free(setup))
        e(spread(main[k0+22:], self.zip2(pieces, [rest[2*k0+12+5*i:2*k0+17+5*i] for i in range(16)]) + rest[2*k0+92:]))
        for n in range(2):
            for c in range(2):
                for h in (0, 2):
                    lo, hi = vr(accb(c,n,0)+h, 2), vr(accb(c,n,1)+h, 2)
                    e(f'v_pk_add_f32 {lo}, {lo}, {hi} neg_lo:[0,1]')
            e(f'v_mul_f32 v{accb(0,n,0)+3}, v{accb(0,n,0)+3}, v{NYF}')
            for c in range(2):
                for h in range(2): e(f'v_cvt_pk_bf16_f32 v{XF+n*4+c*2+h}, v{accb(c,n,0)+2*h}, v{accb(c,n,0)+2*h+1}')
            e(f'buffer_store_dwordx4 {vr(XF+n*4,4)}, v{V_L16}, {WSr}, s{S_W2+n} offen sc1')
        e(('mark', 'w2st'))
        self.ts('W2 stored'); self.ts('W2 stored', 'p1'); self.ts('W2 stored', 'w')

    BRE, BIM, GC, GS, GN = 8, 24, 40, 48, 56
    TC1, TS1, TC2, TS2, IDR, IDI = 188, 196, 204, 212, 220, 224
    P2A = 248
    P2B = (244, 245, 246, 247, 187)
    def p2_consts(self):
        BRE, BIM, GC, GS, GN, TC1, TS1, TC2, TS2, IDR, IDI = (self.BRE, self.BIM, self.GC, self.GS, self.GN, self.TC1, self.TS1, self.TC2, self.TS2, self.IDR, self.IDI)
        T = 228; S_16W = 61
        AWr, AR = self.P2A, self.P2A + 2
        g = lines(f's_lshl_b32 s{S_16W}, s{S_W}, 4\nv_add_u32 v{T}, s{S_16W}, v{V_J}\nv_cvt_f32_u32 v{T}, v{T}')
        g += lines(f'v_lshlrev_b32 v{T+1}, 2, v{V_Q}\nv_cvt_f32_u32 v{T+1}, v{T+1}\nv_mul_f32 v{T+2}, {f32(1/2048)}, v{T}\nv_mul_f32 v{T+3}, v{T+2}, v{T+1}')
        for i in range(8): g.append(f'v_fmamk_f32 v{TC1+i}, v{T+2}, {f32(16*(i>>2)+(i&3))}, v{T+3}')
        for i in range(8): g += [f'v_sin_f32 v{TS1+i}, v{TC1+i}', f'v_cos_f32 v{TC1+i}, v{TC1+i}']
        g += lines(f'v_cvt_f32_u32 v{T+4}, v{V_J}\nv_cvt_f32_u32 v{T+5}, s{S_16W}\nv_add_f32 v{T+5}, v{T+5}, v{T+1}')
        for t in range(2):
            g += lines(f'v_add_f32 v{T+2}, {f32(16.0*t)}, v{T+4}\nv_mul_f32 v{T+2}, {f32(1/2048)}, v{T+2}\nv_mul_f32 v{T+3}, v{T+2}, v{T+5}')
            for r in range(4): g.append(f'v_fmamk_f32 v{TC2+4*t+r}, v{T+2}, {f32(r)}, v{T+3}')
        for i in range(8): g += [f'v_sin_f32 v{TS2+i}, v{TC2+i}', f'v_cos_f32 v{TC2+i}, v{TC2+i}']
        g.append(f'v_mov_b32 v{T+2}, {f32(1/2048)}')
        for i in range(0, 16, 2): g.append(f'v_pk_mul_f32 {vr(TC2+i,2)}, {vr(TC2+i,2)}, {vr(T+2,2)} op_sel_hi:[1,0]')
        g += lines(f'v_lshlrev_b32 v{T+6}, 2, v{V_Q}\nv_sub_u32 v{T+6}, v{V_J}, v{T+6}\nv_mov_b32 v{T+7}, 0x3f80')
        for i in range(4):
            g += [f'v_cmp_eq_u32 vcc, {i}, v{T+6}', f'v_or_b32 v{T+8}, {4*i}, v{V_Q}', f'v_xor_b32 v{T+8}, v{T+8}, v{V_J}', f'v_cndmask_b32 v{IDR+i}, 0, v{T+7}, vcc',
                  f'v_lshlrev_b32 v{T+8}, 4, v{T+8}', f'v_lshlrev_b32 v{IDI+i}, 16, v{IDR+i}', f'v_lshl_add_u32 v{AR+i}, v{V_J}, 8, v{T+8}']
        for h in range(2):
            g += lines(f'v_lshl_add_u32 v{T+8}, s{S_W}, 3, v{V_Q}\nv_add_u32 v{T+8}, {4*h}, v{T+8}\nv_xor_b32 v{T+9}, v{T+8}, v{V_J}\nv_and_b32 v{T+9}, 15, v{T+9}')
            g += lines(f'v_lshlrev_b32 v{T+9}, 4, v{T+9}\nv_lshl_add_u32 v{AWr+h}, v{T+8}, 8, v{T+9}')
        g += lines(f'v_mul_f32 v{T+2}, {f32(1/64)}, v{T}\nv_mul_f32 v{T+3}, v{T+2}, v{T+1}\nv_and_b32 v{T+6}, 1, v{V_J}\nv_mul_u32_u24 v{T+6}, 0x8000, v{T+6}\nv_lshl_or_b32 v{T+6}, v{T+6}, 16, v{T+6}')
        for u in range(2):
            for i in range(4): g.append(f'v_fmamk_f32 v{T+8+i}, v{T+2}, {f32(16*u+i)}, v{T+3}')
            for i in range(4): g += [f'v_sin_f32 v{T+12+i}, v{T+8+i}', f'v_cos_f32 v{T+8+i}, v{T+8+i}']
            for i in range(4):
                g += [f'v_cvt_pk_bf16_f32 v{BRE+4*u+i}, v{T+8+i}, v{T+12+i}', f'v_cvt_pk_bf16_f32 v{BIM+4*u+i}, -v{T+12+i}, v{T+8+i}']
        g += [f'v_xor_b32 v{b+8+i}, v{b+i}, v{T+6}' for b in (BRE, BIM) for i in range(8)]
        g += lines(f'v_mul_f32 v{T+2}, {f32(1/32)}, v{T+4}\nv_mul_f32 v{T+3}, v{T+2}, v{T+1}')
        for i in range(4): g.append(f'v_fmamk_f32 v{T+8+i}, v{T+2}, {f32(i)}, v{T+3}')
        for i in range(4): g += [f'v_sin_f32 v{T+12+i}, v{T+8+i}', f'v_cos_f32 v{T+8+i}, v{T+8+i}']
        for i in range(2):
            g += [f'v_cvt_pk_bf16_f32 v{GC+i}, v{T+8+2*i}, v{T+9+2*i}', f'v_cvt_pk_bf16_f32 v{GS+i}, v{T+12+2*i}, v{T+13+2*i}',
                  f'v_cvt_pk_bf16_f32 v{GN+i}, -v{T+12+2*i}, -v{T+13+2*i}']
        g += [f'v_xor_b32 v{b+2+i}, v{b+i}, v{T+6}' for b in (GC, GS, GN) for i in range(2)]
        g += [f'v_xor_b32 v{b+4+i}, 0x80000000, v{b+i}' for b in (GC, GS, GN) for i in range(4)]
        AP, AOa, ASg, AEX, AOB = self.P2B
        S_X, S_WT, S_SG, S_HT, S_NY = 12, 13, 14, 15, 16
        a = lines(f's_lshr_b32 s{t1}, s2, 6\ns_lshl_b32 s{t2}, s{t1}, 3')
        a += lines(f'v_and_b32 v{AP}, 7, v{V_LANE}\nv_lshrrev_b32 v{T}, 3, v{V_LANE}\nv_lshl_add_u32 v{AP}, v{T}, 5, v{AP}\nv_add_u32 v{AP}, s{t2}, v{AP}')
        a += lines(f'v_lshlrev_b32 v{AP}, 7, v{AP}\nv_add_u32 v{AP}, {F1}, v{AP}')
        a += lines(f's_lshl_b32 s{t2}, s{S_W}, 2\nv_or_b32 v{T}, s{t2}, v{V_Q}\nv_xor_b32 v{T}, v{T}, v{V_J}\nv_lshlrev_b32 v{T}, 4, v{T}\nv_lshl_add_u32 v{AOa}, v{V_J}, 8, v{T}')
        a += lines(f's_mul_i32 s{S_HT}, s2, {KS}\ns_lshl_b32 s{t2}, s{S_W}, 11\ns_add_u32 s{S_X}, s{S_HT}, s{t2}\ns_add_u32 s{S_WT}, s{S_X}, {WS_WT}\ns_add_u32 s{S_X}, s{S_X}, {WS_X1T}')
        a += lines(f's_lshl_b32 s{S_SG}, s{t1}, 13\ns_lshl_b32 s{t1}, s{S_W}, 6\ns_add_u32 s{S_SG}, s{S_SG}, s{t1}\ns_add_u32 s{S_SG}, s{S_SG}, {WS_SIG}\ns_add_u32 s{S_SG+3}, s{S_SG}, 4096')
        a += lines(f's_lshl_b32 s{S_HT}, s2, 9\ns_lshl_b32 s{t1}, s{S_W}, 19\ns_add_u32 s{S_HT}, s{S_HT}, s{t1}\ns_add_u32 s{S_HT}, s{S_HT}, {WS_HT}\ns_lshl_b32 s{t1}, s{S_W}, 10')
        a += lines(f'v_lshlrev_b32 v5, 17, v{V_Q}\nv_lshl_add_u32 v5, v{V_J}, 4, v5')
        a += [lines(f's_cmp_eq_u32 s2, 255\ns_cselect_b32 s{S_NY}, 0, -1')]
        a += lines(f'v_lshlrev_b32 v{ASg}, 10, v{V_Q}\nv_lshl_add_u32 v{ASg}, v{V_J}, 2, v{ASg}\nv_add_u32 v{AEX}, s{t1}, v{V_L16}')
        a += lines(f'v_lshlrev_b32 v{AOB}, 6, v{V_J}\nv_lshl_add_u32 v{AOB}, v{V_Q}, 3, v{AOB}\nv_add_u32 v{AOB}, s{t1}, v{AOB}')
        return g + a

    def p2(self):
        e = self.e
        BRE, BIM, GC, GS, GN, TC1, TS1, TC2, TS2, IDR, IDI = (self.BRE, self.BIM, self.GC, self.GS, self.GN, self.TC1, self.TS1, self.TC2, self.TS2, self.IDR, self.IDI)
        XR, WT, SG, AF, AO, D0, D1, XD = 64, 72, 80, 96, 128, 136, 152, 168
        AWr, AR = self.P2A, self.P2A + 2
        AP, AOa, ASg, AEX, AOB = self.P2B
        S_X, S_WT, S_SG, S_HT, S_NY = 12, 13, 14, 15, 16
        setup, pc = self.wsp_issue(2)
        L = e.label_name('np')
        e(f's_cmp_eq_u32 s{S_W}, 0\ns_cbranch_scc0 {L}')
        nv = e.nvm; self.poll(AP); e.nvm = nv
        e(f'{L}:'); e(('wvm', 'w2st')); self.ts('polled', 'w'); e('s_barrier')
        self.ts('F1 seen'); self.ts('F1 seen', 'p2')
        e(f'buffer_load_dwordx4 {vr(XR,4)}, v{V_L16}, {WSr}, s{S_X} offen sc1')
        e(f'buffer_load_dwordx4 {vr(XR+4,4)}, v{V_L16}, {WSr}, s{S_X} offen offset:1024 sc1')
        e(('mark', 'x1'))
        e(f'buffer_load_dwordx4 {vr(WT,4)}, v{V_L16}, {WSr}, s{S_WT} offen sc1')
        e(f'buffer_load_dwordx4 {vr(WT+4,4)}, v{V_L16}, {WSr}, s{S_WT} offen offset:1024 sc1')
        e(('mark', 'wt'))
        for t in range(2):
            for r in range(4):
                e(f'buffer_load_dword v{SG+4*t+r}, v{ASg}, {WSr}, s{S_SG+3*t} offen offset:{256*r} sc1')
        e(('mark', 'sg'))
        self.flag_write(F1B)
        e(('wvm', 'wsp1')); e(spread(self.p4_ids(93, 255, 94), self.wsp_read(1)))
        e(setup)
        self.ts('pre x1', 'p2')
        e(('wvm', 'x1'))
        self.ts('X1 landed'); self.ts('X1 landed', 'p2')
        e(f'ds_write_b128 v{AWr}, {vr(XR,4)} offset:{L_X1C}\nds_write_b128 v{AWr+1}, {vr(XR+4,4)} offset:{L_X1C}')
        e('s_waitcnt lgkmcnt(0)\ns_barrier')
        for u in range(4):
            for t in range(2):
                e(f'ds_read_b128 {vr(AF+(t*4+u)*4,4)}, v{AR+u} offset:{L_X1C+4096*t}'); e(('mark', f'a{t}{u}'))
        for t in range(2): e(f'ds_read_b128 {vr(AO+4*t,4)}, v{AOa} offset:{L_X1C+4096*t}')
        self.ts('bar1', 'p2')
        pc = [pc[0] + pc[1], pc[2] + pc[3]] + pc[4:14] + [pc[14] + pc[15] + [f'buffer_load_dword v94, v255, {WSr}, 0 offen sc1', ('mark', 'f1b')]] + [[]]*8
        e(pc[0]); e(pc[1])
        dre = lambda base, t: base + 8*t
        dim = lambda base, t: base + 8*t + 4
        for u in range(4):
            for t in range(2):
                e(('wlg', f'a{t}{u}'))
                e(f'{MF} {vr(dre(D0,t),4)}, {vr(AF+(t*4+u)*4,4)}, {vr(BRE+4*u,4)}, {vr(dre(D0,t),4) if u else 0}')
                e(f'{MF} {vr(dim(D0,t),4)}, {vr(AF+(t*4+u)*4,4)}, {vr(BIM+4*u,4)}, {vr(dim(D0,t),4) if u else 0}')
            e(pc[2+u])
        e('s_waitcnt lgkmcnt(0)')
        for t in range(2):
            e(f'{MF} {vr(dre(XD,t),4)}, {vr(AO+4*t,4)}, {vr(IDR,4)}, 0\n{MF} {vr(dim(XD,t),4)}, {vr(AO+4*t,4)}, {vr(IDI,4)}, 0')
        e(pc[6])
        self.ts('s1', 'p2')
        def cmul(src, dst, c, s, conj):
            n1 = 'neg_lo:[1,0,0] neg_hi:[1,0,0]'
            for t in range(2):
                for h in range(0, 4, 2):
                    re, im, o_re, o_im = dre(src,t)+h, dim(src,t)+h, dre(dst,t)+h, dim(dst,t)+h
                    cc, ss = vr(c+4*t+h,2), vr(s+4*t+h,2)
                    e(f'v_pk_mul_f32 {vr(o_re,2)}, {vr(re,2)}, {cc}\nv_pk_mul_f32 {vr(o_im,2)}, {vr(im,2)}, {cc}')
                    e(f'v_pk_fma_f32 {vr(o_re,2)}, {vr(im,2)}, {ss}, {vr(o_re,2)} {n1 if conj else ""}')
                    e(f'v_pk_fma_f32 {vr(o_im,2)}, {vr(re,2)}, {ss}, {vr(o_im,2)} {"" if conj else n1}')
        FR, FI = AF, AF+4
        def pack_rows(src):
            for t in range(2):
                for h in range(2):
                    e(f'v_cvt_pk_bf16_f32 v{FR+2*t+h}, v{dre(src,t)+2*h}, v{dre(src,t)+2*h+1}')
                    e(f'v_cvt_pk_bf16_f32 v{FI+2*t+h}, v{dim(src,t)+2*h}, v{dim(src,t)+2*h+1}')
        cmul(D0, D1, TC1, TS1, False); pack_rows(D1)
        self.ts('tw1', 'p2')
        e(pc[7])
        for m in range(2):
            e(f'{MF} {vr(dre(D0,m),4)}, {vr(GC+4*m,4)}, {vr(FR,4)}, 0\n{MF} {vr(dim(D0,m),4)}, {vr(GC+4*m,4)}, {vr(FI,4)}, 0')
        e(pc[8])
        for m in range(2):
            e(f'{MF} {vr(dre(D0,m),4)}, {vr(GS+4*m,4)}, {vr(FI,4)}, {vr(dre(D0,m),4)}\n{MF} {vr(dim(D0,m),4)}, {vr(GN+4*m,4)}, {vr(FR,4)}, {vr(dim(D0,m),4)}')
        self.ts('s2', 'p2')
        e(('wvm', 'wt'))
        for i in range(8): e(f'v_lshlrev_b32 v{XR+i}, 16, v{WT+i}\nv_and_b32 v{WT+i}, 0xffff0000, v{WT+i}')
        cmul(D0, D1, XR, WT, True); pack_rows(D1)
        self.ts('filt', 'p2')
        e(pc[9])
        for t in range(2):
            e(f'{MF} {vr(dre(D0,t),4)}, {vr(FR,4)}, {vr(GC+4*t,4)}, 0\n{MF} {vr(dim(D0,t),4)}, {vr(FI,4)}, {vr(GC+4*t,4)}, 0')
        e(pc[10])
        for t in range(2):
            e(f'{MF} {vr(dre(D0,t),4)}, {vr(FI,4)}, {vr(GN+4*t,4)}, {vr(dre(D0,t),4)}\n{MF} {vr(dim(D0,t),4)}, {vr(FR,4)}, {vr(GS+4*t,4)}, {vr(dim(D0,t),4)}')
        self.ts('s3', 'p2')
        e(('wvm', 'sg'))
        for t in range(2):
            for h in range(0, 4, 2):
                e(f'v_pk_mul_f32 {vr(dre(XD,t)+h,2)}, {vr(dre(XD,t)+h,2)}, {vr(SG+4*t+h,2)}')
                e(f'v_pk_mul_f32 {vr(dim(XD,t)+h,2)}, {vr(dim(XD,t)+h,2)}, {vr(SG+4*t+h,2)} neg_lo:[1,0] neg_hi:[1,0]')
        cmul(D0, D1, TC2, TS2, True)
        for t in range(2):
            for r in range(4): e(f'v_cvt_pk_bf16_f32 v{AO+4*t+r}, v{dre(D1,t)+r}, -v{dim(D1,t)+r}')
            e(f'ds_write_b128 v{AEX}, {vr(AO+4*t,4)} offset:{L_EX+4096*t}')
        self.ts('tw2', 'p2')
        e(pc[11])
        e('s_waitcnt lgkmcnt(0)\ns_barrier')
        for u in range(4):
            for t in range(2):
                e(f'ds_read_b128 {vr(AF+(t*4+u)*4,4)}, v{V_L16} offset:{L_EX+4096*t+1024*u}'); e(('mark', f'a{t}{u}'))
        self.ts('bar2', 'p2')
        e(pc[12])
        for u in range(4):
            for t in range(2):
                e(('wlg', f'a{t}{u}'))
                e(f'{MF} {vr(dre(XD,t),4)}, {vr(AF+(t*4+u)*4,4)}, {vr(BRE+4*u,4)}, {vr(dre(XD,t),4)}')
                e(f'{MF} {vr(dim(XD,t),4)}, {vr(AF+(t*4+u)*4,4)}, {vr(BIM+4*u,4)}, {vr(dim(XD,t),4)}')
            if u < 3: e(pc[13+u])
        self.ts('s4', 'p2')
        for t in range(2):
            for c in range(2):
                src = XD + 8*t + 4*c; o = D0 + (t*2+c)*2; ng = '-' if c else ''
                e(f'v_cvt_pk_bf16_f32 v{o}, {ng}v{src}, {ng}v{src+1}\nv_cvt_pk_bf16_f32 v{o+1}, {ng}v{src+2}, {ng}v{src+3}')
                if c: e(f'v_and_b32 v{o}, s{S_NY}, v{o}\nv_and_b32 v{o+1}, s{S_NY}, v{o+1}')
                e(f'ds_write_b64 v{AOB}, {vr(o,2)} offset:{L_OB+4096*c+32*t}')
        e('s_waitcnt lgkmcnt(0)')
        e(f'ds_read_b128 {vr(D0+8,4)}, v{AEX} offset:{L_OB}\nds_read_b128 {vr(D0+12,4)}, v{AEX} offset:{L_OB+4096}')
        e(f's_waitcnt lgkmcnt(1)\nbuffer_store_dwordx4 {vr(D0+8,4)}, v5, {WSr}, s{S_HT} offen sc1')
        e(f's_waitcnt lgkmcnt(0)\nbuffer_store_dwordx4 {vr(D0+12,4)}, v5, {WSr}, s{S_HT} offen offset:256 sc1')
        self.ts('HT stored'); self.ts('HT stored', 'p2'); self.ts('HT stored', 'w')
        e(('mark', 'htst'))
        e(('wvm', 'f1b')); self.check_or_poll(94, 255)
        self.ts('f1b ok', 'w')
        e(self.w2_dma(2)); e(spread(self.wsp_read(2), self.w2_dma(3)))
        self.ts('w2 23', 'w')
        e(('wvm', 'htst')); e('s_barrier')
        self.flag_write(F2)
        self.ts('F2'); self.ts('F2', 'p2'); self.ts('F2', 'w')

    GA = -2*math.sqrt(2/math.pi)*math.log2(math.e); GB = GA*0.044715
    V_KA, V_KB = 14, 30
    def gelu4(self, acc, scale, scale_pair, T):
        out = []; KA, KB = self.V_KA, self.V_KB
        for h in (0, 2):
            a = vr(acc+h, 2)
            out.append(f'v_pk_mul_f32 {a}, {a}, {vr(scale+h,2)}' if scale_pair else f'v_pk_mul_f32 {a}, {a}, {vr(scale,2)} op_sel_hi:[1,0]')
        for h in (0, 2): out.append(f'v_pk_mul_f32 {vr(T+h,2)}, {vr(acc+h,2)}, {vr(acc+h,2)}')
        for h in (0, 2): out.append(f'v_pk_fma_f32 {vr(T+h,2)}, {vr(T+h,2)}, {vr(KB,2)}, {vr(KA,2)} op_sel_hi:[1,0,0]')
        for h in (0, 2): out.append(f'v_pk_mul_f32 {vr(T+h,2)}, {vr(T+h,2)}, {vr(acc+h,2)}')
        for i in range(4): out.append(f'v_exp_f32 v{T+i}, v{T+i}')
        for h in (0, 2): out.append(f'v_pk_add_f32 {vr(T+h,2)}, {vr(T+h,2)}, 1.0 op_sel_hi:[1,0]')
        for i in range(4): out.append(f'v_rcp_f32 v{T+i}, v{T+i}')
        for h in (0, 2): out.append(f'v_pk_mul_f32 {vr(acc+h,2)}, {vr(acc+h,2)}, {vr(T+h,2)}')
        return out
    @staticmethod
    def zip2(a, b):
        out = []
        for i in range(max(len(a), len(b))): out += a[i:i+1] + b[i:i+1]
        return out

    S_P4, S_TL = 23, [8, 9, 10, 11, 20, 21, 22]
    def w2_dma(self, n):
        return [[f's_lshl_b32 s{t3}, s{S_W}, 12', f's_add_u32 m0, s{t3}, {L_W2+n*16384}', f's_add_u32 s{t3}, s{t3}, s{self.S_TL[n]}',
                 f'buffer_load_dwordx4 v{V_L16}, {WSr}, s{t3} offen sc1 lds']] + \
               [[f'buffer_load_dwordx4 v{V_L16}, {WSr}, s{t3} offen offset:{1024*i} sc1 lds'] for i in range(1, 4)]

    def p4_ids(self, va, vb, vc):
        S_P4, S_TL = self.S_P4, self.S_TL
        if self.map4 == 2:
            a = lines(f's_and_b32 s{S_RB4}, s2, 7\ns_lshl_b32 s{S_RB4}, s{S_RB4}, 1\ns_bfe_u32 s{t0}, s2, 0x10003\ns_or_b32 s{S_RB4}, s{S_RB4}, s{t0}\ns_lshr_b32 s{S_J4}, s2, 4')
        else:
            a = lines(f's_and_b32 s{S_RB4}, s2, 3\ns_lshl_b32 s{S_RB4}, s{S_RB4}, 2\ns_or_b32 s{S_RB4}, s{S_RB4}, s{S_KB}\ns_bfe_u32 s{S_J4}, s2, 0x10002\ns_lshl_b32 s{S_J4}, s{S_J4}, 3\ns_lshr_b32 s{t0}, s2, 5\ns_or_b32 s{S_J4}, s{S_J4}, s{t0}')
        a += lines(f's_and_b32 s{S_TB6}, s2, 31\ns_lshr_b32 s{S_DB}, s2, 5')
        a += lines(f's_lshr_b32 s{S_M4}, s{S_J4}, 1\ns_mul_i32 s{S_M4}, s{S_M4}, 7\ns_and_b32 s{S_P4}, s{S_J4}, 1\ns_lshl_b32 s{S_P4}, s{S_P4}, 2')
        a += lines(f's_add_u32 s{t0}, s{S_P4}, 56\ns_mul_i32 s{t1}, s{S_P4}, 14\ns_sub_u32 s{t1}, 56, s{t1}\ns_sub_u32 s{t2}, s{S_P4}, 4')
        a += lines(f'v_lshrrev_b32 v{va}, 2, v{V_LANE}\nv_min_u32 v{va}, 6, v{va}\nv_mov_b32 v{vb}, s{t2}\nv_mov_b32 v{vc}, s{t1}\nv_cmp_eq_u32 vcc, 3, v{va}\nv_cndmask_b32 v{vb}, v{vb}, v{vc}, vcc')
        a += lines(f'v_mov_b32 v{vc}, s{t0}\nv_cmp_gt_u32 vcc, 3, v{va}\nv_cndmask_b32 v{vb}, v{vb}, v{vc}, vcc\nv_add3_u32 v{va}, v{va}, v{vb}, s{S_M4}\nv_lshrrev_b32 v{va}, 1, v{va}')
        a += lines(f'v_and_b32 v{vb}, 7, v{va}\nv_lshrrev_b32 v{va}, 3, v{va}\nv_lshl_add_u32 v{vb}, v{vb}, 5, v{va}\nv_and_b32 v{va}, 3, v{V_LANE}\nv_lshl_add_u32 v{vb}, v{va}, 3, v{vb}')
        a += lines(f'v_lshlrev_b32 v{vb}, 7, v{vb}\nv_add_u32 v{vb}, {F1B}, v{vb}')
        for n, o in enumerate([t0, t0, t0, t1, t2, t2, t2]):
            a += lines(f's_add_u32 s{S_TL[n]}, s{S_M4}, s{o}\ns_add_u32 s{S_TL[n]}, s{S_TL[n]}, {n}\ns_lshl_b32 s{S_TL[n]}, s{S_TL[n]}, 14\ns_add_u32 s{S_TL[n]}, s{S_TL[n]}, {WS_W2F}')
        return a

    FI = 96
    def fdi_gen(self):
        T = 32; FI = self.FI
        g = lines(f's_lshl_b32 s{t0}, s{S_J4}, 5\nv_lshrrev_b32 v{T}, 2, v{V_J}\nv_lshlrev_b32 v{T}, 3, v{T}\nv_and_b32 v{T+1}, 3, v{V_J}\nv_add3_u32 v{T}, v{T}, v{T+1}, s{t0}')
        g += lines(f's_lshl_b32 s{t0}, s{S_W}, 6\ns_add_u32 s{t0}, s{t0}, 1\nv_lshl_add_u32 v{T+2}, v{V_Q}, 2, s{t0}\nv_cvt_f32_u32 v{T+2}, v{T+2}')
        g += lines(f'v_mov_b32 v{T+4}, 1.0\nv_mov_b32 v{T+5}, {f32(1/math.sqrt(2))}\nv_cmp_eq_u32 vcc, 0xf0, v0\nv_lshrrev_b32 v{T+6}, 4, v0\nv_cmp_eq_u32 vcc, 15, v{T+6}\nv_cndmask_b32 v{T+4}, v{T+4}, v{T+5}, vcc')
        for n in range(2):
            g += lines(f'v_add_u32 v{T+1}, {4*n}, v{T}\nv_cvt_f32_u32 v{T+1}, v{T+1}\nv_mul_f32 v{T+1}, {f32(1/512)}, v{T+1}\nv_mul_f32 v{T+3}, v{T+2}, v{T+1}\nv_fract_f32 v{T+3}, v{T+3}')
            for up in range(4):
                for r in range(4): g.append(f'v_fmamk_f32 v{T+8+r}, v{T+1}, {f32(16*up+r)}, v{T+3}')
                for r in range(4): g += [f'v_sin_f32 v{T+12+r}, v{T+8+r}', f'v_cos_f32 v{T+8+r}, v{T+8+r}']
                if up == 3: g.append(f'v_mul_f32 v{T+11}, v{T+11}, v{T+4}')
                o = FI + (up*2+n)*4
                g += [f'v_cvt_pk_bf16_f32 v{o}, v{T+8}, v{T+9}', f'v_cvt_pk_bf16_f32 v{o+1}, v{T+10}, v{T+11}',
                      f'v_cvt_pk_bf16_f32 v{o+2}, -v{T+12}, -v{T+13}', f'v_cvt_pk_bf16_f32 v{o+3}, -v{T+14}, -v{T+15}']
        return g

    def p4(self):
        e = self.e; S_P4 = self.S_P4
        AWr, AR, AB2, ADG = 20, 10, 12, 13
        S_H0 = 19
        a = lines(f's_lshl_b32 s{S_H0}, s{S_RB4}, 17\ns_lshl_b32 s{t1}, s{S_W}, 12\ns_add_u32 s{S_H0}, s{S_H0}, s{t1}\ns_add_u32 s{S_H0}, s{S_H0}, {WS_HT}\ns_mov_b32 s18, s{t1}')
        a += lines(f'v_and_b32 v16, 2, v{V_Q}\nv_lshlrev_b32 v16, 5, v16\nv_xor_b32 v{AWr}, v16, v{V_L16}')
        for i in range(1, 4): a.append(f'v_xor_b32 v{AWr+i}, {(4*(i&1) + (i>>1))*32}, v{AWr}')
        a += lines(f's_lshl_b32 s{t0}, s{S_W}, 10\ns_add_u32 s{t0}, s{t0}, {L_RING}')
        a += lines(f's_add_u32 s{t0}, s{t0}, {L_SM-L_RING}\nv_lshl_add_u32 v{ADG}, v{V_J}, 2, s{t0}\nv_lshrrev_b32 v16, 2, v{V_J}\nv_cmp_eq_u32 vcc, v16, v{V_Q}')
        a += lines(f's_add_u32 s{t0}, s{t0}, 512\nv_lshl_add_u32 v16, v{V_LANE}, 2, s{t0}\nv_cndmask_b32 v{ADG}, v16, v{ADG}, vcc')
        a += lines(f'v_bfe_u32 v16, v{V_LANE}, 2, 2\nv_and_b32 v17, 1, v{V_Q}\nv_lshl_add_u32 v17, v16, 1, v17\ns_lshl_b32 s{t0}, s{S_W}, 1\nv_xor_b32 v17, s{t0}, v17')
        a += lines(f'v_lshl_add_u32 v16, v{V_Q}, 2, v16\nv_lshlrev_b32 v16, 9, v16\nv_lshl_add_u32 v16, v17, 5, v16\nv_and_b32 v17, 3, v{V_LANE}\nv_lshl_add_u32 v16, v17, 3, v16')
        a += lines(f'v_add_u32 v{AR}, 0x10000, v16\nv_xor_b32 v{AR+1}, 32, v{AR}\nv_add_u32 v8, {L_RING-0x10000}, v{AR}\nv_add_u32 v9, {L_RING-0x10000}, v{AR+1}\nv_add_u32 v{AB2}, 0x10000, v{V_L16}')
        a += lines(f'v_mov_b32 v{self.V_KA}, {f32(self.GA)}\nv_mov_b32 v{self.V_KB}, {f32(self.GB)}')
        a += lines(f'v_lshrrev_b32 v16, 3, v{V_LANE}\nv_lshlrev_b32 v16, 5, v16\nv_and_b32 v17, 7, v{V_LANE}\ns_lshl_b32 s{t0}, s{S_W}, 3\nv_add3_u32 v16, v16, v17, s{t0}')
        a += lines(f'v_lshlrev_b32 v16, 7, v16\nv_add_u32 v15, {F2}, v16')
        a += lines(f'v_lshrrev_b32 v16, 3, v{V_J}\nv_lshlrev_b32 v16, 4, v16\nv_lshl_add_u32 v16, v{V_Q}, 2, v16\nv_bfe_u32 v17, v{V_J}, 2, 1\nv_lshl_add_u32 v16, v17, 1, v16')
        a += lines(f'v_and_b32 v17, 1, v{V_J}\nv_add_lshl_u32 v25, v16, v17, 4')
        a += lines(f'v_and_b32 v16, 31, v{V_LANE}\nv_lshlrev_b32 v16, 4, v16\nv_lshrrev_b32 v17, 5, v{V_LANE}\nv_lshl_add_u32 v24, v17, 11, v16')
        S_ST = 12
        a += lines(f's_lshl_b32 s{S_ST}, s{S_RB4}, 15\ns_lshl_b32 s{t1}, s{S_W}, 9\ns_add_u32 s{S_ST}, s{S_ST}, s{t1}\ns_add_u32 s{S_ST}, s{S_ST}, {WS_STAT}')
        a += lines(f's_lshl_b32 s{t1}, s{S_J4}, 11\ns_add_u32 s{S_ST+1}, s{t1}, s{S_ST}')
        e(spread(a[:40], self.w2_dma(0) + self.w2_dma(1)))
        self.ts('w2 01', 'w')
        e(f'v_and_b32 v19, 7, v{V_J}\nv_mul_u32_u24 v19, 1040, v19\nv_lshrrev_b32 v18, 3, v{V_J}\nv_lshl_add_u32 v19, v18, 9, v19\nv_lshl_add_u32 v19, v{V_Q}, 4, v19')
        e(f's_mul_i32 s62, s{S_W}, 8320\nv_add_u32 v31, s62, v19\nv_add_u32 v29, {L_RING}, v31\nv_lshrrev_b32 v19, 5, v{V_LANE}\nv_lshlrev_b32 v19, 15, v19\nv_and_b32 v18, 31, v{V_LANE}\nv_lshl_add_u32 v5, v18, 4, v19')
        setup, pc = self.wsph_issue(0, 5); e('s_waitcnt lgkmcnt(0)\ns_barrier'); e(setup0_free(setup))
        e(spread(a[40:] + self.fdi_gen(), pc, 0, 80))
        self.ts('r2 issued', 'w')
        e(f's_mul_i32 s{t0}, s2, 3584\nv_lshlrev_b32 v17, 7, v{V_LANE}\ns_cmp_eq_u32 s{S_W}, 3\ns_cselect_b32 exec_lo, 0xfffffff, 0\ns_mov_b32 exec_hi, 0')
        e(('wvm', 'wsph0')); self.ts('r2 landed', 'w')
        e(f'buffer_load_dword v18, v17, {sr(SWOUT,4)}, s{t0} offen\ns_mov_b64 exec, -1'); e.nvm -= 1
        e(self.wsph_read(0, 29))
        self.ts('pre F2 poll'); self.ts('pre F2 poll', 'w')
        self.poll(15)
        self.ts('F2 seen'); self.ts('F2 seen', 'w')
        for sg in range(3): e(self.h_loads(sg))
        LP = e.label_name('par1'); LJ = e.label_name('p4join')
        e(f's_cmp_lg_u32 s{S_P4}, 0\ns_cbranch_scc1 {LP}')
        nv, nt = e.nvm, self.nts
        self.p4_body(0); e(f's_branch {LJ}\n{LP}:')
        e.nvm = nv; self.nts = nt; self.names = self.names[:nt]
        self.p4_body(1); e(f'{LJ}:')

    @staticmethod
    def hbuf(sg): return [4*16384, 5*16384, 6*16384, L_RING, L_RING+16384, L_RING+32768, 6*16384, L_RING][sg]
    def wg4(self, dst, vr4, vj4, tmp):
        if self.map4 == 2:
            return lines(f'v_lshrrev_b32 v{tmp}, 1, v{vr4}\nv_and_b32 v{vr4}, 1, v{vr4}\nv_lshl_add_u32 v{vr4}, v{vr4}, 3, v{tmp}\nv_lshl_add_u32 v{dst}, v{vj4}, 4, v{vr4}')
        return lines(f'v_lshrrev_b32 v{tmp}, 2, v{vr4}\nv_and_b32 v{vr4}, 3, v{vr4}\nv_lshl_add_u32 v{vr4}, v{vr4}, 3, v{tmp}\nv_lshrrev_b32 v{tmp}, 3, v{vj4}\nv_lshl_add_u32 v{vr4}, v{tmp}, 2, v{vr4}\n'
                     f'v_and_b32 v{tmp}, 7, v{vj4}\nv_lshl_add_u32 v{dst}, v{tmp}, 5, v{vr4}')
    def h_loads(self, sg):
        out = [[f'buffer_load_dwordx4 v{20+i}, {WSr}, s{t0} offen offset:{1024*i} sc1 lds'] for i in range(4)]
        out[0] = [f's_add_u32 m0, s18, {self.hbuf(sg)}', f's_add_u32 s{t0}, s19, {sg*16384}'] + out[0]
        out[-1].append(('mark', f'h{sg}'))
        return out

    def gelu_s(self, acc, scale, T, n=4):
        KA, KB = self.V_KA, self.V_KB; R = range(n); o = []
        o += [f'v_mul_f32 v{acc+i}, v{acc+i}, v{scale}' for i in R] + [f'v_mul_f32 v{T+i}, v{acc+i}, v{acc+i}' for i in R]
        o += [f'v_fma_f32 v{T+i}, v{T+i}, v{KB}, v{KA}' for i in R] + [f'v_mul_f32 v{T+i}, v{T+i}, v{acc+i}' for i in R]
        o += [f'v_exp_f32 v{T+i}, v{T+i}' for i in R] + [f'v_add_f32 v{T+i}, 1.0, v{T+i}' for i in R]
        o += [f'v_rcp_f32 v{T+i}, v{T+i}' for i in R] + [f'v_mul_f32 v{acc+i}, v{acc+i}, v{T+i}' for i in R]
        return o

    def p4_body(self, par):
        e = self.e
        AG, AWr, AR, AB2, ADG = 8, 9, 10, 12, 13
        AW4 = 20
        AF, ZA, DG, BF, T, FI = 128, 64, 56, 32, 16, self.FI
        SQ = BF; S_ST = 12; RLt = [26, 28]; NB = 6
        nz2, nz1 = 4 - par, 3 + par
        af = lambda u, tau: AF + (u*2 + tau)*4
        za = lambda n, tau: ZA + (n*2 + tau)*4
        z1a = lambda n, tau: (DG if n == 0 else FI + 8*(n-1)) + 4*tau
        def bread(dst, slot, u):
            return (f'ds_read_b128 {vr(dst,4)}, v{V_L16} offset:{slot*16384+u*1024}' if slot < 4 else
                    f'ds_read_b128 {vr(dst,4)}, v{AB2} offset:{(slot-4)*16384+u*1024}')
        items = [(u, n) for u in range(16) for n in range(nz2)]
        LA = 5
        rdi = lambda i: [bread(BF+4*(i % NB), items[i][1], items[i][0]), ('mark', f'bf{i}')]
        def block(sg):
            out = []
            for u in (2*sg, 2*sg+1):
                for tau in range(2): out.append([f'{MF} {vr(DG+4*tau,4)}, {vr(af(u,tau),4)}, {vr(af(u,tau),4)}, {vr(DG+4*tau,4) if u else 0}'])
            out[0] = [('wlg', f'tr{sg}')] + out[0]
            for i, (u, n) in enumerate(items):
                if u >> 1 != sg: continue
                mmf = [f'{MF} {vr(za(n,tau),4)}, {vr(af(u,tau),4)}, {vr(BF+4*(i%NB),4)}, {vr(za(n,tau),4) if u else 0}' for tau in range(2)]
                out.append([('wlg', f'bf{i}'), mmf[0]])
                out.append([mmf[1]] + (rdi(i + LA) if i + LA < len(items) else []))
            return out
        z1dma = [self.w2_dma(n) for n in range(4, 7)]
        rh = pick4(T, DG, T+2) + pick4(T+1, DG+4, T+2) + [f'ds_write2_b32 v{ADG}, v{T}, v{T+1} offset0:0 offset1:16', ('mark', 'dgw')]
        rh += lines(f's_lshl_b32 s{t0}, s{S_W}, 10\ns_add_u32 s{t0}, s{t0}, {L_SM}\nv_lshl_add_u32 v{T}, v{V_Q}, 4, s{t0}\nv_lshl_add_u32 v{T+1}, v{V_J}, 2, s{t0}')
        rh += [[('wlg', 'dgw')] + [f'ds_read_b128 {vr(DG+4*tau,4)}, v{T} offset:{64*tau}' for tau in range(2)] +
               [f'ds_read_b32 v{RLt[tau]}, v{T+1} offset:{64*tau}' for tau in range(2)] + [('mark', 'dgr')]]
        rh += [f'v_mov_b32 v{T+2}, {f32(0.5)}', f'v_mov_b32 v{T+4}, {f32(256e-5)}']
        for sg in range(9):
            prev = block(sg - 1) if sg else []
            if sg < 8:
                nxt = self.h_loads(sg + 3) if sg + 3 < 8 else z1dma[sg - 5]
                ra, ro = (AR, self.hbuf(sg) - 0x10000) if self.hbuf(sg) < L_RING else (8, self.hbuf(sg) - L_RING)
                tr = [f'ds_read_b64_tr_b16 {vr(af(2*sg+v,tau)+2*c,2)}, v{ra+tau} offset:{ro+v*8192+c*256}' for v in range(2) for tau in range(2) for c in range(2)]
                k1 = self.opt.get('k1', 6) if prev else 0
                if sg == 0:
                    e(('wvm', 'h0')); e('s_waitcnt lgkmcnt(0)\ns_barrier'); e(tr); e(('mark', 'tr0'))
                    for i in range(LA): e(rdi(i))
                    e(nxt)
                else:
                    e(prev[:k1]); e(('wvm', f'h{sg}')); e('s_barrier')
                    e(spread(prev[k1:k1+6], tr)); e(('mark', f'tr{sg}'))
                    e(spread(prev[k1+6:], nxt))
            else:
                e(prev[:8]); e(spread(prev[8:], rh))
            if sg in (0, 3, 7): self.ts(f'stage {sg}', 'p4')
        e(('mark', 'w2z1'))
        self.ts('stream done'); self.ts('stream done', 'p4')
        e(('wlg', 'dgr'))
        for i in range(0, 8, 2): e(f'v_pk_fma_f32 {vr(DG+i,2)}, {vr(DG+i,2)}, {vr(T+2,2)}, {vr(T+4,2)} op_sel_hi:[1,0,0]')
        for rg in RLt: e(f'v_fma_f32 v{rg}, v{rg}, v{T+2}, v{T+4}')
        for rg in [DG+i for i in range(8)] + RLt: e(f'v_rsq_f32 v{rg}, v{rg}')
        self.ts('rh', 'p4')
        for n in range(nz2):
            e(self.zip2(self.gelu4(za(n,0), DG, True, T), self.gelu4(za(n,1), DG+4, True, T+4)))
            for tau in range(2):
                for h in (0, 2):
                    a = vr(za(n,tau)+h, 2); sS = vr(SQ+4*tau+h, 2); sQ = vr(SQ+8+4*tau+h, 2)
                    if n == 0: e(f'v_pk_mul_f32 {sQ}, {a}, {a}')
                    elif n == 1: e(f'v_pk_add_f32 {sS}, {vr(za(0,tau)+h,2)}, {a}\nv_pk_fma_f32 {sQ}, {a}, {a}, {sQ}')
                    else: e(f'v_pk_add_f32 {sS}, {sS}, {a}\nv_pk_fma_f32 {sQ}, {a}, {a}, {sQ}')
        self.ts('z2 gelu', 'p4')
        dpp = lambda d, s_, ctl, bm: f'v_add_f32_dpp v{d}, v{s_}, v{s_} {ctl} row_mask:0xf bank_mask:{bm:#x}'
        for src, bm in ((0, 0x3), (4, 0xc)):
            for k in (0, 8):
                for r in range(4): e(dpp(SQ+k+r, SQ+k+src+r, 'row_ror:8', bm))
        e(f'v_mov_b32 v{T+1}, s{S_TAG}\nv_mov_b32 v{T+3}, s{S_TAG}')
        for src, bm in ((0, 0x5), (2, 0xa)):
            for k in (0, 8):
                for m in range(2): e(dpp(SQ+k+m, SQ+k+src+m, 'row_half_mirror', bm))
        for ctl in ('quad_perm:[1,0,3,2]', 'quad_perm:[2,3,0,1]'):
            for k in (0, 8):
                for m in range(2): e(dpp(SQ+k+m, SQ+k+m, ctl, 0xf))
        e(f'v_cndmask_b32 v{T}, v{SQ}, v{SQ+1}, {M_J1}\nv_cndmask_b32 v{T+2}, v{SQ+8}, v{SQ+9}, {M_J1}\ns_not_b64 exec, {M_J2}')
        e(f'buffer_store_dwordx4 {vr(T,4)}, v25, {WSr}, s{S_ST+1} offen sc1\ns_mov_b64 exec, -1')
        self.ts('stats out'); self.ts('stats out', 'p4')
        sB, pB = self.wsph_issue(1, 5)
        self.ts('z start', 'z')
        e(sB); e(('wvm', 'w2z1')); self.ts('w2z1', 'z'); e('s_barrier'); self.ts('bar', 'z')
        zit = [(n, u) for n in range(nz1) for u in range(16)]
        rdz = lambda i: [bread(BF+4*(i % NB), nz2+zit[i][0], zit[i][1]), ('mark', f'c{i}')]
        for i in range(LA): e(rdz(i))
        main = []
        for i, (n, u) in enumerate(zit):
            for tau in range(2):
                acc = vr(z1a(n, tau), 4)
                m = [f'{MF} {acc}, {vr(BF+4*(i%NB),4)}, {vr(af(u,tau),4)}, {acc if u else 0}']
                if tau == 0: m = [('wlg', f'c{i}')] + m
                elif i + LA < len(zit): m += rdz(i + LA)
                main.append(m)
        S_Z1, S_Z2, S_HF, S_MN = 14, 16, 17, 18
        f0 = [f's_lshl_b32 s{t0}, s{S_W}, 12', f's_add_u32 s{t0}, s{t0}, {L_RING}', f'v_add_u32 v{T}, s{t0}, v{V_L16}']
        f0 += [f'ds_write_b128 v{T}, {vr(FI+(up*2+n)*4,4)} offset:{n*16384+up*1024}' for up in range(4) for n in range(2)]
        f1 = [lines(f's_or_b32 s{t1}, s2, s{S_W}\ns_cmp_eq_u32 s{t1}, 0\ns_cselect_b32 exec_lo, {0 if self.opt.get("noepoch") else 1}, 0\ns_mov_b32 exec_hi, 0\nv_mov_b32 v6, s{S_TAG}\nv_mov_b32 v7, 0\n'
                    f'buffer_store_dword v6, v7, {WSr}, 0 offen offset:{WS_EPOCH} sc1\ns_mov_b64 exec, -1') + [self.uncount()]]
        f1 += lines(f's_lshl_b32 s{S_HF}, s{S_RB4}, 3\ns_lshl_b32 s{t1}, s{S_W}, 1\ns_add_u32 s{S_HF}, s{S_HF}, s{t1}\ns_mul_i32 s{S_Z1}, s{S_HF}, 56\ns_add_u32 s{S_Z1}, s{S_Z1}, s{S_M4}')
        f1 += lines(f's_add_u32 s{S_Z1}, s{S_Z1}, {3*par}\ns_lshl_b32 s{S_Z1}, s{S_Z1}, 9\ns_add_u32 s{S_Z1}, s{S_Z1}, {WS_Z1F}\ns_add_u32 s{S_Z1+1}, s{S_Z1}, {56*512}')
        f1 += lines(f's_lshl_b32 s{S_HF}, s{S_HF}, 4\ns_add_u32 s{S_HF}, s{S_HF}, s{S_J4}\ns_lshl_b32 s{S_HF}, s{S_HF}, 10\ns_add_u32 s{S_HF}, s{S_HF}, {WS_HF}')
        f1 += lines(f's_lshl_b32 s{t1}, s{S_RB4}, 2\ns_add_u32 s{t1}, s{t1}, s{S_W}\ns_add_u32 s{S_Z2}, s{S_M4}, {4*par}\ns_lshl_b32 s{S_Z2}, s{S_Z2}, 6\ns_add_u32 s{S_Z2}, s{S_Z2}, s{t1}')
        f1 += lines(f's_lshl_b32 s{S_Z2}, s{S_Z2}, 10\ns_add_u32 s{S_Z2}, s{S_Z2}, {WS_Z2F}\ns_lshl_b32 s{S_MN}, s{t1}, 2\ns_add_u32 s{S_MN}, s{S_MN}, {WS_MEAN}\ns_add_u32 s{S_MN+1}, s{S_MN}, 4096')
        f1 += lines(f'v_lshlrev_b32 v{T+1}, 8, v{V_J}\nbuffer_load_dword v10, v{T+1}, {WSr}, s{S_MN} offen sc1\nbuffer_load_dword v11, v{T+1}, {WSr}, s{S_MN+1} offen sc1')
        f1 += lines(f'v_lshlrev_b32 v{AG}, 3, v{V_LANE}\ns_lshl_b32 s{t0}, s{S_W}, 10\ns_add_u32 s{t0}, s{t0}, {L_SM}\nv_and_b32 v{T+2}, 31, v{V_LANE}\nv_lshl_add_u32 v{AWr}, v{T+2}, 2, s{t0}\nv_lshl_add_u32 v{ADG}, v{V_Q}, 4, s{t0}')
        GA = 224
        gl = [[f's_add_u32 s{t1}, s{S_ST}, {i*4096}', f'buffer_load_dwordx4 {ar(GA+4*i,4)}, v24, {WSr}, s{t1} offen sc1'] for i in range(8)]
        ng = len(main) - self.opt.get('glead', 40)
        e(spread(main[:32], f0, 0, 30)); self.ts('m32', 'z')
        e(spread(main[32:ng], self.zip2(pB, [f1[0]]) + f1[1:])); self.ts('mng', 'z'); e(spread(main[ng:], gl, 0, 24))
        self.ts('z1 done'); self.ts('z1 done', 'p4'); self.ts('z1 done', 'z')
        GR = BF
        gr = lambda i: GR + 4*i if i < 6 else T + 4*(i-6)
        L = e.label_name('sp'); Dn = e.label_name('spd'); Ck = e.label_name('spc')
        e(f's_mov_b32 s{t0}, 0\ns_branch {Ck}\n{L}:')
        e(gl)
        e(f's_add_u32 s{t0}, s{t0}, 1\ns_cmp_ge_u32 s{t0}, {SPIN_MAX}\ns_cbranch_scc1 {Dn}\n{Ck}:\ns_waitcnt vmcnt(0)')
        for i in range(8):
            for o in (1, 3): e(f'v_accvgpr_read_b32 v{gr(i)+o}, a{GA+4*i+o}')
        e(f'v_min_u32 v{gr(0)}, v{gr(0)+1}, v{gr(0)+3}\nv_max_u32 v{gr(0)+2}, v{gr(0)+1}, v{gr(0)+3}')
        for i in range(1, 8): e(f'v_min3_u32 v{gr(0)}, v{gr(0)}, v{gr(i)+1}, v{gr(i)+3}\nv_max3_u32 v{gr(0)+2}, v{gr(0)+2}, v{gr(i)+1}, v{gr(i)+3}')
        e(f'v_cmp_ne_u32 vcc, s{S_TAG}, v{gr(0)}\nv_cmp_ne_u32 s[62:63], s{S_TAG}, v{gr(0)+2}\ns_or_b64 vcc, vcc, s[62:63]\ns_cbranch_vccnz {L}\n{Dn}:\ns_waitcnt vmcnt(0)')
        for i in range(8):
            for o in (0, 2): e(f'v_accvgpr_read_b32 v{gr(i)+o}, a{GA+4*i+o}')
        self.ts('stats in'); self.ts('stats in', 'p4'); self.ts('stats in', 'z')
        for st in (4, 2, 1):
            for i in range(st): e(f'v_add_f32 v{gr(i)}, v{gr(i)}, v{gr(i+st)}\nv_add_f32 v{gr(i)+2}, v{gr(i)+2}, v{gr(i+st)+2}')
        e(f'v_mov_b32 v{GR+1}, v{GR}\nv_mov_b32 v{GR+3}, v{GR+2}')
        e(f'v_permlane32_swap_b32 v{GR}, v{GR+1}\nv_permlane32_swap_b32 v{GR+2}, v{GR+3}')
        e(f'v_add_f32 v{GR}, v{GR}, v{GR+1}\nv_add_f32 v{GR+2}, v{GR+2}, v{GR+3}')
        e(f'v_mul_f32 v{GR}, {f32(1/896)}, v{GR}\nv_mul_f32 v{GR+2}, {f32(1/896)}, v{GR+2}')
        e(f'v_fma_f32 v{GR+2}, -v{GR}, v{GR}, v{GR+2}\nv_max_f32 v{GR+2}, 0, v{GR+2}\nv_add_f32 v{GR+2}, {f32(1e-5)}, v{GR+2}\nv_rsq_f32 v{GR+2}, v{GR+2}')
        e(f'v_mul_f32 v{GR}, -v{GR}, v{GR+2}')
        e(f'ds_write2_b32 v{AWr}, v{GR}, v{GR+2} offset0:32 offset1:64\ns_waitcnt lgkmcnt(0)')
        NM = GR + 4
        for tau in range(2):
            for kind in range(2): e(f'ds_read_b128 {vr(NM+8*kind+4*tau,4)}, v{ADG} offset:{128+128*kind+64*tau}')
        e(('mark', 'nm')); e(self.wsph_read(1, 31)); e(('wlg', 'nm'))
        for n in range(nz2):
            for tau in range(2):
                for h in (0, 2):
                    a = vr(za(n,tau)+h, 2)
                    e(f'v_pk_fma_f32 {a}, {a}, {vr(NM+8+4*tau+h,2)}, {vr(NM+4*tau+h,2)}')
            for tau in range(2):
                for h in (0, 2): e(f'v_cvt_pk_bf16_f32 v{za(n,0)+2*tau+h//2}, v{za(n,tau)+h}, v{za(n,tau)+h+1}')
            b = za(n, 0)
            e(f'v_permlane32_swap_b32 v{b}, v{b+2}\nv_permlane32_swap_b32 v{b+1}, v{b+3}\nv_permlane16_swap_b32 v{b}, v{b+2}\nv_permlane16_swap_b32 v{b+1}, v{b+3}')
            e(f'buffer_store_dwordx4 {vr(za(n,0),4)}, v{V_L16}, {WSr}, s{S_Z2} offen sc1')
            if n + 1 < nz2: e(f's_add_u32 s{S_Z2}, s{S_Z2}, 65536')
        e(('mark', 'z2st'))
        self.ts('z2 stored'); self.ts('z2 stored', 'p4'); self.ts('z2 stored', 'z')
        def z1out(n):
            o = []
            for tau in range(2):
                b = z1a(n, tau)
                o += [f'v_cvt_pk_bf16_f32 v{b}, v{b}, v{b+1}', f'v_cvt_pk_bf16_f32 v{b+1}, v{b+2}, v{b+3}',
                      f'buffer_store_dwordx2 {vr(b,2)}, v{AG}, {WSr}, s{S_Z1+tau} offen offset:{512*n} sc1']
            return o
        e(f'v_lshrrev_b32 v24, 3, v{V_LANE}\nv_and_b32 v25, 7, v{V_LANE}\nv_and_b32 v5, 6, v24\nv_xor_b32 v25, v25, v5\nv_lshlrev_b32 v24, 10, v24\nv_lshl_add_u32 v5, v25, 4, v24')
        e(f's_mul_i32 s{S_DO}, s{S_W}, {224*1024}\ns_lshl_b32 s{t1}, s{S_DB}, 7\ns_add_u32 s{S_DO}, s{S_DO}, s{t1}\ns_mul_i32 m0, s{S_W}, {224*128}\nv_add_u32 v{AB2}, {L_RING}, v{V_L16}')
        dma = [[f'buffer_load_dwordx4 v5, {sr(SWOUT,4)}, s{S_DO} offen lds'] + (['s_add_u32 m0, m0, 1024', f's_add_u32 s{S_DO}, s{S_DO}, 8192'] if i < 27 else []) for i in range(28)]
        NW0 = self.opt.get('nw0', 10); self.wo_late = []
        e('s_waitcnt lgkmcnt(0)\ns_barrier')
        g01 = []
        for n in range(2): g01 += self.zip2(self.gelu4(z1a(n,0), RLt[0], False, T), self.gelu4(z1a(n,1), RLt[1], False, T+4)) + z1out(n)
        e(spread(g01, dma[:NW0], 0, 70))
        dma = dma[NW0:] + [[]]*32
        self.ts('gelu01', 'z')
        e(('wvm', 'z2st')); e('s_barrier')
        self.flag_write(F4)
        self.ts('F4'); self.ts('F4', 'p4'); self.ts('F4', 'z')
        HA = ZA + 16; hit = [(u, n) for u in range(16) for n in range(2)]
        rdh = lambda i: [f'ds_read_b128 {vr(BF+4*(i%NB),4)}, v{AB2} offset:{hit[i][1]*16384+hit[i][0]*1024}', ('mark', f'hh{i}')]
        for i in range(LA): e(rdh(i))
        main = []
        for i, (u, n) in enumerate(hit):
            for tau in range(2):
                acc = vr(HA+(tau*2+n)*4, 4)
                m = [f'{MF} {acc}, {vr(BF+4*(i%NB),4)}, {vr(af(u,tau),4)}, {acc if u else 0}']
                if tau == 0: m = [('wlg', f'hh{i}')] + m + dma[i]
                elif i + LA < 32: m += rdh(i + LA)
                main.append(m)
        fill = []
        for n in range(2, nz1):
            fill += self.zip2(self.gelu_s(z1a(n,0), RLt[0], T), self.gelu_s(z1a(n,1), RLt[1], T+4)) + z1out(n)
        e(spread(main, fill))
        self.ts('h mfma', 'z')
        e(f'v_mov_b32 v{T}, {f32(1/16)}\ns_add_u32 s{t1}, s{S_HF}, 16384')
        for tau in range(2):
            for i in range(0, 8, 2): e(f'v_pk_fma_f32 {vr(HA+8*tau+i,2)}, {vr(HA+8*tau+i,2)}, {vr(T,2)}, {vr(10,2)} op_sel:[0,0,{tau}] op_sel_hi:[1,0,{tau}]')
            for i in range(4): e(f'v_cvt_pk_bf16_f32 v{HA+8*tau+i}, v{HA+8*tau+2*i}, v{HA+8*tau+2*i+1}')
            e(f'buffer_store_dwordx4 {vr(HA+8*tau,4)}, v{V_L16}, {WSr}, s{S_HF if tau == 0 else t1} offen sc1')
        self.ts('h stored'); self.ts('h stored', 'p4'); self.ts('h stored', 'z')

    def p5(self):
        e = self.e
        RD = 16; PRE = self.opt.get('pre5', 12)
        RING, AC, RR, Z1, PK, BI, T = 64, 32, 128, 144, 160, 8, 16
        AWr, ARd, A8 = 10, 11, 12
        S_Z, S_P = 52, 53
        e(f'v_bfe_u32 v{T}, v{V_LANE}, 1, 2\ns_lshl_b32 s{t0}, s{S_W}, 2\nv_add_u32 v{T}, s{t0}, v{T}')
        AFH, VFH = 13, 14
        e(f'v_and_b32 v{T+1}, 1, v{V_LANE}\ns_lshl_b32 s{t0}, s{S_FB}, 1\nv_add_u32 v{T+1}, s{t0}, v{T+1}\ns_lshr_b32 s{t0}, s{S_TB}, 1\nv_mov_b32 v{AFH}, s{t0}')
        e(self.wg4(T, T, T+1, T+2)); e(self.wg4(AFH, AFH, T+1, T+2))
        e(f'v_lshlrev_b32 v{T}, 7, v{T}\nv_add_u32 v{T}, {F4}, v{T}\nv_lshlrev_b32 v{AFH}, 7, v{AFH}\nv_add_u32 v{AFH}, {FH}, v{AFH}')
        e(f's_lshl_b32 s{t0}, s{S_TB}, 7\ns_lshl_b32 s{t1}, s{S_W}, 5\ns_add_u32 s{t0}, s{t0}, s{t1}\nv_lshlrev_b32 v{T+1}, 1, v{V_J}')
        e(f'buffer_load_ushort v{BI}, v{T+1}, {sr(SBSP,4)}, s{t0} offen')
        e(f's_lshl_b32 s{t0}, s{S_W}, 12\ns_add_u32 s{t0}, s{t0}, {L_RING}\nv_add_u32 v{AWr}, s{t0}, v{V_L16}')
        e(f's_lshl_b32 s{t0}, s{S_W}, 10\ns_add_u32 s{t0}, s{t0}, {L_RING}\nv_add_u32 v{ARd}, s{t0}, v{V_L16}\nv_lshlrev_b32 v{A8}, 3, v{V_LANE}')
        e(f's_mul_i32 s{S_Z}, s{S_FB}, {7*65536}\ns_lshl_b32 s{t0}, s{S_W}, 14\ns_add_u32 s{S_Z}, s{S_Z}, s{t0}\ns_add_u32 s{S_Z}, s{S_Z}, {WS_Z2F}')
        e(f's_lshl_b32 s{S_P}, s{S_TB}, 3\ns_add_u32 s{S_P}, s{S_P}, s{S_FB}\ns_lshl_b32 s{S_P}, s{S_P}, 2\ns_add_u32 s{S_P}, s{S_P}, s{S_W}\ns_mul_i32 s{S_P}, s{S_P}, 3584\ns_add_u32 s{S_P}, s{S_P}, {WS_PF}')
        e(f's_lshl_b32 s{t2}, s{S_TB}, 2\ns_add_u32 s{t2}, s{t2}, s{S_W}\ns_mul_i32 s{t2}, s{t2}, 56\ns_mul_i32 s{t1}, s{S_FB}, 7\ns_add_u32 s{t2}, s{t2}, s{t1}\ns_lshl_b32 s{t2}, s{t2}, 9\ns_add_u32 s54, s{t2}, {WS_Z1F}')
        self.ts('pre poll', 'z')
        self.poll(T)
        self.ts('F4 seen'); self.ts('F4 seen', 'p5'); self.ts('F4 seen', 'z')
        def load(i):
            n, ks = divmod(i, 16)
            out = []
            if ks % 4 == 0: out.append(f's_add_u32 s{t3}, s{S_Z}, {n*65536 + ks*1024}')
            out += [f'buffer_load_dwordx4 {vr(RING+4*(i%RD),4)}, v{V_L16}, {WSr}, s{t3} offen offset:{(ks%4)*1024} sc1', ('mark', f'z{i}')]
            return out
        for i in range(PRE): e(load(i))
        e(f'v_lshlrev_b32 v{BI}, 16, v{BI}\ns_waitcnt lgkmcnt(0)\ns_barrier')
        self.flag_write(FH)
        def red_write(m): return [f'ds_write_b128 v{AWr}, {vr(AC+16*(m&1)+4*tau,4)} offset:{(m&1)*16384+tau*1024}' for tau in range(4)]
        def red_read(m): return ['s_waitcnt lgkmcnt(0)', 's_barrier'] + [f'ds_read_b128 {vr(RR+4*w2,4)}, v{ARd} offset:{(m&1)*16384+w2*4096}' for w2 in range(4)]
        G0 = 20
        def fin_a(m):
            d = G0 + 4*m if m < 2 else RR
            o = ['s_waitcnt lgkmcnt(0)']
            for i in range(4): o += [f'v_add_f32 v{RR+i}, v{RR+i}, v{RR+4+i}', f'v_add_f32 v{RR+8+i}, v{RR+8+i}, v{RR+12+i}']
            for i in range(4): o += [f'v_add_f32 v{RR+i}, v{RR+i}, v{BI}']
            for i in range(4): o += [f'v_add_f32 v{d+i}, v{RR+i}, v{RR+8+i}']
            return o
        def fin_b(m):
            d = G0 + 4*m if m < 2 else RR
            o = [('wvm', 'z1')] if m == 0 else []
            for h in (0, 2): o += [f'v_lshlrev_b32 v{T+h}, 16, v{Z1+2*m+h//2}', f'v_and_b32 v{T+h+1}, 0xffff0000, v{Z1+2*m+h//2}']
            for i in range(4): o += [f'v_mul_f32 v{d+i}, v{d+i}, v{T+i}']
            pk = PK + 4*((m >> 1) & 1) + 2*(m & 1)
            o += [f'v_cvt_pk_bf16_f32 v{pk}, v{d}, v{d+1}', f'v_cvt_pk_bf16_f32 v{pk+1}, v{d+2}, v{d+3}']
            if m == 6: o.append(f'buffer_store_dwordx2 {vr(pk,2)}, v{A8}, {WSr}, s{S_P} offen offset:3072 sc1')
            elif m & 1: o.append(f'buffer_store_dwordx4 {vr(pk-2,4)}, v{V_L16}, {WSr}, s{S_P} offen offset:{(m>>1)*1024} sc1')
            return o
        fin = lambda m: fin_a(m) + fin_b(m)
        IFH = self.opt.get('ifh', 20)
        for n in range(7):
            tail = [] if n == 0 else fin_a(n-1) if n < 3 else fin_b(0) + fin_b(1) + fin(2) if n == 3 else fin(n-1)
            k0 = 5 if n == 3 else 8
            per = -(-len(tail) // (15 - k0))
            for ks in range(16):
                i = n*16 + ks
                e(('wvm', f'z{i}'))
                for tau in range(4):
                    acc = vr(AC+16*(n&1)+4*tau, 4)
                    e(f'{MF} {acc}, {vr(RING+4*(i%RD),4)}, {ar((tau*16+ks)*4,4)}, {acc if ks else 0}')
                    if tau == 1 and i + PRE < 112: e(load(i + PRE))
                    if i + PRE >= 112 and tau in (1, 3) and self.wo_late: e(self.wo_late.pop(0))
                    if ks >= k0:
                        lo = (ks-k0)*per; seg = tail[lo:lo+per]
                        e(seg[(len(seg)*tau)//4:(len(seg)*(tau+1))//4])
                if n:
                    if ks == 1: e(red_write(n-1))
                    if ks == 4: e(red_read(n-1))
                if i == IFH: e(f'buffer_load_dword v{VFH}, v{AFH}, {WSr}, 0 offen sc1'); e(('mark', 'fh'))
                if i == IFH + PRE:
                    e(('wvm', 'fh')); self.check_or_poll(VFH, AFH)
                    for m in range(7): e(f'buffer_load_dwordx2 {vr(Z1+2*m,2)}, v{A8}, {WSr}, s54 offen offset:{512*m} sc1')
                    e(('mark', 'z1'))
            self.ts(f'tile {n}', 'p5')
        self.ts('p5 mfma')
        e(red_write(6)); e(red_read(6)); e(fin(6))
        self.ts('p stored'); self.ts('p stored', 'p5')

    def p6(self):
        e = self.e
        TB, DB = S_TB6, S_DB
        WF, PA, HR, T = 128, 16, 240, 248
        steps = [(0, 1), (2, 3), (4, 5), (7, 8), (9, 10), (11, 12), (6, 13)]
        e(f'v_bfe_u32 v8, v{V_LANE}, 2, 2\nv_lshl_add_u32 v9, v{V_Q}, 2, v8\nv_lshrrev_b32 v10, 1, v9\nv_and_b32 v10, 3, v10\nv_lshlrev_b32 v9, 7, v9')
        e(f'v_lshl_add_u32 v9, v10, 5, v9\nv_and_b32 v10, 3, v{V_LANE}\nv_lshl_add_u32 v9, v10, 3, v9\ns_mul_i32 s{t0}, s{S_W}, 28672')
        for n in range(4): e(f'v_xor_b32 v{20+n}, {32*n}, v9\nv_add_u32 v{20+n}, s{t0}, v{20+n}')
        rds = []
        for si, (la, lb) in enumerate(steps):
            for n in range(4):
                rds += [f'ds_read_b64_tr_b16 {vr(WF+(si*4+n)*4,2)}, v{20+n} offset:{la*2048}', f'ds_read_b64_tr_b16 {vr(WF+(si*4+n)*4+2,2)}, v{20+n} offset:{lb*2048}']
        e(rds)
        e('s_waitcnt vmcnt(0)\ns_barrier')
        self.flag_write(F5)
        self.ts('F5'); self.ts('F5', 'p5')
        e(f'v_and_b32 v8, 1, v{V_LANE}')
        if self.map5 == 'B':
            e(f's_lshl_b32 s{t0}, s{S_W}, 6\ns_add_u32 s{t0}, s{t0}, s{TB}\nv_lshl_add_u32 v9, v8, 5, s{t0}')
        else:
            e(f's_lshr_b32 s{t0}, s{S_W}, 1\ns_and_b32 s{t1}, s{S_W}, 1\ns_lshl_b32 s{t1}, s{t1}, 4\ns_add_u32 s{t0}, s{t0}, s{t1}\ns_lshr_b32 s{t1}, s{TB}, 3\ns_lshl_b32 s{t1}, s{t1}, 1\ns_add_u32 s{t0}, s{t0}, s{t1}')
            e(f's_and_b32 s{t1}, s{TB}, 7\ns_lshl_b32 s{t1}, s{t1}, 5\ns_add_u32 s{t0}, s{t0}, s{t1}\nv_lshl_add_u32 v9, v8, 3, s{t0}')
        e(f'v_lshlrev_b32 v9, 7, v9\nv_add_u32 v9, {F5}, v9\ns_lshl_b32 s{t0}, s{DB}, 1\nv_add_u32 v8, s{t0}, v8\ns_lshr_b32 s{t0}, s{TB}, 1\nv_mov_b32 v10, s{t0}')
        e(self.wg4(8, 10, 8, 11))
        e(f'v_lshlrev_b32 v8, 7, v8\nv_add_u32 v8, {FH}, v8\nv_cmp_gt_u32 vcc, 2, v{V_LANE}\nv_cndmask_b32 v9, v8, v9, vcc')
        A8, AH, ARW, ARR, AO = 8, 10, 11, 12, 13
        S_P0, S_H, S_O = 52, 54, 55
        e(f'v_lshlrev_b32 v{A8}, 3, v{V_LANE}')
        e(f'v_bfe_u32 v14, v{V_LANE}, 2, 1\nv_lshlrev_b32 v{AH}, 10, v14\nv_and_b32 v14, 3, v{V_LANE}\nv_lshl_add_u32 v{AH}, v14, 8, v{AH}\nv_lshrrev_b32 v14, 3, v{V_LANE}\nv_lshl_add_u32 v{AH}, v14, 4, v{AH}')
        e(f's_mul_i32 s{t0}, s{S_W}, 4352\nv_mul_u32_u24 v{ARW}, 272, v{V_J}\nv_lshl_add_u32 v{ARW}, v{V_Q}, 4, v{ARW}\nv_add_u32 v{ARW}, s{t0}, v{ARW}')
        e(f's_mul_i32 s{t0}, s{S_W}, 17408\nv_mul_u32_u24 v{ARR}, 272, v14\nv_and_b32 v15, 7, v{V_LANE}\nv_lshl_add_u32 v{ARR}, v15, 5, v{ARR}\nv_add_u32 v{ARR}, s{t0}, v{ARR}')
        e(f'v_lshlrev_b32 v{AO}, 10, v14\nv_lshl_add_u32 v{AO}, v15, 4, v{AO}')
        e(f's_lshl_b32 s{S_P0}, s{TB}, 3\ns_lshl_b32 s{t0}, s{S_W}, 1\ns_add_u32 s{S_P0}, s{S_P0}, s{t0}\ns_mul_i32 s{S_P0}, s{S_P0}, {4*3584}\ns_add_u32 s{S_P0}, s{S_P0}, {WS_PF}')
        e(f's_lshl_b32 s{S_H}, s{TB}, 2\ns_add_u32 s{S_H}, s{S_H}, s{S_W}\ns_lshl_b32 s{S_O}, s{S_H}, 14\ns_lshl_b32 s{t0}, s{DB}, 7\ns_add_u32 s{S_O}, s{S_O}, s{t0}')
        e(f's_lshl_b32 s{S_H}, s{S_H}, 4\ns_lshl_b32 s{t0}, s{DB}, 1\ns_add_u32 s{S_H}, s{S_H}, s{t0}\ns_lshl_b32 s{S_H}, s{S_H}, 10\ns_add_u32 s{S_H}, s{S_H}, {WS_HF}')
        e('s_waitcnt lgkmcnt(0)\ns_barrier')
        self.poll(9)
        self.ts('F5 seen'); self.ts('F5 seen', 'p5')
        def loads(tau):
            out = []
            for h in range(2):
                out.append([f's_add_u32 s{t1+h}, s{S_P0}, {(h*4+tau)*3584}', f'buffer_load_dwordx4 {vr(PA+(tau*7+h*3)*4,4)}, v{V_L16}, {WSr}, s{t1+h} offen sc1', ('mark', f'p{tau}_{h*3}')])
                for p in (1, 2): out.append([f'buffer_load_dwordx4 {vr(PA+(tau*7+h*3+p)*4,4)}, v{V_L16}, {WSr}, s{t1+h} offen offset:{1024*p} sc1', ('mark', f'p{tau}_{h*3+p}')])
            out.append([f'buffer_load_dwordx2 {vr(PA+(tau*7+6)*4+2*h,2)}, v{A8}, {WSr}, s{t1+h} offen offset:3072 sc1' for h in range(2)] + [('mark', f'p{tau}_6')])
            return out
        ld = [x for tau in range(4) for x in loads(tau)]
        ld.append([f'buffer_load_dwordx4 {vr(HR+4*h,4)}, v{AH}, {WSr}, s{S_H} offen offset:{128*h} sc1' for h in range(2)])
        P6 = self.opt.get('pre6', 12)
        for x in ld[:P6]: e(x)
        def wr(tau): return [f'ds_write_b128 v{ARW}, {ar(16*(tau&1)+4*n,4)} offset:{tau*17408+64*n}' for n in range(4)]
        for tau in range(4):
            for si in range(7):
                e(('wvm', f'p{tau}_{si}'))
                for n in range(4):
                    acc = ar(16*(tau&1)+4*n, 4)
                    e(f'{MF} {acc}, {vr(WF+(si*4+n)*4,4)}, {vr(PA+(tau*7+si)*4,4)}, {acc if si else 0}')
                    if n == 1 and tau*7 + si + P6 < len(ld): e(ld[tau*7 + si + P6])
                if si == 2 and tau: e(wr(tau-1))
        self.ts('p6 mfma'); self.ts('p6 mfma', 'p5')
        e(wr(3)); e('s_waitcnt lgkmcnt(0)\ns_barrier')
        R = 16
        for h in range(2):
            for w2 in range(4):
                for x in range(2): e(f'ds_read_b128 {vr(R+((h*4+w2)*2+x)*4,4)}, v{ARR} offset:{w2*4352+h*2176+16*x}')
            e(('mark', f'r{h}'))
        e(f's_add_u32 s{t0}, s{S_O}, 8192\ns_waitcnt vmcnt(0)')
        for h in range(2):
            b = R + h*32
            for i in range(4): e(f'v_lshlrev_b32 v{T+2*i}, 16, v{HR+4*h+i}\nv_and_b32 v{T+2*i+1}, 0xffff0000, v{HR+4*h+i}')
            e(('wlg', f'r{h}'))
            for i in range(0, 8, 2):
                e(f'v_pk_add_f32 {vr(b+i,2)}, {vr(b+i,2)}, {vr(b+8+i,2)}\nv_pk_add_f32 {vr(b+16+i,2)}, {vr(b+16+i,2)}, {vr(b+24+i,2)}')
            for i in range(0, 8, 2): e(f'v_pk_add_f32 {vr(b+i,2)}, {vr(b+i,2)}, {vr(b+16+i,2)}')
            for i in range(0, 8, 2): e(f'v_pk_add_f32 {vr(b+i,2)}, {vr(b+i,2)}, {vr(T+i,2)}')
            for i in range(4): e(f'v_cvt_pk_bf16_f32 v{b+8+i}, v{b+2*i}, v{b+2*i+1}')
            e(f'buffer_store_dwordx4 {vr(b+8,4)}, v{AO}, {sr(SOUT,4)}, s{S_O if h == 0 else t0} offen{self.opt.get("ofl", "")}')

    def epilogue(self):
        e = self.e
        if self.prof:
            self.ts('end')
            e(f's_lshl_b32 s{t0}, s2, 2\ns_add_u32 s{t0}, s{t0}, s{S_W}\ns_lshl_b32 s{t0}, s{t0}, 7\ns_add_u32 s{t0}, s{t0}, {WS_TS}')
            e('v_mov_b32 v7, 0\ns_mov_b64 exec, 1')
            e('s_waitcnt lgkmcnt(0)')
            for i in range(self.nts):
                e(f'v_mov_b32 v6, s{S_TS+i*(2 if self.opt.get("fine") else 1)}\nbuffer_store_dword v6, v7, {WSr}, s{t0} offen offset:{4*i}')
        if self.prof and self.opt.get('dbg') is not None:
            L = e.label_name('nd')
            e(f's_lshl_b32 s{t0}, s{S_W}, 8\ns_add_u32 s{t0}, s{t0}, s2\ns_cmp_eq_u32 s{t0}, {self.opt["dbg"]}\ns_cbranch_scc0 {L}')
            e('s_load_dwordx2 s[8:9], s[0:1], 72\ns_mov_b32 s10, 256\ns_mov_b32 s11, 0x20000\ns_waitcnt lgkmcnt(0)')
            pick = [i for i, n in enumerate(self.names) if n in self.opt['pick']]
            for o, i in enumerate(pick):
                e(f's_sub_u32 s{t1}, s{S_TS+i}, s{S_TS}\nv_mov_b32 v6, s{t1}\nbuffer_store_dword v6, v7, s[8:11], 0 offen offset:{4*o}')
            e(f'{L}:')
        e('L_end:\ns_endpgm')
        e.raw('.type L_pad,@object\nL_pad:\n.fill 2048, 4, 0xbf800000\nL_padend:')

    def build(self):
        self.p1()
        for ph, fn in ((2, 'p2'), (4, 'p4'), (5, 'p5'), (6, 'p6')):
            if self.stop >= ph: getattr(self, fn)()
        self.epilogue()
        hdr = open('cdna_kernels/' + NAME + '.s.ref').read().split('; Override launch')[0]
        txt = hdr + f'; @launch grid=(256,1,1) block=(256,1,1) lds={LDS_BYTES}\n'
        txt += f'.amdgcn_target "amdgcn-amd-amdhsa--gfx950"\n.text\n.globl {KNAME}\n.p2align 8\n.type {KNAME},@function\n{KNAME}:\n'
        txt += self.e.text()
        txt += (f'.section .rodata,"a"\n.p2align 6\n.amdhsa_kernel {KNAME}\n  .amdhsa_next_free_vgpr 512\n  .amdhsa_next_free_sgpr 102\n'
                '  .amdhsa_accum_offset 256\n  .amdhsa_group_segment_fixed_size 0\n  .amdhsa_kernarg_size 88\n  .amdhsa_user_sgpr_count 2\n'
                '  .amdhsa_user_sgpr_kernarg_segment_ptr 1\n  .amdhsa_system_sgpr_workgroup_id_x 1\n  .amdhsa_float_denorm_mode_32 3\n.end_amdhsa_kernel\n')
        return txt

def main(cls):
    import argparse, json
    ap = argparse.ArgumentParser(); ap.add_argument('-o', default='k.s'); ap.add_argument('--stop', type=int, default=99)
    ap.add_argument('--prof', action='store_true'); ap.add_argument('--opt', default='{}')
    a = ap.parse_args()
    g = cls(a.stop, a.prof, json.loads(a.opt)); t = g.build(); open(a.o, 'w').write(t)
    if a.prof: open(a.o + '.names', 'w').write('\n'.join(g.names))
    print('lines', t.count('\n'), 'nops', g.e.nops, 'stamps', g.nts)

if __name__ == '__main__': main(Gen)
```
